```python
import torch

def _softmax(x, axis=-1):
    return torch.softmax(x, dim=axis)
def _gelu(x):
    return torch.nn.functional.gelu(x, approximate="tanh")
def _silu(x):
    return torch.nn.functional.silu(x)
def _sigmoid(x):
    return torch.sigmoid(x)
def _layernorm(x, axis=-1, eps=1e-5):
    m = x.mean(dim=axis, keepdim=True)
    v = x.var(dim=axis, keepdim=True, unbiased=False)
    return (x - m) / torch.sqrt(v + eps)
def _scatter_add(tgt, idx, src, axis=0):
    return tgt.clone().index_add_(axis, idx, src)
def _segment_sum(src, seg, n):
    out = torch.zeros((n,) + src.shape[1:], dtype=src.dtype)
    return out.index_add_(0, seg, src)
def _pad(x, pw):
    flat = tuple(v for pair in reversed(pw) for v in pair)
    return torch.nn.functional.pad(x, flat)

kernel_name = 'parallel_sum__softmax_full_mha__mixer_s_mlp__prompt'

def setup_inputs():

    _w = (lambda a: (lambda t: t.to(torch.bfloat16) if t.is_floating_point() else t)(torch.as_tensor(a)))
    def _A_setup():
        B, S, D = 1, 2048, 512
        return {
            "x": _w((lambda *s: torch.randn(*s, dtype=torch.bfloat16) * 0.05)(B, S, D)),
            "wqkv": _w((lambda *s: torch.randn(*s, dtype=torch.bfloat16) * 0.1)(D, 3 * D)),
            "wo": _w((lambda *s: torch.randn(*s, dtype=torch.bfloat16) * 0.05)(D, D)),
        }
    _A_in = _A_setup()

    def _B_setup():
        B, S, D, F = 1, 2048, 512, 1376
        return {
            "x":  _w((lambda *s: torch.randn(*s, dtype=torch.bfloat16) * 0.05)(B, S, D)),
            "w1": _w((lambda *s: torch.randn(*s, dtype=torch.bfloat16) * 3.2)(D, D) * (D ** -0.5)),
            "w2": _w((lambda *s: torch.randn(*s, dtype=torch.bfloat16) * 3.2)(D, D) * (D ** -0.5)),
            "w3": _w((lambda *s: torch.randn(*s, dtype=torch.bfloat16) * 3.2)(D, F) * (D ** -0.5)),
            "w4": _w((lambda *s: torch.randn(*s, dtype=torch.bfloat16) * 3.2)(F, D) * (F ** -0.5)),
        }
    _B_in = _B_setup()

    return {
        "A_x": _A_in["x"],
        "A_wqkv": _A_in["wqkv"],
        "A_wo": _A_in["wo"],
        "B_x": _B_in["x"],
        "B_w1": _B_in["w1"],
        "B_w2": _B_in["w2"],
        "B_w3": _B_in["w3"],
        "B_w4": _B_in["w4"],
    }

def reference(A_x, A_wqkv, A_wo, B_x, B_w1, B_w2, B_w3, B_w4):
    def _A_ref(x, wqkv, wo):
        B, S, D = x.shape
        H = 32; Dh = D // H
        qkv = (lambda x, *d: x.permute(*d))((x @ wqkv).reshape(B, S, 3, H, Dh), 2, 0, 3, 1, 4)
        q, k, v = qkv[0], qkv[1], qkv[2]
        scale = Dh ** -0.5
        scores = torch.einsum("bhqd,bhkd->bhqk", q, k) * scale
        p = _softmax(scores, axis=-1)
        o = torch.einsum("bhqk,bhkd->bhqd", p, v)
        return (lambda x, *d: x.permute(*d))(o, 0, 2, 1, 3).reshape(B, S, D) @ wo

    def _B_ref(x, w1, w2, w3, w4):
        B, S, D = x.shape
        h = _gelu(_layernorm(x, axis=-1) @ w1)
        c = D // 4
        g0 = _pad(h[:, :, 0*c:1*c], ((0, 0), (1, 0), (0, 0)))[:, :S, :]
        g1 = _pad(h[:, :, 1*c:2*c], ((0, 0), (0, 1), (0, 0)))[:, 1:, :]
        g2 = _pad(h[:, :, 2*c:3*c], ((0, 0), (2, 0), (0, 0)))[:, :S, :]
        g3 = _pad(h[:, :, 3*c:   ], ((0, 0), (0, 2), (0, 0)))[:, 2:, :]
        hs = torch.concatenate([g0, g1, g2, g3], axis=-1) @ w2
        x1 = x + hs
        h2 = _gelu(_layernorm(x1, axis=-1) @ w3) @ w4
        return x1 + h2

    x = A_x
    xn = _layernorm(x, axis=-1)
    return x + _A_ref(xn, A_wqkv, A_wo) + _B_ref(xn, B_w1, B_w2, B_w3, B_w4)
```

```python
from common import *

A_K = 0
A_V = 65536
A_ONES = 131072
ATTN_LDS = 131072 + 8192


def attn_body(a, T, NW_BAR_FN=None):
    e = a.e
    n = a.name
    e("v_lshlrev_b32 v2, 4, v1")
    e("s_lshl_b32 s46, s40, 16")
    e(f"s_add_u32 s47, s46, {VOFF}")
    e(f"s_add_u32 s46, s46, {KOFF}")
    e("s_lshl_b32 s48, s45, 10")
    def dma(tile0, cnt, stride_tiles):
        for i in range(cnt):
            off = (tile0 + 8 * i) * 1024
            e(f"s_add_u32 m0, s48, {A_K + off}")
            e(f"s_add_u32 s49, s48, {off}")
            e("s_add_u32 s50, s49, s46")
            e("buffer_load_dwordx4 v2, s[32:35], s50 offen lds")
            e(f"s_add_u32 m0, s48, {A_V + off}")
            e("s_add_u32 s50, s49, s47")
            e("buffer_load_dwordx4 v2, s[32:35], s50 offen lds")
    e("s_lshl_b32 s49, s40, 6")
    e("s_lshl_b32 s50, s41, 3")
    e("s_add_u32 s49, s49, s50")
    e("s_add_u32 s49, s49, s45")
    e("s_lshl_b32 s49, s49, 10")
    e(f"buffer_load_dwordx4 v[8:11], v2, s[32:35], s49 offen")
    dma(0, 1, 8)
    dma(8, 3, 8)
    dma(32, 4, 8)
    e("v_mov_b32 v12, 0x3f803f80")
    e("v_mov_b32 v13, v12"); e("v_mov_b32 v14, v12"); e("v_mov_b32 v15, v12")
    e("s_lshl_b32 s49, s45, 10")
    e(f"s_add_u32 s49, s49, {A_ONES}")
    e("v_add_u32 v3, s49, v2")
    e("ds_write_b128 v3, v[12:15]")
    e("v_lshrrev_b32 v5, 5, v1")
    e("v_bfe_u32 v6, v1, 4, 1")
    e("v_xor_b32 v7, v5, v6")
    e("v_and_b32 v3, 15, v1")
    e("v_lshlrev_b32 v3, 3, v3")
    e("v_lshl_add_u32 v3, v7, 7, v3")
    e("v_lshl_add_u32 v3, v6, 16, v3")
    e(f"v_add_u32 v112, {A_V}, v3")
    e("v_xor_b32 v4, 1, v6")
    e("v_lshlrev_b32 v4, 12, v4")
    e("s_mov_b32 s52, 0")
    e("s_waitcnt vmcnt(14) lgkmcnt(0)")
    e("s_barrier")
    T.stamp()
    e("ds_read_b128 v[88:91], v2")
    e("s_waitcnt lgkmcnt(0)")
    e("v_mfma_f32_32x32x16_bf16 v[32:47], v[88:91], v[8:11], 0")
    e("s_nop 7"); e("s_nop 3")
    e("v_max3_f32 v16, v32, v33, v34")
    e("v_max3_f32 v17, v35, v36, v37")
    e("v_max3_f32 v16, v16, v38, v39")
    e("v_max3_f32 v17, v17, v40, v41")
    e("v_max3_f32 v16, v16, v42, v43")
    e("v_max3_f32 v17, v17, v44, v45")
    e("v_max3_f32 v16, v16, v46, v47")
    e("v_max_f32 v16, v16, v17")
    e(f"L_{n}_setmax:")
    e("v_mov_b32 v17, v16")
    e("s_nop 1")
    e("v_permlane32_swap_b32 v16, v17")
    e("v_max_f32 v16, v16, v17")
    e("v_sub_f32 v16, 0, v16")
    for r in range(17, 32): e(f"v_mov_b32 v{r}, v16")
    e("v_lshlrev_b32 v2, 4, v1")
    e("v_mov_b32 v3, v112")
    e("ds_read_b128 v[88:91], v2")
    e("ds_read_b128 v[92:95], v2 offset:1024")
    for u in range(2):
        for t in range(2):
            e(f"ds_read_b64_tr_b16 v[{96+4*u+2*t}:{97+4*u+2*t}], v3 offset:{512*u+256*t}")
    for r in list(range(68, 88)) + list(range(104, 112)): e(f"v_mov_b32 v{r}, 0")
    e("s_waitcnt lgkmcnt(5)")
    e("v_mfma_f32_32x32x16_bf16 v[32:47], v[88:91], v[8:11], v[16:31]")
    e("s_nop 7")
    e("s_mov_b32 s51, 0")
    e(f"L_{n}_loop:")
    e("s_cmp_lg_u32 s52, 0")
    e(f"s_cbranch_scc1 L_{n}_nobar")
    e("s_cmp_eq_u32 s51, 1")
    e(f"s_cbranch_scc1 L_{n}_bar1")
    e("s_cmp_lg_u32 s51, 7")
    e(f"s_cbranch_scc1 L_{n}_nobar")
    e("s_waitcnt vmcnt(0)")
    e(f"L_{n}_bar1:")
    e("s_waitcnt vmcnt(8)")
    e("s_barrier")
    e(f"L_{n}_nobar:")
    for tl in range(4):
        S = 32 + 16 * (tl % 2); Sn = 32 + 16 * ((tl + 1) % 2)
        Kn = 88 + 4 * ((tl + 1) % 2); Knn = 88 + 4 * (tl % 2)
        V = 96 + 8 * (tl % 2); Vp = 96 + 8 * ((tl + 1) % 2)
        e("s_waitcnt lgkmcnt(4)")
        e(f"v_mfma_f32_32x32x16_bf16 v[{Sn}:{Sn+15}], v[{Kn}:{Kn+3}], v[8:11], v[16:31]")
        e(f"ds_read_b128 v[{Knn}:{Knn+3}], v2 offset:{1024*(tl+2)}")
        e(f"v_exp_f32 v{S}, v{S}")
        e(f"v_exp_f32 v{S+1}, v{S+1}")
        e(f"v_mfma_f32_32x32x16_bf16 v[72:87], v[{Vp+4}:{Vp+7}], v[68:71], v[72:87]")
        for u in range(2):
            for t in range(2):
                e(f"ds_read_b64_tr_b16 v[{Vp+4*u+2*t}:{Vp+4*u+2*t+1}], v3 offset:{1024*(tl+1)+512*u+256*t}")
        for i in range(2, 8): e(f"v_exp_f32 v{S+i}, v{S+i}")
        e(f"v_exp_f32 v{S+8}, v{S+8}")
        for i in range(4): e(f"v_cvt_pk_bf16_f32 v{64+i}, v{S+2*i}, v{S+2*i+1}")
        e(f"v_exp_f32 v{S+9}, v{S+9}")
        e(f"v_exp_f32 v{S+10}, v{S+10}")
        e("s_waitcnt lgkmcnt(5)")
        e(f"v_mfma_f32_32x32x16_bf16 v[72:87], v[{V}:{V+3}], v[64:67], v[72:87]")
        for i in range(11, 16): e(f"v_exp_f32 v{S+i}, v{S+i}")
        if tl == 3:
            e("v_add_u32 v2, 4096, v2")
            e("v_add_u32 v3, v4, v3")
        else:
            e("s_nop 0")
        for i in range(4, 8): e(f"v_cvt_pk_bf16_f32 v{64+i}, v{S+2*i}, v{S+2*i+1}")
    e("s_add_u32 s51, s51, 1")
    e("s_cmp_lt_u32 s51, 16")
    e(f"s_cbranch_scc1 L_{n}_loop")
    e("v_mfma_f32_32x32x16_bf16 v[72:87], v[108:111], v[68:71], v[72:87]")
    T.stamp()
    e("s_lshl_b32 s49, s41, 3")
    e("s_add_u32 s49, s49, s45")
    e("s_lshl_b32 s49, s49, 5")
    e("s_add_u32 s49, s49, s40")
    e("s_lshl_b32 s49, s49, 10")
    e(f"s_add_u32 s49, s49, {OOFF}")
    e("v_lshlrev_b32 v2, 4, v1")
    e("s_waitcnt lgkmcnt(0)")
    e("s_nop 7")
    e("v_mul_f32 v32, 0, v72")
    for r in range(73, 80): e(f"v_fma_f32 v32, v{r}, 0, v32")
    e(f"v_mov_b32 v33, {f32(2.0**60)}")
    e("v_add_f32 v32, v32, v80")
    e("v_cmp_nlt_f32 vcc, v32, v33")
    e("s_cmp_lg_u32 s52, 0")
    e(f"s_cbranch_scc1 L_{n}_store")
    e("s_cmp_eq_u64 vcc, 0")
    e(f"s_cbranch_scc1 L_{n}_store")
    e("s_mov_b32 s52, 1")
    e("s_mov_b32 s51, 0")
    e("v_mov_b32 v16, 0xff800000")
    e("v_mov_b32 v17, 0xff800000")
    e(f"L_{n}_mloop:")
    e("ds_read_b128 v[88:91], v2")
    e("s_waitcnt lgkmcnt(0)")
    e("v_mfma_f32_32x32x16_bf16 v[32:47], v[88:91], v[8:11], 0")
    e("v_add_u32 v2, 1024, v2")
    e("s_nop 7"); e("s_nop 3")
    for i in range(4):
        e(f"v_max3_f32 v16, v16, v{32+4*i}, v{33+4*i}")
        e(f"v_max3_f32 v17, v17, v{34+4*i}, v{35+4*i}")
    e("s_add_u32 s51, s51, 1")
    e("s_cmp_lt_u32 s51, 64")
    e(f"s_cbranch_scc1 L_{n}_mloop")
    e("v_max_f32 v16, v16, v17")
    e(f"s_branch L_{n}_setmax")
    e(f"L_{n}_store:")
    e("v_rcp_f32 v80, v80")
    e("s_nop 0")
    for r in range(72, 80): e(f"v_mul_f32 v{r}, v{r}, v80")
    for p in range(4): e(f"v_cvt_pk_bf16_f32 v{64+p}, v{72+2*p}, v{73+2*p}")
    e("buffer_store_dwordx4 v[64:67], v2, s[32:35], s49 offen")


def gen_attn():
    a = Asm("attn")
    e = a.e
    T = Stamper(a, 78, 1)
    T.stamp()
    e("s_cmp_ge_u32 s2, 256")
    e("s_cbranch_scc1 L_attn_exit")
    e("s_load_dwordx2 s[20:21], s[0:1], 80")
    e("v_lshrrev_b32 v1, 6, v0")
    e("s_and_b32 s54, s2, 7")
    e("v_readfirstlane_b32 s45, v1")
    e("v_and_b32 v1, 63, v0")
    e("s_lshl_b32 s40, s54, 2")
    e("s_bfe_u32 s54, s2, 0x20003")
    e("s_add_u32 s40, s40, s54")
    e("s_lshr_b32 s41, s2, 5")
    e("s_waitcnt lgkmcnt(0)")
    a.srd(32, 20, WS_USED)
    attn_body(a, T)
    T.stamp()
    T.dump(32, 45, 8, 60, 61)
    e("L_attn_exit:")
    e("s_endpgm")
    return a.kernel(vgpr=120, sgpr=96)
```

```python
from common import *

BIG = 0x7ff00000


class BCtx:
    def __init__(self, a, lds_base, sync, sc=""):
        self.a = a; self.lds = lds_base; self.sync = sync; self.sc = sc


def gemm_loop(c, tag, nact, nw, nslots, depth, acc, fr, s_act, s_w, act_stride, w_stride, s_cnt=None, extra=None, sc_act=""):
    a = c.a; e = a.e
    nf = nact + nw
    assert nslots % depth == 0
    def F(s, i): return fr + 4 * (nf * s + i)
    def issue(s):
        if s_cnt is not None:
            e(f"s_cmp_gt_i32 s{s_cnt}, 0")
            e(f"s_cselect_b32 s60, s{s_act}, s59")
            e(f"s_cselect_b32 s61, s{s_w}, s59")
            e(f"s_sub_i32 s{s_cnt}, s{s_cnt}, 1")
            sa, sw = 60, 61
        else:
            sa, sw = s_act, s_w
        for t in range(nact):
            if t == 0: so = f"s{sa}"
            else:
                e(f"s_add_u32 s62, s{sa}, {t*act_stride}"); so = "s62"
            e(f"buffer_load_dwordx4 v[{F(s,t)}:{F(s,t)+3}], v2, s[32:35], {so} offen{sc_act}")
        for i in range(nw):
            if i == 0: so = f"s{sw}"
            else:
                e(f"s_add_u32 s62, s{sw}, {i*w_stride}"); so = "s62"
            e(f"buffer_load_dwordx4 v[{F(s,nact+i)}:{F(s,nact+i)+3}], v2, s[32:35], {so} offen")
        e(f"s_add_u32 s{s_act}, s{s_act}, 1024")
        e(f"s_add_u32 s{s_w}, s{s_w}, 1024")
    def mf(s):
        for i in range(nw):
            for t in range(nact):
                d = acc + 16 * (i * nact + t)
                e(f"v_mfma_f32_32x32x16_bf16 v[{d}:{d+15}], v[{F(s,nact+i)}:{F(s,nact+i)+3}], v[{F(s,t)}:{F(s,t)+3}], v[{d}:{d+15}]")
        if extra: extra([F(s, nact + i) for i in range(nw)])
    e(f"s_mov_b32 s59, {BIG}")
    for s in range(depth): issue(s)
    niter = nslots // depth
    if niter > 1:
        e(f"s_mov_b32 s58, {niter-1}")
        e(f"L_{a.name}_{tag}_loop:")
        for s in range(depth):
            e(f"s_waitcnt vmcnt({nf*(depth-1)})")
            mf(s)
            issue(s)
        e("s_sub_u32 s58, s58, 1")
        e("s_cmp_lg_u32 s58, 0")
        e(f"s_cbranch_scc1 L_{a.name}_{tag}_loop")
    for s in range(depth):
        e(f"s_waitcnt vmcnt({nf*(depth-1-s)})")
        mf(s)


def zero(a, lo, n):
    for r in range(lo, lo + n): a.e(f"v_mov_b32 v{r}, 0")


def reduce4(c, tag, acc, tmp):
    a = c.a; e = a.e
    e("s_lshl_b32 s60, s45, 12")
    e(f"s_add_u32 s60, s60, {c.lds}")
    e("v_add_u32 v3, s60, v2")
    e("s_nop 7"); e("s_nop 3")
    for d in range(4):
        for q in range(4):
            r = acc + 16 * d + 4 * q
            e(f"ds_write_b128 v3, v[{r}:{r+3}] offset:{d*16384 + q*1024}")
    e("s_waitcnt lgkmcnt(0)")
    c.sync(tag + "a")
    e("s_lshl_b32 s60, s45, 14")
    e(f"s_add_u32 s60, s60, {c.lds}")
    e("v_add_u32 v3, s60, v2")
    for s in range(4):
        for q in range(4):
            r = acc + 16 * s + 4 * q
            e(f"ds_read_b128 v[{r}:{r+3}], v3 offset:{s*4096 + q*1024}")
        if s == 2: e("s_waitcnt lgkmcnt(4)")
    for r in range(16): e(f"v_add_f32 v{tmp+r}, v{acc+r}, v{acc+16+r}")
    e("s_waitcnt lgkmcnt(4)")
    for r in range(16): e(f"v_add_f32 v{tmp+r}, v{tmp+r}, v{acc+32+r}")
    e("s_waitcnt lgkmcnt(0)")
    for r in range(16): e(f"v_add_f32 v{tmp+r}, v{tmp+r}, v{acc+48+r}")


def load_x_tile(c, dst):
    a = c.a; e = a.e
    e("s_and_b32 s60, s45, 1")
    e("s_lshl_b32 s61, s40, 1")
    e("s_add_u32 s60, s60, s61")
    e("s_lshl_b32 s61, s60, 15")
    e("s_lshr_b32 s62, s45, 1")
    e("s_lshl_b32 s63, s41, 1")
    e("s_add_u32 s62, s62, s63")
    e("s_lshl_b32 s63, s62, 6")
    e("s_add_u32 s61, s61, s63")
    e("v_and_b32 v4, 31, v1")
    e("v_lshrrev_b32 v5, 5, v1")
    e("v_lshlrev_b32 v6, 10, v4")
    e("v_lshl_add_u32 v6, v5, 3, v6")
    for g in range(4):
        e(f"buffer_load_dwordx2 v[{dst+2*g}:{dst+2*g+1}], v6, s[24:27], s61 offen offset:{16*g}")


def phase_w2(c, keep):
    a = c.a; e = a.e
    ACC, FR, TMP, XR = 16, 80, 144, 160
    zero(a, ACC, 64)
    load_x_tile(c, XR)
    e("s_mov_b32 s64, s60"); e("s_mov_b32 s65, s62")
    e("s_lshl_b32 s61, s60, 8")
    e(f"s_add_u32 s61, s61, {STAT}")
    e("v_lshlrev_b32 v6, 3, v4")
    e(f"buffer_load_dwordx2 v[8:9], v6, s[32:35], s61 offen")
    e("s_lshl_b32 s56, s40, 6")
    e("s_lshl_b32 s60, s45, 3")
    e("s_add_u32 s56, s56, s60")
    e("s_lshl_b32 s56, s56, 10")
    e(f"s_add_u32 s56, s56, {HOFF}")
    e("s_lshl_b32 s57, s41, 6")
    e("s_add_u32 s57, s57, s60")
    e("s_lshl_b32 s57, s57, 10")
    e(f"s_add_u32 s57, s57, {W2F}")
    gemm_loop(c, "w2", 2, 2, 8, 4, ACC, FR, 56, 57, 32768, 32768)
    reduce4(c, "w2", ACC, TMP)
    e("v_mul_f32 v10, v8, v9")
    e("v_sub_f32 v10, 0, v10")
    e("s_mov_b32 s60, 0xffff0000")
    for p in range(8):
        e(f"v_lshlrev_b32 v{ACC+2*p}, 16, v{XR+p}")
        e(f"v_and_b32 v{ACC+2*p+1}, s60, v{XR+p}")
    for r in range(16):
        e(f"v_add_f32 v{TMP+r}, v{TMP+r}, v10")
    for r in range(16):
        e(f"v_fmac_f32 v{TMP+r}, v{ACC+r}, v9")
    for r in range(16):
        e(f"v_add_f32 v{keep+r}, v{ACC+r}, v{TMP+r}")
    for p in range(8):
        e(f"v_cvt_pk_bf16_f32 v{ACC+16+p}, v{TMP+2*p}, v{TMP+2*p+1}")
    e(f"v_add_f32 v10, v{TMP}, v{TMP+1}")
    e(f"v_mul_f32 v11, v{TMP}, v{TMP}")
    e(f"v_fmac_f32 v11, v{TMP+1}, v{TMP+1}")
    for r in range(2, 16):
        e(f"v_add_f32 v10, v10, v{TMP+r}")
        e(f"v_fmac_f32 v11, v{TMP+r}, v{TMP+r}")
    e("s_lshl_b32 s60, s64, 5")
    e("s_lshl_b32 s61, s65, 1")
    e("s_add_u32 s60, s60, s61")
    e("s_lshl_b32 s60, s60, 10")
    e(f"s_add_u32 s60, s60, {X1OFF}")
    e(f"buffer_store_dwordx4 v[{ACC+16}:{ACC+19}], v2, s[32:35], s60 offen{c.sc}")
    e(f"buffer_store_dwordx4 v[{ACC+20}:{ACC+23}], v2, s[32:35], s60 offen offset:1024{c.sc}")
    e("s_lshl_b32 s60, s64, 4")
    e("s_add_u32 s60, s60, s65")
    e("s_lshl_b32 s60, s60, 9")
    e(f"s_add_u32 s60, s60, {X1STAT}")
    e("v_lshlrev_b32 v6, 3, v1")
    e(f"buffer_store_dwordx2 v[10:11], v6, s[32:35], s60 offen{c.sc}")


def phase_w3(c):
    a = c.a; e = a.e
    ACC, CS, FR = 16, 112, 124
    L_RED = c.lds
    L_CSB = c.lds + 49152
    zero(a, ACC, 108)
    e("v_bfe_u32 v4, v1, 4, 1")
    e("v_xor_b32 v5, v4, v1")
    e("v_and_b32 v5, 1, v5")
    e("v_cmp_eq_u32 vcc, 0, v5")
    e("v_mov_b32 v5, 0x3f803f80")
    e("v_cmp_eq_u32 s[66:67], 1, v4")
    e("v_cndmask_b32 v8, 0, v5, vcc")
    e("v_mov_b32 v9, v8"); e("v_mov_b32 v10, v8"); e("v_mov_b32 v11, v8")
    e("s_mul_i32 s64, s41, 5")
    e("s_min_u32 s60, s41, 3")
    e("s_add_u32 s64, s64, s60")
    e("s_lshr_b32 s60, s45, 1")
    e("s_mul_i32 s61, s60, 3")
    e("s_add_u32 s64, s64, s61")
    e("s_cmp_ge_u32 s41, 3")
    e("s_cselect_b32 s65, s60, 0")
    e("s_and_b32 s60, s45, 1")
    e("s_lshl_b32 s60, s60, 4")
    e("s_lshl_b32 s56, s40, 6")
    e("s_add_u32 s56, s56, s60")
    e("s_lshl_b32 s56, s56, 10")
    e(f"s_add_u32 s56, s56, {X1OFF}")
    e("s_lshl_b32 s57, s64, 5")
    e("s_add_u32 s57, s57, s60")
    e("s_lshl_b32 s57, s57, 10")
    e(f"s_add_u32 s57, s57, {W3F}")
    def extra(wr):
        for i, r in enumerate(wr):
            e(f"v_mfma_f32_16x16x32_bf16 v[{CS+4*i}:{CS+4*i+3}], v[8:11], v[{r}:{r+3}], v[{CS+4*i}:{CS+4*i+3}]")
    gemm_loop(c, "w3", 2, 3, 16, 2, ACC, FR, 56, 57, 32768, 32768, extra=extra, sc_act=c.sc)
    e("s_lshl_b32 s60, s45, 0")
    e("s_xor_b32 s60, s45, 1")
    e("s_mul_i32 s60, s60, 12288")
    e(f"s_add_u32 s60, s60, {L_RED}")
    e("v_add_u32 v3, s60, v2")
    e("v_and_b32 v4, 31, v1")
    e("s_mul_i32 s60, s45, 384")
    e(f"s_add_u32 s60, s60, {L_CSB}")
    e("v_lshl_add_u32 v6, v4, 2, s60")
    e("s_nop 7")
    for i in range(3):
        e(f"v_cndmask_b32 v{CS+4*i}, v{CS+4*i}, v{CS+4*i+1}, s[66:67]")
        e(f"ds_write_b32 v6, v{CS+4*i} offset:{128*i}")
    e("s_bitcmp1_b32 s45, 0")
    e(f"s_cbranch_scc1 L_{a.name}_w3_k1")
    for i in range(3):
        for q in range(4):
            r = ACC + 16 * (2 * i + 1) + 4 * q
            e(f"ds_write_b128 v3, v[{r}:{r+3}] offset:{i*4096 + q*1024}")
    e(f"s_branch L_{a.name}_w3_x")
    e(f"L_{a.name}_w3_k1:")
    for i in range(3):
        for q in range(4):
            r = ACC + 16 * (2 * i) + 4 * q
            e(f"ds_write_b128 v3, v[{r}:{r+3}] offset:{i*4096 + q*1024}")
    e("s_waitcnt lgkmcnt(0)")
    for i in range(3):
        for r in range(16):
            e(f"v_mov_b32 v{ACC+32*i+r}, v{ACC+32*i+16+r}")
    e(f"L_{a.name}_w3_x:")
    e("s_and_b32 s60, s45, 1")
    e("s_lshl_b32 s61, s40, 1")
    e("s_add_u32 s63, s60, s61")
    e("s_lshl_b32 s60, s63, 13")
    e(f"s_add_u32 s60, s60, {X1STAT}")
    e("v_lshlrev_b32 v6, 3, v1")
    for j in range(16):
        if j % 8 == 0 and j: e("s_add_u32 s60, s60, 4096")
        e(f"buffer_load_dwordx2 v[{FR+2*j}:{FR+2*j+1}], v6, s[32:35], s60 offen offset:{512*(j%8)}{c.sc}")
    e("s_waitcnt lgkmcnt(0)")
    c.sync("w3a")
    e("s_mul_i32 s60, s45, 12288")
    e(f"s_add_u32 s60, s60, {L_RED}")
    e("v_add_u32 v3, s60, v2")
    for i in range(3):
        for q in range(4):
            r = ACC + 32 * i + 16 + 4 * q
            e(f"ds_read_b128 v[{r}:{r+3}], v3 offset:{i*4096 + q*1024}")
    e("s_waitcnt vmcnt(0)")
    for j in range(1, 16):
        e(f"v_add_f32 v{FR}, v{FR}, v{FR+2*j}")
        e(f"v_add_f32 v{FR+1}, v{FR+1}, v{FR+2*j+1}")
    e(f"v_mov_b32 v{FR+2}, v{FR}")
    e(f"v_mov_b32 v{FR+3}, v{FR+1}")
    e("s_nop 1")
    e(f"v_permlane32_swap_b32 v{FR}, v{FR+2}")
    e(f"v_permlane32_swap_b32 v{FR+1}, v{FR+3}")
    e(f"v_add_f32 v{FR}, v{FR}, v{FR+2}")
    e(f"v_add_f32 v{FR+1}, v{FR+1}, v{FR+3}")
    e(f"v_mul_f32 v{FR}, {f32(1/512)}, v{FR}")
    e(f"v_mul_f32 v{FR+1}, {f32(1/512)}, v{FR+1}")
    e(f"v_fma_f32 v{FR+1}, -v{FR}, v{FR}, v{FR+1}")
    e(f"v_max_f32 v{FR+1}, 0, v{FR+1}")
    e(f"v_add_f32 v{FR+1}, {f32(EPS)}, v{FR+1}")
    e(f"v_rsq_f32 v12, v{FR+1}")
    e("v_lshrrev_b32 v5, 5, v1")
    e(f"v_mul_f32 v14, v{FR}, v12")
    e("v_sub_f32 v14, 0, v14")
    e("s_and_b32 s60, s45, 2")
    e("s_mul_i32 s60, s60, 384")
    e(f"s_add_u32 s60, s60, {L_CSB}")
    e("v_lshl_add_u32 v6, v5, 4, s60")
    e(f"s_mov_b32 s60, {f32(GELU_K2)}")
    e(f"s_mov_b32 s61, {f32(GELU_K2)}")
    e(f"v_mov_b32 v8, {f32(GELU_K1)}")
    e("s_mul_i32 s62, s63, 86")
    e("s_lshl_b32 s63, s64, 1")
    e("s_add_u32 s62, s62, s63")
    e("s_lshl_b32 s62, s62, 10")
    e(f"s_add_u32 s62, s62, {GOFF}")
    for i in range(3):
        A0 = ACC + 32 * i; B0 = A0 + 16
        if i == 2:
            e("s_cmp_eq_u32 s65, 1")
            e(f"s_cbranch_scc1 L_{a.name}_w3_done")
        for g in range(4):
            e(f"ds_read_b128 v[{FR+4*g}:{FR+4*g+3}], v6 offset:{128*i + 32*g}")
            e(f"ds_read_b128 v[{FR+16+4*g}:{FR+16+4*g+3}], v6 offset:{384 + 128*i + 32*g}")
        e("s_waitcnt lgkmcnt(8)" if i == 0 else "s_nop 0")
        for r in range(16): e(f"v_add_f32 v{A0+r}, v{A0+r}, v{B0+r}")
        e("s_waitcnt lgkmcnt(0)")
        for r in range(16): e(f"v_add_f32 v{FR+r}, v{FR+r}, v{FR+16+r}")
        for r in range(16): e(f"v_mul_f32 v{A0+r}, v12, v{A0+r}")
        for r in range(16): e(f"v_fmac_f32 v{A0+r}, v14, v{FR+r}")
        emit_gelu_block(a, list(range(A0, A0 + 16)), list(range(B0, B0 + 16)), 8, 60)
        for p in range(8): e(f"v_cvt_pk_bf16_f32 v{B0+p}, v{A0+2*p}, v{A0+2*p+1}")
        e(f"buffer_store_dwordx4 v[{B0}:{B0+3}], v2, s[32:35], s62 offen offset:{(2048*i) % 4096}{c.sc}")
        e(f"buffer_store_dwordx4 v[{B0+4}:{B0+7}], v2, s[32:35], s62 offen offset:{(2048*i) % 4096 + 1024}{c.sc}")
        if i == 1: e("s_add_u32 s62, s62, 4096")
    e(f"L_{a.name}_w3_done:")


def phase_w4(c, keep):
    a = c.a; e = a.e
    ACC, FR, TMP = 16, 80, 80
    zero(a, ACC, 64)
    e("s_mul_i32 s60, s45, 22")
    e("s_sub_u32 s55, 86, s60")
    e("s_min_u32 s55, s55, 22")
    e("s_mul_i32 s56, s40, 172")
    e("s_add_u32 s56, s56, s60")
    e("s_lshl_b32 s56, s56, 10")
    e(f"s_add_u32 s56, s56, {GOFF}")
    e("s_mul_i32 s57, s41, 172")
    e("s_add_u32 s57, s57, s60")
    e("s_lshl_b32 s57, s57, 10")
    e(f"s_add_u32 s57, s57, {W4F}")
    gemm_loop(c, "w4", 2, 2, 24, 4, ACC, FR, 56, 57, 86 * 1024, 86 * 1024, s_cnt=55, sc_act=c.sc)
    reduce4(c, "w4", ACC, TMP)
    for r in range(16): e(f"v_add_f32 v{TMP+r}, v{TMP+r}, v{keep+r}")
    e("s_and_b32 s60, s45, 1")
    e("s_lshl_b32 s61, s40, 1")
    e("s_add_u32 s60, s60, s61")
    e("s_lshl_b32 s60, s60, 4")
    e("s_lshr_b32 s62, s45, 1")
    e("s_lshl_b32 s63, s41, 1")
    e("s_add_u32 s60, s60, s62")
    e("s_add_u32 s60, s60, s63")
    e("s_lshl_b32 s60, s60, 12")
    e(f"s_add_u32 s60, s60, {ROFF}")
    for q in range(4):
        e(f"buffer_store_dwordx4 v[{TMP+4*q}:{TMP+4*q+3}], v2, s[32:35], s60 offen offset:{1024*q}")


def std_prologue(a, T, need_x=True, need_out=False):
    e = a.e
    T.stamp()
    e("s_cmp_ge_u32 s2, 256")
    e(f"s_cbranch_scc1 L_{a.name}_exit")
    e("s_load_dwordx2 s[4:5], s[0:1], 0")
    e("s_load_dwordx2 s[6:7], s[0:1], 64")
    e("s_load_dwordx2 s[20:21], s[0:1], 80")
    e("v_lshrrev_b32 v1, 6, v0")
    e("s_and_b32 s54, s2, 7")
    e("v_readfirstlane_b32 s45, v1")
    e("v_and_b32 v1, 63, v0")
    e("v_lshlrev_b32 v2, 4, v1")
    e("s_lshl_b32 s40, s54, 2")
    e("s_bfe_u32 s54, s2, 0x20003")
    e("s_add_u32 s40, s40, s54")
    e("s_lshr_b32 s41, s2, 5")
    e("s_waitcnt lgkmcnt(0)")
    a.srd(32, 20, WS_USED)
    a.srd(24, 4, 2048 * 1024)
    a.srd(28, 6, 2048 * 1024)


def std_end(a, T):
    T.stamp()
    T.dump(32, 45, 4, 4, 5)
    a.e(f"L_{a.name}_exit:")
    a.e("s_endpgm")


B_LDS = 65536


def keep_store(a, keep, store):
    e = a.e
    e("s_lshl_b32 s60, s2, 2")
    e("s_add_u32 s60, s60, s45")
    e("s_lshl_b32 s60, s60, 12")
    e(f"s_add_u32 s60, s60, {ROFF}")
    for q in range(4):
        if store: e(f"buffer_store_dwordx4 v[{keep+4*q}:{keep+4*q+3}], v2, s[32:35], s60 offen offset:{1024*q}")
        else: e(f"buffer_load_dwordx4 v[{keep+4*q}:{keep+4*q+3}], v2, s[32:35], s60 offen offset:{1024*q}")


def gen_w2():
    a = Asm("w2"); T = Stamper(a, 78, 2)
    std_prologue(a, T)
    c = BCtx(a, 0, lambda tag: a.e("s_barrier"))
    phase_w2(c, 168)
    e = a.e
    e("s_lshl_b32 s60, s2, 2")
    e("s_add_u32 s60, s60, s45")
    e("s_lshl_b32 s60, s60, 12")
    e(f"s_add_u32 s60, s60, {KEEPOFF}")
    for q in range(4):
        e(f"buffer_store_dwordx4 v[{168+4*q}:{171+4*q}], v2, s[32:35], s60 offen offset:{1024*q}")
    std_end(a, T)
    return a.kernel(vgpr=184, sgpr=96)


def gen_w3():
    a = Asm("w3"); T = Stamper(a, 78, 3)
    std_prologue(a, T)
    c = BCtx(a, 0, lambda tag: a.e("s_barrier"))
    phase_w3(c)
    std_end(a, T)
    return a.kernel(vgpr=168, sgpr=96)


def gen_w4():
    a = Asm("w4"); T = Stamper(a, 78, 4)
    std_prologue(a, T)
    c = BCtx(a, 0, lambda tag: a.e("s_barrier"))
    e = a.e
    e("s_lshl_b32 s60, s2, 2")
    e("s_add_u32 s60, s60, s45")
    e("s_lshl_b32 s60, s60, 12")
    e(f"s_add_u32 s60, s60, {KEEPOFF}")
    for q in range(4):
        e(f"buffer_load_dwordx4 v[{144+4*q}:{147+4*q}], v2, s[32:35], s60 offen offset:{1024*q}")
    phase_w4(c, 144)
    std_end(a, T)
    return a.kernel(vgpr=168, sgpr=96)


def gen_fin():
    a = Asm("fin"); T = Stamper(a, 78, 5)
    std_prologue(a, T)
    c = BCtx(a, 0, lambda tag: a.e("s_barrier"))
    e = a.e
    ACC, FR, TMP, RR = 16, 80, 80, 208
    zero(a, ACC, 64)
    e("s_lshl_b32 s56, s40, 6")
    e("s_lshl_b32 s60, s45, 3")
    e("s_add_u32 s56, s56, s60")
    e("s_lshl_b32 s56, s56, 10")
    e(f"s_add_u32 s56, s56, {OOFF}")
    e("s_lshl_b32 s57, s41, 6")
    e("s_add_u32 s57, s57, s60")
    e("s_lshl_b32 s57, s57, 10")
    e(f"s_add_u32 s57, s57, {WOF}")
    e("s_and_b32 s60, s45, 1")
    e("s_lshl_b32 s61, s40, 1")
    e("s_add_u32 s64, s60, s61")
    e("s_lshr_b32 s62, s45, 1")
    e("s_lshl_b32 s63, s41, 1")
    e("s_add_u32 s65, s62, s63")
    e("s_lshl_b32 s60, s64, 4")
    e("s_add_u32 s60, s60, s65")
    e("s_lshl_b32 s60, s60, 12")
    e(f"s_add_u32 s60, s60, {ROFF}")
    for q in range(4):
        e(f"buffer_load_dwordx4 v[{RR+4*q}:{RR+4*q+3}], v2, s[32:35], s60 offen offset:{1024*q}")
    gemm_loop(c, "fin", 2, 2, 8, 8, ACC, FR, 56, 57, 32768, 32768)
    reduce4(c, "fin", ACC, TMP)
    for r in range(16): e(f"v_add_f32 v{TMP+r}, v{TMP+r}, v{RR+r}")
    for p in range(8): e(f"v_cvt_pk_bf16_f32 v{ACC+p}, v{TMP+2*p}, v{TMP+2*p+1}")
    e("v_and_b32 v4, 31, v1")
    e("v_lshrrev_b32 v5, 5, v1")
    e("v_lshlrev_b32 v6, 10, v4")
    e("v_lshl_add_u32 v6, v5, 4, v6")
    e(f"v_permlane32_swap_b32 v{ACC}, v{ACC+2}")
    e(f"v_permlane32_swap_b32 v{ACC+1}, v{ACC+3}")
    e(f"v_permlane32_swap_b32 v{ACC+4}, v{ACC+6}")
    e(f"v_permlane32_swap_b32 v{ACC+5}, v{ACC+7}")
    e("s_lshl_b32 s60, s64, 15")
    e("s_lshl_b32 s61, s65, 6")
    e("s_add_u32 s60, s60, s61")
    e(f"buffer_store_dwordx4 v[{ACC}:{ACC+3}], v6, s[28:31], s60 offen")
    e(f"buffer_store_dwordx4 v[{ACC+4}:{ACC+7}], v6, s[28:31], s60 offen offset:32")
    std_end(a, T)
    return a.kernel(vgpr=224, sgpr=96)
```

```python
from k1 import gen_k1, K1_LDS
from attn import gen_attn, ATTN_LDS
from bchain import *
LAUNCHES = [
    ("k1", gen_k1, 256, 768, K1_LDS),
    ("attn", gen_attn, 256, 512, ATTN_LDS),
    ("w2", gen_w2, 256, 256, B_LDS),
    ("w3", gen_w3, 256, 256, B_LDS),
    ("w4", gen_w4, 256, 256, B_LDS),
    ("fin", gen_fin, 256, 256, B_LDS),
]
```

```python
import struct

def f32(x):
    return "0x%08x" % struct.unpack("<I", struct.pack("<f", x))[0]

MB = 1 << 20
QOFF   = 0 * MB
KOFF   = 2 * MB
VOFF   = 4 * MB
HOFF   = 6 * MB
OOFF   = 8 * MB
X1OFF  = 10 * MB
GOFF   = 12 * MB
W2F    = 18 * MB
WOF    = 18 * MB + 512 * 1024
W3F    = 19 * MB
W4F    = 20 * MB + 512 * 1024
STAT   = 22 * MB
X1STAT = 22 * MB + 512 * 1024
ROFF   = 23 * MB
FLAGS  = 28 * MB
TSOFF  = 30 * MB
KEEPOFF = 36 * MB
WS_USED = 40 * MB
import os
STAMP = os.environ.get('STAMP', '0') == '1'

EPS = 1e-5
LOG2E = 1.4426950408889634
QSCALE = 0.25 * LOG2E
GELU_K1 = -2.0 * LOG2E * 0.7978845608028654
GELU_K2 = GELU_K1 * 0.044715


class Asm:
    def __init__(self, name):
        self.name = name
        self.L = []
        self.nlab = 0

    def e(self, s):
        for line in s.split("\n"):
            line = line.strip()
            if line:
                if line.endswith(":"):
                    self.L.append(line)
                else:
                    self.L.append("    " + line)

    def c(self, s):
        self.L.append("    ; " + s)

    def lab(self, base):
        self.nlab += 1
        return f"L_{self.name}_{base}_{self.nlab}"

    def srd(self, d, base, nbytes):
        self.e(f"s_mov_b32 s{d}, s{base}")
        self.e(f"s_and_b32 s{d+1}, s{base+1}, 0xffff")
        self.e(f"s_mov_b32 s{d+2}, {nbytes}")
        self.e(f"s_mov_b32 s{d+3}, 0x00020000")

    def text(self):
        return "\n".join(self.L)

    def kernel(self, vgpr, sgpr=102, accum=None):
        kn = self.name + "_kernel"
        acc = accum if accum is not None else (vgpr + 3) // 4 * 4
        head = f""".globl {kn}
.p2align 8
.type {kn},@function
{kn}:
"""
        desc = f""".amdhsa_kernel {kn}
  .amdhsa_next_free_vgpr {vgpr}
  .amdhsa_next_free_sgpr {sgpr}
  .amdhsa_accum_offset {acc}
  .amdhsa_group_segment_fixed_size 0
  .amdhsa_kernarg_size 88
  .amdhsa_user_sgpr_count 2
  .amdhsa_user_sgpr_kernarg_segment_ptr 1
  .amdhsa_system_sgpr_workgroup_id_x 1
.end_amdhsa_kernel
"""
        return head + self.text() + "\n", desc


def vr(a, n=1):
    return f"v{a}" if n == 1 else f"v[{a}:{a+n-1}]"


def sr(a, n=1):
    return f"s{a}" if n == 1 else f"s[{a}:{a+n-1}]"


def emit_gelu(a, x, t0, t1, sK1, sK2):
    a.e(f"v_mul_f32 v{t0}, v{x}, v{x}")
    a.e(f"v_mov_b32 v{t1}, s{sK1}")
    a.e(f"v_fma_f32 v{t0}, v{t0}, s{sK2}, v{t1}")
    a.e(f"v_mul_f32 v{t0}, v{t0}, v{x}")
    a.e(f"v_exp_f32 v{t0}, v{t0}")
    a.e("s_nop 0")
    a.e(f"v_add_f32 v{t0}, 1.0, v{t0}")
    a.e(f"v_rcp_f32 v{t0}, v{t0}")
    a.e("s_nop 0")
    a.e(f"v_mul_f32 v{x}, v{x}, v{t0}")


def emit_gelu_block(a, xs, ts, vK1, sK2):
    assert len(ts) >= len(xs) and len(xs) >= 2
    for x, t in zip(xs, ts): a.e(f"v_mul_f32 v{t}, v{x}, v{x}")
    for x, t in zip(xs, ts): a.e(f"v_fma_f32 v{t}, v{t}, s{sK2}, v{vK1}")
    for x, t in zip(xs, ts): a.e(f"v_mul_f32 v{t}, v{t}, v{x}")
    for x, t in zip(xs, ts): a.e(f"v_exp_f32 v{t}, v{t}")
    for x, t in zip(xs, ts): a.e(f"v_add_f32 v{t}, 1.0, v{t}")
    for x, t in zip(xs, ts): a.e(f"v_rcp_f32 v{t}, v{t}")
    for x, t in zip(xs, ts): a.e(f"v_mul_f32 v{x}, v{x}, v{t}")


class Stamper:
    def __init__(self, a, base, kidx):
        self.a = a; self.base = base; self.n = 0; self.kidx = kidx
    def stamp(self):
        if not STAMP: return
        b = self.base + 2 * self.n
        self.a.e(f"s_memtime s[{b}:{b+1}]")
        self.n += 1
    def dump(self, srd, swave, nwaves, vt0, vt1):
        if not STAMP: return
        a = self.a
        a.e("s_waitcnt lgkmcnt(0)")
        a.e(f"s_add_u32 s3, s2, {self.kidx*512}")
        a.e("s_lshl_b32 s3, s3, 4")
        a.e(f"s_add_u32 s3, s3, s{swave}")
        a.e("s_lshl_b32 s3, s3, 6")
        a.e(f"s_add_u32 s3, s3, {TSOFF}")
        a.e(f"v_mov_b32 v{vt1}, 0")
        a.e("s_mov_b64 exec, 1")
        for i in range(self.n):
            a.e(f"v_mov_b32 v{vt0}, s{self.base+2*i}")
            a.e(f"buffer_store_dword v{vt0}, v{vt1}, s[{srd}:{srd+3}], s3 offen offset:{4*i}")
            a.e("s_nop 1")


def emit_gelu_pk(a, x, n, t, vK1, sK2):
    P = lambda r: f"v[{r}:{r+1}]"
    for i in range(0, n, 2): a.e(f"v_pk_mul_f32 {P(t+i)}, {P(x+i)}, {P(x+i)}")
    for i in range(0, n, 2): a.e(f"v_pk_fma_f32 {P(t+i)}, {P(t+i)}, s[{sK2}:{sK2+1}], {P(vK1)} op_sel_hi:[1,1,0]")
    for i in range(0, n, 2): a.e(f"v_pk_mul_f32 {P(t+i)}, {P(t+i)}, {P(x+i)}")
    for i in range(n): a.e(f"v_exp_f32 v{t+i}, v{t+i}")
    for i in range(0, n, 2): a.e(f"v_pk_add_f32 {P(t+i)}, {P(t+i)}, 1.0 op_sel_hi:[1,0]")
    for i in range(n): a.e(f"v_rcp_f32 v{t+i}, v{t+i}")
    for i in range(0, n, 2): a.e(f"v_pk_mul_f32 {P(x+i)}, {P(x+i)}, {P(t+i)}")
```

```python
from common import *

L_CS = 131072
L_ST = L_CS + 512
L_PR = L_ST + 2048
PR_PITCH = 1088
K1_LDS = L_PR + 16 * PR_PITCH


def gen_k1():
    a = Asm("k1")
    e = a.e
    L_exit = "L_k1_exit"
    T = Stamper(a, 78, 0)
    T.stamp()
    e("s_cmp_ge_u32 s2, 256")
    e(f"s_cbranch_scc1 {L_exit}")
    e("s_load_dwordx4 s[4:7], s[0:1], 0")
    e("s_load_dwordx4 s[8:11], s[0:1], 16")
    e("s_load_dwordx4 s[12:15], s[0:1], 32")
    e("s_load_dwordx4 s[16:19], s[0:1], 48")
    e("s_load_dwordx2 s[20:21], s[0:1], 80")
    e("v_lshrrev_b32 v1, 6, v0")
    e("s_and_b32 s54, s2, 7")
    e("v_readfirstlane_b32 s42, v1")
    e("v_and_b32 v1, 63, v0")
    e("s_lshr_b32 s55, s2, 3")
    e("s_lshr_b32 s40, s54, 1")
    e("s_lshl_b32 s40, s40, 2")
    e("s_and_b32 s56, s55, 3")
    e("s_add_u32 s40, s40, s56")
    e("s_and_b32 s41, s54, 1")
    e("s_lshl_b32 s41, s41, 3")
    e("s_lshr_b32 s56, s55, 2")
    e("s_add_u32 s41, s41, s56")
    e("s_and_b32 s45, s42, 3")
    e("s_cmp_lt_u32 s42, 4")
    e("s_cbranch_scc1 L_k1_compute")
    e("s_cmp_ge_u32 s42, 8")
    e("s_cbranch_scc1 L_k1_stat")

    def prep_decode(tag):
        Lp = {k: f"L_k1_{tag}{k}" for k in ("w2", "wo", "w4", "w3", "go")}
        e("s_mov_b32 s62, 0"); e("s_mov_b32 s61, 32"); e("s_mov_b32 s63, 1024"); e("s_mov_b32 s59, 16"); e("s_mov_b32 s73, 0")
        e(f"s_mov_b32 s38, {512*1024}")
        e("s_mov_b32 s56, s2")
        e("s_cmp_lt_u32 s2, 32");  e(f"s_cbranch_scc1 {Lp['w2']}")
        e("s_cmp_lt_u32 s2, 64");  e(f"s_cbranch_scc1 {Lp['wo']}")
        e("s_cmp_lt_u32 s2, 150"); e(f"s_cbranch_scc1 {Lp['w4']}")
        e("s_cmp_lt_u32 s2, 246"); e(f"s_cbranch_scc1 {Lp['w3']}")
        e("s_mov_b32 s38, 0"); e("s_mov_b32 s59, 0"); e("s_mov_b32 s56, 0")
        e(f"{Lp['w2']}:")
        e("s_mov_b32 s36, s14"); e("s_mov_b32 s37, s15"); e(f"s_mov_b32 s60, {W2F}")
        e(f"s_branch {Lp['go']}")
        e(f"{Lp['wo']}:")
        e("s_mov_b32 s36, s8"); e("s_mov_b32 s37, s9"); e(f"s_mov_b32 s60, {WOF}")
        e("s_sub_u32 s56, s2, 32"); e("s_mov_b32 s73, 1")
        e(f"s_branch {Lp['go']}")
        e(f"{Lp['w4']}:")
        e("s_mov_b32 s36, s18"); e("s_mov_b32 s37, s19"); e(f"s_mov_b32 s38, {1376*1024}")
        e("s_sub_u32 s56, s2, 64"); e(f"s_mov_b32 s60, {W4F}"); e("s_mov_b32 s61, 86")
        e(f"s_branch {Lp['go']}")
        e(f"{Lp['w3']}:")
        e("s_mov_b32 s36, s16"); e("s_mov_b32 s37, s17"); e(f"s_mov_b32 s38, {512*2752}")
        e("s_sub_u32 s56, s2, 150")
        e("s_lshr_b32 s62, s56, 5")
        e("s_and_b32 s56, s56, 31")
        e(f"s_mov_b32 s60, {W3F}"); e("s_mov_b32 s63, 2752")
        e("s_cmp_eq_u32 s62, 2")
        e("s_cselect_b32 s59, 11, 16")
        e(f"{Lp['go']}:")

    e("s_lshl_b32 s54, s40, 7")
    e("s_lshl_b32 s55, s45, 5")
    e("s_add_u32 s54, s54, s55")
    e("v_lshrrev_b32 v56, 3, v1")
    e("v_add_u32 v56, s54, v56")
    e("v_lshlrev_b32 v56, 10, v56")
    e("v_lshrrev_b32 v57, 4, v1")
    e("v_and_b32 v58, 7, v1")
    e("v_xor_b32 v59, v58, v57")
    e("v_xor_b32 v60, 4, v59")
    e("v_lshl_add_u32 v2, v59, 4, v56")
    e("v_lshl_add_u32 v3, v60, 4, v56")
    e(f"v_add_u32 v4, {2*8192 - 2048}, v2")
    e(f"v_add_u32 v5, {3*8192 - 3072}, v3")
    e(f"v_add_u32 v3, {8192 - 1024}, v3")
    e("s_lshr_b32 s46, s45, 1")
    e("s_lshl_b32 s44, s41, 1")
    e("s_sub_u32 s44, s44, 8")
    e("s_add_u32 s44, s44, s46")
    e("s_cmp_lt_u32 s41, 8")
    e("s_cselect_b32 s44, s41, s44")
    e("s_cselect_b32 s54, s46, 0")
    e(f"s_mov_b32 s30, {512*3072}")
    e("s_mov_b32 s43, 3072")
    e("s_cmp_eq_u32 s54, 1")
    e(f"s_cselect_b32 s30, {512*1024}, s30")
    e("s_cselect_b32 s43, 1024, s43")
    e("s_waitcnt lgkmcnt(0)")
    e("s_cselect_b32 s28, s12, s6")
    e("s_cselect_b32 s29, s13, s7")
    e("s_and_b32 s29, s29, 0xffff")
    e("s_mov_b32 s31, 0x00020000")
    a.srd(24, 4, 2048 * 1024)
    e("s_lshl_b32 s44, s44, 7")
    e("s_lshl_b32 s53, s43, 6")
    e("v_lshrrev_b32 v58, 3, v1")
    e("v_mul_lo_u32 v58, v58, s43")
    e("v_and_b32 v59, 7, v1")
    e("v_bfe_u32 v60, v1, 4, 1")
    e("v_lshlrev_b32 v60, 2, v60")
    e("v_xor_b32 v59, v59, v60")
    e("v_lshl_add_u32 v58, v59, 4, v58")
    e("v_add_u32 v6, s44, v58")
    e("s_and_b32 s54, s45, 1")
    e("s_lshl_b32 s54, s54, 5")
    e("s_mul_i32 s48, s54, s43")
    e("s_lshl_b32 s54, s43, 3")
    e("s_sub_u32 s54, s54, 1024")
    e("s_add_u32 s49, s48, s54")
    e("s_add_u32 s50, s49, s54")
    e("s_add_u32 s51, s50, s54")
    e("s_mov_b32 s52, 0")
    e("s_lshl_b32 s47, s45, 12")

    def issue_stage(st):
        b = st % 4
        if os.environ.get("K1_NOLOAD") == "1": return
        e(f"s_add_u32 m0, s47, {b*16384}")
        e("s_nop 0")
        for u in range(4):
            e(f"buffer_load_dwordx4 v{2+u}, s[24:27], s52 offen offset:{1024*u} lds")
        e(f"s_add_u32 m0, s47, {65536 + b*16384}")
        e("s_add_u32 s52, s52, 128")
        for u in range(4):
            e(f"buffer_load_dwordx4 v6, s[28:31], s{48+u} offen offset:{1024*u} lds")
        for u in range(4):
            e(f"s_add_u32 s{48+u}, s{48+u}, s53")

    def prep_loads():
        prep_decode("l")
        e("s_and_b32 s37, s37, 0xffff")
        e("s_mov_b32 s39, 0x00020000")
        e("s_lshl_b32 s54, s56, 4")
        e("s_lshl_b32 s55, s45, 2")
        e("s_add_u32 s54, s54, s55")
        e("s_mul_i32 s54, s54, s63")
        e("s_lshl_b32 s55, s62, 10")
        e("s_add_u32 s54, s54, s55")
        e(f"s_mul_i32 s55, s45, {4*PR_PITCH}")
        e(f"s_add_u32 s55, s55, {L_PR}")
        e("v_lshlrev_b32 v56, 4, v1")
        for u in range(4):
            e(f"s_add_u32 m0, s55, {u*PR_PITCH}")
            e("s_nop 0")
            e(f"buffer_load_dwordx4 v56, s[36:39], s54 offen lds")
            e("s_add_u32 s54, s54, s63")

    def wb(n):
        e(f"s_waitcnt vmcnt({n})")
        e("s_barrier")

    issue_stage(0); issue_stage(1)
    T.stamp()
    wb(8)
    T.stamp()
    issue_stage(2); issue_stage(3)
    wb(16)
    issue_stage(4); prep_loads()
    wb(20)
    issue_stage(5)
    wb(20)
    issue_stage(6)
    wb(20)
    T.stamp()
    issue_stage(7)
    wb(16)
    wb(8)
    wb(0)
    T.stamp()
    if STAMP:
        a.srd(32, 20, WS_USED)
        T.dump(32, 42, 8, 60, 61)
    e("s_endpgm")

    e("L_k1_stat:")
    e("v_and_b32 v56, 31, v1")
    e("v_lshrrev_b32 v57, 5, v1")
    e("s_lshl_b32 s54, s45, 5")
    e("v_add_u32 v56, s54, v56")
    e("v_lshlrev_b32 v56, 7, v56")
    e("v_bfe_u32 v58, v1, 1, 3")
    e("v_xor_b32 v58, v57, v58")
    for ks in range(4):
        e(f"v_xor_b32 v59, {2*ks}, v58")
        e(f"v_lshl_add_u32 v{8+ks}, v59, 4, v56")
    for r in range(12, 16): e(f"v_mov_b32 v{r}, 0")
    e("s_mov_b32 s72, 0xffff0000")
    e("s_mov_b32 s71, 0xffff")
    e("s_waitcnt lgkmcnt(0)")
    a.srd(32, 20, WS_USED)
    prep_decode("s")
    e("s_add_u32 s54, s73, 2")
    e("v_lshlrev_b32 v56, s54, v57")
    e("v_bfe_u32 v58, v1, 2, 2")
    e("v_add_u32 v56, v56, v58")
    e(f"v_mul_u32_u24 v56, {PR_PITCH}, v56")
    e("v_and_b32 v58, 3, v1")
    e("v_lshl_add_u32 v56, v58, 3, v56")
    e("v_bfe_u32 v58, v1, 4, 1")
    e("v_lshl_add_u32 v56, v58, 5, v56")
    e("s_lshl_b32 s54, s45, 8")
    e(f"s_add_u32 s54, s54, {L_PR}")
    e("v_add_u32 v2, s54, v56")
    e(f"s_mov_b32 s54, {8*PR_PITCH}")
    e("s_cmp_eq_u32 s73, 1")
    e(f"s_cselect_b32 s54, {4*PR_PITCH}, s54")
    e("v_add_u32 v3, s54, v2")
    e("v_lshlrev_b32 v4, 4, v1")
    e("s_lshl_b32 s54, s62, 4")
    e("s_lshl_b32 s55, s45, 2")
    e("s_add_u32 s54, s54, s55")
    e("s_mul_i32 s54, s54, s61")
    e("s_add_u32 s54, s54, s56")
    e("s_lshl_b32 s54, s54, 10")
    e("s_add_u32 s60, s60, s54")
    e("s_lshl_b32 s61, s61, 10")
    e("s_sub_i32 s59, s59, s55")
    e("s_mov_b32 s70, 0")
    for r in range(40, 56): e(f"v_mov_b32 v{r}, 0")
    def process(b):
        if os.environ.get("K1_NOSTAT") == "1": return
        for d in range(16):
            t = 32 + 2 * (d & 3)
            e(f"v_lshlrev_b32 v{t}, 16, v{b+d}")
            e(f"v_and_b32 v{t+1}, s72, v{b+d}")
            if d >= 1:
                t2 = 32 + 2 * ((d - 1) & 3)
                e(f"v_fmac_f32 v{12 + 2*(d&1)}, v{t2}, v{t2}")
                e(f"v_fmac_f32 v{13 + 2*(d&1)}, v{t2+1}, v{t2+1}")
        e("v_fmac_f32 v12, v38, v38")
        e("v_fmac_f32 v13, v39, v39")
    e("L_k1_sloop:")
    for half, (cur, prev) in enumerate(((16, 40), (40, 16))):
        e("s_barrier")
        for ks in range(4):
            e(f"ds_read_b128 v[{cur+4*ks}:{cur+3+4*ks}], v{8+ks} offset:{16384*half}")
        if half == 1:
            e("s_cmp_lg_u32 s70, 2")
            e("s_cbranch_scc1 L_k1_snoprep")
            for i in range(4):
                e(f"ds_read_b64_tr_b16 v[{56+4*i}:{57+4*i}], v2 offset:{64*i}")
                e(f"ds_read_b64_tr_b16 v[{58+4*i}:{59+4*i}], v3 offset:{64*i}")
            e("s_waitcnt lgkmcnt(0)")
            for i in range(4):
                e(f"s_cmp_le_i32 s59, {i}")
                e("s_cbranch_scc1 L_k1_snoprep")
                e(f"buffer_store_dwordx4 v[{56+4*i}:{59+4*i}], v4, s[32:35], s60 offen")
                e("s_add_u32 s60, s60, s61")
            e("L_k1_snoprep:")
            for r in range(8, 12):
                e(f"v_xor_b32 v{r}, 0x8000, v{r}")
        process(prev)
        e("s_waitcnt lgkmcnt(0)")
    e("s_add_u32 s70, s70, 1")
    e("s_cmp_lt_u32 s70, 4")
    e("s_cbranch_scc1 L_k1_sloop")
    process(40)
    e("v_add_f32 v12, v12, v13")
    e("v_add_f32 v14, v14, v15")
    e("s_lshl_b32 s54, s45, 9")
    e(f"s_add_u32 s54, s54, {L_ST}")
    e("v_lshl_add_u32 v56, v1, 2, s54")
    e("v_add_f32 v12, v12, v14")
    e("ds_write_b32 v56, v12 offset:256")
    e("s_waitcnt lgkmcnt(0)")
    e("s_barrier")
    e("s_endpgm")

    e("L_k1_compute:")
    e("v_and_b32 v8, 31, v1")
    e("v_lshrrev_b32 v9, 5, v1")
    e("s_lshl_b32 s54, s45, 5")
    e("v_add_u32 v10, s54, v8")
    e("v_lshlrev_b32 v10, 7, v10")
    e("v_bfe_u32 v11, v1, 1, 3")
    e("v_xor_b32 v11, v9, v11")
    for ks in range(4):
        e(f"v_xor_b32 v12, {2*ks}, v11")
        e(f"v_lshl_add_u32 v{2+ks}, v12, 4, v10")
    e("v_bfe_u32 v10, v1, 2, 2")
    e("v_lshl_add_u32 v10, v9, 3, v10")
    e("v_lshlrev_b32 v10, 7, v10")
    e("v_and_b32 v11, 3, v1")
    e("v_lshl_add_u32 v10, v11, 3, v10")
    e("v_bfe_u32 v11, v1, 3, 1")
    e("v_lshl_add_u32 v10, v11, 6, v10")
    e("v_bfe_u32 v11, v1, 4, 1")
    e("v_lshl_add_u32 v10, v11, 5, v10")
    e("v_add_u32 v6, 65536, v10")
    e("v_xor_b32 v16, 64, v6")
    e("v_xor_b32 v10, v11, v1")
    e("v_and_b32 v10, 1, v10")
    e("v_cmp_eq_u32 vcc, 0, v10")
    e("v_mov_b32 v10, 0x3f803f80")
    e("v_cmp_eq_u32 s[76:77], 1, v11")
    e("v_cndmask_b32 v12, 0, v10, vcc")
    e("v_mov_b32 v13, v12")
    e("v_mov_b32 v14, v12")
    e("v_mov_b32 v15, v12")
    e("s_lshr_b32 s54, s45, 1")
    e("s_lshl_b32 s54, s54, 13")
    e("s_and_b32 s55, s45, 1")
    e("s_lshl_b32 s55, s55, 6")
    e("v_xor_b32 v7, s55, v6")
    e("v_add_u32 v7, s54, v7")
    e("s_mov_b32 s73, 0xffff")
    e("s_mov_b32 s74, 0x10000")
    e("s_waitcnt lgkmcnt(0)")
    a.srd(32, 20, WS_USED)

    def X(s): return 32 + 24 * s
    def W(s, j): return 36 + 24 * s + 4 * j
    def ACC(j): return 96 + 16 * j

    def reads(ks, s):
        R = [f"ds_read_b128 v[{X(s)}:{X(s)+3}], v{2+ks}"]
        for j in range(4):
            for t in range(2):
                R.append(f"ds_read_b64_tr_b16 v[{W(s,j)+2*t}:{W(s,j)+2*t+1}], v{16 if j&1 else 6} offset:{(j>>1)*8192 + (16*ks+4*t)*128}")
        for t in range(2):
            R.append(f"ds_read_b64_tr_b16 v[{W(s,4)+2*t}:{W(s,4)+2*t+1}], v7 offset:{(16*ks+4*t)*128}")
        return R

    def updx(r):
        return [f"v_add_u32 v{r}, 16384, v{r}", f"v_and_b32 v{r}, s73, v{r}"]
    def updw(r):
        return [f"v_add_u32 v{r}, 16384, v{r}", f"v_and_b32 v{r}, s73, v{r}", f"v_or_b32 v{r}, s74, v{r}"]

    for r in list(range(24, 32)) + list(range(96, 160)):
        e(f"v_mov_b32 v{r}, 0")
    T.n = 1
    T.stamp()
    e("s_barrier")
    T.stamp()
    for r in reads(0, 0): e(r)
    for v in updx(2): e(v)
    e("s_mov_b32 s70, 8")
    e("L_k1_loop:")
    s = 0
    for ks in range(4):
        R = reads((ks + 1) % 4, 1 - s)
        M = [f"v_mfma_f32_32x32x16_bf16 v[{ACC(j)}:{ACC(j)+15}], v[{W(s,j)}:{W(s,j)+3}], v[{X(s)}:{X(s)+3}], v[{ACC(j)}:{ACC(j)+15}]" for j in range(4)]
        M.append(f"v_mfma_f32_16x16x32_bf16 v[28:31], v[12:15], v[{X(s)}:{X(s)+3}], v[28:31]")
        M.append(f"v_mfma_f32_16x16x32_bf16 v[24:27], v[12:15], v[{W(s,4)}:{W(s,4)+3}], v[24:27]")
        if os.environ.get("K1_NOMFMA") == "1": M[:4] = ["s_nop 0"]*4
        if os.environ.get("K1_NOREAD") == "1": R = [""]*11
        if os.environ.get("K1_NOM16") == "1": M[4:] = ["", ""]
        if ks < 3:
            e("s_waitcnt lgkmcnt(8)")
            e(M[0])
            for r in R[0:4]: e(r)
            e("s_waitcnt lgkmcnt(10)")
            e(M[1])
            for r in R[4:8]: e(r)
            e("s_waitcnt lgkmcnt(12)")
            e(M[2])
            for r in R[8:11]: e(r)
            e("s_waitcnt lgkmcnt(13)")
            e(M[3])
            for v in updx(2 + ks + 1): e(v)
            if ks == 2:
                for v in updw(6): e(v)
            e(M[4])
            e("s_waitcnt lgkmcnt(11)")
            if ks == 2:
                for v in updw(16): e(v)
            e(M[5])
            if ks == 2:
                for v in updw(7): e(v)
        else:
            e("s_waitcnt lgkmcnt(8)")
            e(M[0])
            e("s_sub_u32 s70, s70, 1")
            e("s_waitcnt lgkmcnt(6)")
            e(M[1])
            e("s_waitcnt lgkmcnt(0)")
            e("s_cmp_eq_u32 s70, 0")
            e("s_cbranch_scc1 L_k1_nobar")
            e("s_barrier")
            e("L_k1_nobar:")
            for r in R[0:3]: e(r)
            e(M[2])
            for r in R[3:7]: e(r)
            e(M[3])
            for r in R[7:11]: e(r)
            e(M[4])
            for v in updx(2): e(v)
            e(M[5])
        s = 1 - s
    e("s_cmp_lg_u32 s70, 0")
    e("s_cbranch_scc1 L_k1_loop")
    T.stamp()

    e("s_lshl_b32 s54, s45, 7")
    e(f"s_add_u32 s54, s54, {L_CS}")
    e("v_lshl_add_u32 v7, v8, 2, s54")
    e("s_lshl_b32 s54, s45, 9")
    e(f"s_add_u32 s54, s54, {L_ST}")
    e("v_lshl_add_u32 v6, v8, 2, s54")
    e("s_lshl_b32 s58, s40, 2")
    e("s_add_u32 s58, s58, s45")
    e("s_nop 2")
    e("v_cndmask_b32 v24, v24, v25, s[76:77]")
    e("ds_write_b32 v7, v24")
    e("v_cndmask_b32 v24, v28, v29, s[76:77]")
    e("v_lshlrev_b32 v20, 4, v1")
    e("v_lshlrev_b32 v21, 5, v8")
    e("v_lshl_add_u32 v21, v9, 4, v21")
    e("s_lshr_b32 s57, s41, 1")
    e("s_lshr_b32 s54, s57, 1")
    e("s_add_u32 s54, s54, 1")
    e("s_sub_u32 s55, 0, s54")
    e("s_bitcmp1_b32 s57, 0")
    e("s_cselect_b32 s54, s55, s54")
    e("s_lshl_b32 s55, s58, 5")
    e("s_add_u32 s55, s55, s54")
    e("v_add_u32 v22, s55, v8")
    e("v_cmp_gt_u32 vcc, 2048, v22")
    e("v_and_b32 v22, 2047, v22")
    e("v_lshrrev_b32 v23, 5, v22")
    e("v_lshlrev_b32 v23, 15, v23")
    e("v_and_b32 v22, 31, v22")
    e("v_lshl_add_u32 v23, v22, 4, v23")
    e("v_lshl_add_u32 v23, v9, 9, v23")
    e("v_cndmask_b32 v22, 0, 1.0, vcc")
    e(f"v_lshlrev_b32 v7, 4, v9")
    e(f"v_add_u32 v7, {L_CS}, v7")
    e("s_waitcnt lgkmcnt(0)")
    T.stamp()
    e("s_barrier")
    T.stamp()
    e("ds_read_b32 v16, v6 offset:256")
    e("ds_read_b32 v17, v6 offset:384")
    for j in range(4):
        for g in range(4):
            if j == 3 and g == 1: e("s_waitcnt lgkmcnt(13)")
            e(f"ds_read_b128 v[{32+16*j+4*g}:{35+16*j+4*g}], v7 offset:{128*j+32*g}")
    e("v_add_f32 v16, v16, v17")
    e(f"v_mul_f32 v24, {f32(1.0/512)}, v24")
    e(f"v_mul_f32 v16, {f32(1.0/512)}, v16")
    e("v_fma_f32 v16, -v24, v24, v16")
    e("v_max_f32 v16, 0, v16")
    e(f"v_add_f32 v17, {f32(EPS)}, v16")
    e("v_rsq_f32 v25, v17")
    e(f"v_mov_b32 v19, {f32(EPS)}")
    e("v_mul_f32 v18, v25, v25")
    e("v_fma_f32 v18, v18, v16, v19")
    e("v_rsq_f32 v18, v18")
    e("v_mul_f32 v26, v24, v25")
    e("v_sub_f32 v26, 0, v26")
    e("v_mul_f32 v18, v18, v22")
    e("s_cmp_lg_u32 s41, 0")
    e("s_cbranch_scc1 L_k1_nostat")
    e("s_lshl_b32 s54, s58, 8")
    e(f"s_add_u32 s54, s54, {STAT}")
    e("v_lshlrev_b32 v19, 3, v8")
    e("buffer_store_dwordx2 v[24:25], v19, s[32:35], s54 offen")
    e("L_k1_nostat:")
    e("s_lshl_b32 s56, s41, 2")
    e("s_sub_u32 s56, s56, 16")
    e("s_lshl_b32 s54, s41, 1")
    e("s_cmp_lt_u32 s41, 8")
    e("s_cselect_b32 s56, s54, s56")
    e(f"s_mov_b32 s60, {f32(QSCALE)}")
    e(f"s_mov_b32 s62, {f32(GELU_K2)}")
    e(f"s_mov_b32 s63, {f32(GELU_K2)}")
    e(f"v_mov_b32 v16, {f32(GELU_K1)}")
    e("s_waitcnt lgkmcnt(0)")
    OUT = [160, 32, 48, 64]
    def tile(j, ish):
        c = ACC(j)
        if not ish:
            e(f"s_add_u32 s55, s56, {j}")
            e("s_cmp_lt_u32 s55, 16")
            e("s_cselect_b32 s54, s60, 1.0")
            e("v_mul_f32 v28, s54, v25")
            e("v_mul_f32 v30, s54, v26")
            e("s_cmp_ge_u32 s55, 32")
            e("s_cselect_b64 vcc, -1, 0")
            e("s_lshl_b32 s55, s55, 7")
            e("s_add_u32 s55, s55, s58")
            e("s_lshl_b32 s55, s55, 10")
            e("s_add_u32 s59, s55, 65536")
            e("v_cndmask_b32 v27, v20, v21, vcc")
        else:
            e("v_mul_f32 v28, v18, v25")
            e("v_mul_f32 v30, v18, v26")
            e("s_lshl_b32 s55, s41, 12")
            e(f"s_add_u32 s55, s55, {HOFF + (j-2)*2048}")
        cs = 32 + 16 * j
        for r in range(0, 16, 2):
            e(f"v_pk_mul_f32 v[{cs+r}:{cs+r+1}], v[{cs+r}:{cs+r+1}], v[30:31] op_sel_hi:[1,0]")
        for r in range(0, 16, 2):
            e(f"v_pk_fma_f32 v[{c+r}:{c+r+1}], v[{c+r}:{c+r+1}], v[28:29], v[{cs+r}:{cs+r+1}] op_sel_hi:[1,0,1]")
        if ish:
            emit_gelu_pk(a, c, 16, cs, 16, 62)
        o = OUT[j]
        for p in range(8):
            e(f"v_cvt_pk_bf16_f32 v{o+p}, v{c+2*p}, v{c+2*p+1}")
        if not ish:
            e(f"buffer_store_dwordx4 v[{o}:{o+3}], v27, s[32:35], s55 offen")
            e(f"buffer_store_dwordx4 v[{o+4}:{o+7}], v27, s[32:35], s59 offen")
        else:
            e(f"buffer_store_dwordx4 v[{o}:{o+3}], v23, s[32:35], s55 offen")
            e(f"buffer_store_dwordx4 v[{o+4}:{o+7}], v23, s[32:35], s55 offen offset:1024")
    tile(0, False)
    T.stamp()
    tile(1, False)
    e("s_cmp_lt_u32 s41, 8")
    e("s_cbranch_scc1 L_k1_htiles")
    tile(2, False)
    tile(3, False)
    e("s_branch L_k1_fin")
    e("L_k1_htiles:")
    tile(2, True)
    tile(3, True)
    e("L_k1_fin:")
    T.stamp()
    T.dump(32, 42, 8, 60, 61)
    e(f"{L_exit}:")
    e("s_endpgm")
    return a.kernel(vgpr=168, sgpr=96)
```

```python
import sys, os
sys.path.insert(0, os.path.dirname(__file__))
from common import *
NAME = "parallel_sum__softmax_full_mha__mixer_s_mlp__prompt"
HEADER = """; Kernarg layout for this problem (88 bytes, ptrs only, base s[0:1]):
"""
def build(launches, out):
    txt = HEADER
    for name, g, grid, block, lds in launches:
        txt += f"; @launch kernel={name}_kernel grid=({grid},1,1) block=({block},1,1) lds={lds}\n"
    txt += '.amdgcn_target "amdgcn-amd-amdhsa--gfx950"\n.text\n'
    descs = ""
    seen = set()
    for name, g, grid, block, lds in launches:
        if name in seen: continue
        seen.add(name)
        t, d = g()
        txt += t
        descs += ".p2align 6\n" + d
    txt += "L_code_end:\n"
    txt += '.section .rodata,"a"\n' + descs
    open(out, "w").write(txt)

if __name__ == "__main__":
    import cfg
    out = sys.argv[1] if len(sys.argv) > 1 else f"cdna_kernels/{NAME}.s"
    build(cfg.LAUNCHES, out)
    print("wrote", out)
```

```python
import sys
from cfg import LAUNCHES
from common import *
import build
def gen_nop():
    a = Asm("nop"); a.e("s_endpgm"); return a.kernel(vgpr=8, sgpr=16)
L = LAUNCHES + [("nop", gen_nop, 256, 64, 0)]*6
build.build(L, "var_nop6.s")
L = LAUNCHES + LAUNCHES
build.build(L, "var_twice.s")
```

```python
from common import *

BIG = 0x7ff00000


class BCtx:
    def __init__(self, a, lds_base, sync, sc=""):
        self.a = a; self.lds = lds_base; self.sync = sync; self.sc = sc


def gemm_loop(c, tag, nact, nw, nslots, depth, acc, fr, s_act, s_w, act_stride, w_stride, s_cnt=None, extra=None, sc_act=""):
    a = c.a; e = a.e
    nf = nact + nw
    assert nslots % depth == 0
    def F(s, i): return fr + 4 * (nf * s + i)
    def issue(s):
        if os.environ.get("B_NOLOAD") == "1" and a.name == "k2": return
        if s_cnt is not None:
            e(f"s_cmp_gt_i32 s{s_cnt}, 0")
            e(f"s_cselect_b32 s60, s{s_act}, s59")
            e(f"s_cselect_b32 s61, s{s_w}, s59")
            e(f"s_sub_i32 s{s_cnt}, s{s_cnt}, 1")
            sa, sw = 60, 61
        else:
            sa, sw = s_act, s_w
        for t in range(nact):
            if t == 0: so = f"s{sa}"
            else:
                e(f"s_add_u32 s62, s{sa}, {act_stride if isinstance(act_stride, str) else t*act_stride}"); so = "s62"
            e(f"buffer_load_dwordx4 v[{F(s,t)}:{F(s,t)+3}], v2, s[32:35], {so} offen{sc_act}")
        for i in range(nw):
            if i == 0: so = f"s{sw}"
            else:
                e(f"s_add_u32 s62, s{sw}, {w_stride if isinstance(w_stride, str) else i*w_stride}"); so = "s62"
            e(f"buffer_load_dwordx4 v[{F(s,nact+i)}:{F(s,nact+i)+3}], v2, s[32:35], {so} offen")
        e(f"s_add_u32 s{s_act}, s{s_act}, 1024")
        e(f"s_add_u32 s{s_w}, s{s_w}, 1024")
    pace = getattr(c, "pace", None)
    def mf(s, first=False):
        if os.environ.get("B_NOMFMA") == "1" and a.name == "k2": return
        for i in range(nw):
            for t in range(nact):
                d = acc + 16 * (i * nact + t)
                cc = "0" if first else f"v[{d}:{d+15}]"
                e(f"v_mfma_f32_32x32x16_bf16 v[{d}:{d+15}], v[{F(s,nact+i)}:{F(s,nact+i)+3}], v[{F(s,t)}:{F(s,t)+3}], {cc}")
                if pace: e(pace)
        if extra: extra([F(s, nact + i) for i in range(nw)])
    e(f"s_mov_b32 s59, {BIG}")
    for s in range(depth): issue(s)
    if tag == "w2" and hasattr(c, "after_issue"): c.after_issue(nf * depth + 5)
    niter = nslots // depth
    peel = getattr(c, "peel", False)
    if peel:
        for s in range(depth):
            e(f"s_waitcnt vmcnt({nf*(depth-1) if niter > 1 else nf*(depth-1-s)})")
            mf(s, first=(s == 0))
            if niter > 1: issue(s)
        niter -= 1
        if niter == 0: return
    if niter > 1:
        e(f"s_mov_b32 s58, {niter-1}")
        e(f"L_{a.name}_{tag}_loop:")
        for s in range(depth):
            e(f"s_waitcnt vmcnt({nf*(depth-1)})")
            mf(s)
            issue(s)
        e("s_sub_u32 s58, s58, 1")
        e("s_cmp_lg_u32 s58, 0")
        e(f"s_cbranch_scc1 L_{a.name}_{tag}_loop")
    for s in range(depth):
        e(f"s_waitcnt vmcnt({nf*(depth-1-s)})")
        mf(s)


def touch(c, sreg, ninstr, sc=""):
    e = c.a.e
    for i in range(ninstr):
        e(f"buffer_load_dword v7, v6, s[32:35], s{sreg} offen{sc}")
        if i + 1 < ninstr: e(f"s_add_u32 s{sreg}, s{sreg}, 8192")


def zero(a, lo, n):
    for r in range(lo, lo + n): a.e(f"v_mov_b32 v{r}, 0")


def reduce4(c, tag, acc, tmp):
    a = c.a; e = a.e
    e("s_lshl_b32 s60, s45, 12")
    e(f"s_add_u32 s60, s60, {c.lds}")
    e("v_add_u32 v3, s60, v2")
    e("s_nop 7"); e("s_nop 3")
    for d in range(4):
        for q in range(4):
            r = acc + 16 * d + 4 * q
            e(f"ds_write_b128 v3, v[{r}:{r+3}] offset:{d*16384 + q*1024}")
    e("s_waitcnt lgkmcnt(0)")
    c.sync(tag + "a")
    e("s_lshl_b32 s60, s45, 14")
    e(f"s_add_u32 s60, s60, {c.lds}")
    e("v_add_u32 v3, s60, v2")
    for s in range(4):
        for q in range(4):
            r = acc + 16 * s + 4 * q
            e(f"ds_read_b128 v[{r}:{r+3}], v3 offset:{s*4096 + q*1024}")
        if s == 2: e("s_waitcnt lgkmcnt(4)")
    for r in range(16): e(f"v_add_f32 v{tmp+r}, v{acc+r}, v{acc+16+r}")
    e("s_waitcnt lgkmcnt(4)")
    for r in range(16): e(f"v_add_f32 v{tmp+r}, v{tmp+r}, v{acc+32+r}")
    e("s_waitcnt lgkmcnt(0)")
    for r in range(16): e(f"v_add_f32 v{tmp+r}, v{tmp+r}, v{acc+48+r}")


def load_x_tile(c, dst):
    a = c.a; e = a.e
    e("s_and_b32 s60, s45, 1")
    e("s_lshl_b32 s61, s40, 1")
    e("s_add_u32 s60, s60, s61")
    e("s_lshl_b32 s61, s60, 15")
    e("s_lshr_b32 s62, s45, 1")
    e("s_lshl_b32 s63, s41, 1")
    e("s_add_u32 s62, s62, s63")
    e("s_lshl_b32 s63, s62, 6")
    e("s_add_u32 s61, s61, s63")
    e("v_and_b32 v4, 31, v1")
    e("v_lshrrev_b32 v5, 5, v1")
    e("v_lshlrev_b32 v6, 10, v4")
    e("v_lshl_add_u32 v6, v5, 3, v6")
    for g in range(4):
        e(f"buffer_load_dwordx2 v[{dst+2*g}:{dst+2*g+1}], v6, s[24:27], s61 offen offset:{16*g}")


def phase_w2(c, keep):
    a = c.a; e = a.e
    ACC, FR, TMP, XR = 16, 80, 144, 160
    c.peel = True
    load_x_tile(c, XR)
    e("s_mov_b32 s64, s60"); e("s_mov_b32 s65, s62")
    e("s_lshl_b32 s61, s60, 8")
    e(f"s_add_u32 s61, s61, {STAT}")
    e("v_lshlrev_b32 v6, 3, v4")
    e(f"buffer_load_dwordx2 v[8:9], v6, s[32:35], s61 offen")
    e("s_lshl_b32 s56, s40, 6")
    e("s_lshl_b32 s60, s45, 3")
    e("s_add_u32 s56, s56, s60")
    e("s_lshl_b32 s56, s56, 10")
    e(f"s_add_u32 s56, s56, {HOFF}")
    e("s_lshl_b32 s57, s41, 6")
    e("s_add_u32 s57, s57, s60")
    e("s_lshl_b32 s57, s57, 10")
    e(f"s_add_u32 s57, s57, {W2F}")
    gemm_loop(c, "w2", 2, 2, 8, 4, ACC, FR, 56, 57, 32768, 32768)
    c.peel = False
    if hasattr(c, "after_gemm"): c.after_gemm()
    reduce4(c, "w2", ACC, TMP)
    e("v_mul_f32 v10, v8, v9")
    e("v_sub_f32 v10, 0, v10")
    e("s_mov_b32 s60, 0xffff0000")
    for p in range(8):
        e(f"v_lshlrev_b32 v{ACC+2*p}, 16, v{XR+p}")
        e(f"v_and_b32 v{ACC+2*p+1}, s60, v{XR+p}")
    for r in range(16):
        e(f"v_add_f32 v{TMP+r}, v{TMP+r}, v10")
    for r in range(16):
        e(f"v_fmac_f32 v{TMP+r}, v{ACC+r}, v9")
    if keep is not None:
        for r in range(16):
            e(f"v_add_f32 v{keep+r}, v{ACC+r}, v{TMP+r}")
    for p in range(8):
        e(f"v_cvt_pk_bf16_f32 v{ACC+16+p}, v{TMP+2*p}, v{TMP+2*p+1}")
    e(f"v_add_f32 v10, v{TMP}, v{TMP+1}")
    e(f"v_mul_f32 v11, v{TMP}, v{TMP}")
    e(f"v_fmac_f32 v11, v{TMP+1}, v{TMP+1}")
    for r in range(2, 16):
        e(f"v_add_f32 v10, v10, v{TMP+r}")
        e(f"v_fmac_f32 v11, v{TMP+r}, v{TMP+r}")
    e("s_lshl_b32 s60, s64, 5")
    e("s_lshl_b32 s61, s65, 1")
    e("s_add_u32 s60, s60, s61")
    e("s_lshl_b32 s60, s60, 10")
    e(f"s_add_u32 s60, s60, {X1OFF}")
    e(f"buffer_store_dwordx4 v[{ACC+16}:{ACC+19}], v2, s[32:35], s60 offen{c.sc}")
    e(f"buffer_store_dwordx4 v[{ACC+20}:{ACC+23}], v2, s[32:35], s60 offen offset:1024{c.sc}")
    e("s_lshl_b32 s60, s64, 4")
    e("s_add_u32 s60, s60, s65")
    e("s_lshl_b32 s60, s60, 9")
    e(f"s_add_u32 s60, s60, {X1STAT}")
    e("v_lshlrev_b32 v6, 3, v1")
    e(f"buffer_store_dwordx2 v[10:11], v6, s[32:35], s60 offen{c.sc}")


def phase_w3(c):
    a = c.a; e = a.e
    ACC, CS, FR = 16, 112, 124
    L_RED = c.lds
    L_CSB = c.lds + 49152
    zero(a, ACC, 108)
    e("v_bfe_u32 v4, v1, 4, 1")
    e("v_xor_b32 v5, v4, v1")
    e("v_and_b32 v5, 1, v5")
    e("v_cmp_eq_u32 vcc, 0, v5")
    e("v_mov_b32 v5, 0x3f803f80")
    e("v_cmp_eq_u32 s[66:67], 1, v4")
    e("v_cndmask_b32 v8, 0, v5, vcc")
    e("v_mov_b32 v9, v8"); e("v_mov_b32 v10, v8"); e("v_mov_b32 v11, v8")
    e("s_mul_i32 s64, s41, 5")
    e("s_min_u32 s60, s41, 3")
    e("s_add_u32 s64, s64, s60")
    e("s_lshr_b32 s60, s45, 1")
    e("s_mul_i32 s61, s60, 3")
    e("s_add_u32 s64, s64, s61")
    e("s_cmp_ge_u32 s41, 3")
    e("s_cselect_b32 s65, s60, 0")
    e("s_and_b32 s60, s45, 1")
    e("s_lshl_b32 s60, s60, 4")
    e("s_lshl_b32 s56, s40, 6")
    e("s_add_u32 s56, s56, s60")
    e("s_lshl_b32 s56, s56, 10")
    e(f"s_add_u32 s56, s56, {X1OFF}")
    e("s_lshl_b32 s57, s64, 5")
    e("s_add_u32 s57, s57, s60")
    e("s_lshl_b32 s57, s57, 10")
    e(f"s_add_u32 s57, s57, {W3F}")
    def extra(wr):
        for i, r in enumerate(wr):
            e(f"v_mfma_f32_16x16x32_bf16 v[{CS+4*i}:{CS+4*i+3}], v[8:11], v[{r}:{r+3}], v[{CS+4*i}:{CS+4*i+3}]")
    if hasattr(c, "T"): c.T.stamp()
    gemm_loop(c, "w3", 2, 3, 16, 2, ACC, FR, 56, 57, 32768, 32768, extra=extra, sc_act=c.sc)
    if os.environ.get("K2_STOP") == "3": e("s_endpgm")
    if hasattr(c, "T"): c.T.stamp()
    e("s_lshl_b32 s60, s45, 0")
    e("s_xor_b32 s60, s45, 1")
    e("s_mul_i32 s60, s60, 12288")
    e(f"s_add_u32 s60, s60, {L_RED}")
    e("v_add_u32 v3, s60, v2")
    e("v_and_b32 v4, 31, v1")
    e("s_mul_i32 s60, s45, 384")
    e(f"s_add_u32 s60, s60, {L_CSB}")
    e("v_lshl_add_u32 v6, v4, 2, s60")
    e("s_nop 7")
    for i in range(3):
        e(f"v_cndmask_b32 v{CS+4*i}, v{CS+4*i}, v{CS+4*i+1}, s[66:67]")
        e(f"ds_write_b32 v6, v{CS+4*i} offset:{128*i}")
    e("s_bitcmp1_b32 s45, 0")
    e(f"s_cbranch_scc1 L_{a.name}_w3_k1")
    for i in range(3):
        for q in range(4):
            r = ACC + 16 * (2 * i + 1) + 4 * q
            e(f"ds_write_b128 v3, v[{r}:{r+3}] offset:{i*4096 + q*1024}")
    e(f"s_branch L_{a.name}_w3_x")
    e(f"L_{a.name}_w3_k1:")
    for i in range(3):
        for q in range(4):
            r = ACC + 16 * (2 * i) + 4 * q
            e(f"ds_write_b128 v3, v[{r}:{r+3}] offset:{i*4096 + q*1024}")
    e("s_waitcnt lgkmcnt(0)")
    for i in range(3):
        for r in range(16):
            e(f"v_mov_b32 v{ACC+32*i+r}, v{ACC+32*i+16+r}")
    e(f"L_{a.name}_w3_x:")
    e("s_and_b32 s60, s45, 1")
    e("s_lshl_b32 s61, s40, 1")
    e("s_add_u32 s63, s60, s61")
    e("s_lshl_b32 s60, s63, 13")
    e(f"s_add_u32 s60, s60, {X1STAT}")
    e("v_lshlrev_b32 v6, 3, v1")
    for j in range(16):
        if j % 8 == 0 and j: e("s_add_u32 s60, s60, 4096")
        e(f"buffer_load_dwordx2 v[{FR+2*j}:{FR+2*j+1}], v6, s[32:35], s60 offen offset:{512*(j%8)}{c.sc}")
    e("s_waitcnt lgkmcnt(0)")
    c.sync("w3a")
    if hasattr(c, "T"): c.T.stamp()
    e("s_mul_i32 s60, s45, 12288")
    e(f"s_add_u32 s60, s60, {L_RED}")
    e("v_add_u32 v3, s60, v2")
    for i in range(3):
        for q in range(4):
            r = ACC + 32 * i + 16 + 4 * q
            e(f"ds_read_b128 v[{r}:{r+3}], v3 offset:{i*4096 + q*1024}")
    e("s_waitcnt vmcnt(0)")
    for j in range(1, 16):
        e(f"v_add_f32 v{FR}, v{FR}, v{FR+2*j}")
        e(f"v_add_f32 v{FR+1}, v{FR+1}, v{FR+2*j+1}")
    e(f"v_mov_b32 v{FR+2}, v{FR}")
    e(f"v_mov_b32 v{FR+3}, v{FR+1}")
    e("s_nop 1")
    e(f"v_permlane32_swap_b32 v{FR}, v{FR+2}")
    e(f"v_permlane32_swap_b32 v{FR+1}, v{FR+3}")
    e(f"v_add_f32 v{FR}, v{FR}, v{FR+2}")
    e(f"v_add_f32 v{FR+1}, v{FR+1}, v{FR+3}")
    e(f"v_mul_f32 v{FR}, {f32(1/512)}, v{FR}")
    e(f"v_mul_f32 v{FR+1}, {f32(1/512)}, v{FR+1}")
    e(f"v_fma_f32 v{FR+1}, -v{FR}, v{FR}, v{FR+1}")
    e(f"v_max_f32 v{FR+1}, 0, v{FR+1}")
    e(f"v_add_f32 v{FR+1}, {f32(EPS)}, v{FR+1}")
    e(f"v_rsq_f32 v12, v{FR+1}")
    e("v_lshrrev_b32 v5, 5, v1")
    e(f"v_mul_f32 v14, v{FR}, v12")
    e("v_sub_f32 v14, 0, v14")
    e("s_and_b32 s60, s45, 2")
    e("s_mul_i32 s60, s60, 384")
    e(f"s_add_u32 s60, s60, {L_CSB}")
    e("v_lshl_add_u32 v6, v5, 4, s60")
    e(f"s_mov_b32 s60, {f32(GELU_K2)}")
    e(f"s_mov_b32 s61, {f32(GELU_K2)}")
    e(f"v_mov_b32 v8, {f32(GELU_K1)}")
    if hasattr(c, "T"): c.T.stamp()
    e("s_mul_i32 s62, s63, 86")
    e("s_lshl_b32 s63, s64, 1")
    e("s_add_u32 s62, s62, s63")
    e("s_lshl_b32 s62, s62, 10")
    e(f"s_add_u32 s62, s62, {GOFF}")
    for i in range(3):
        A0 = ACC + 32 * i; B0 = A0 + 16
        if i == 2:
            e("s_cmp_eq_u32 s65, 1")
            e(f"s_cbranch_scc1 L_{a.name}_w3_done")
        for g in range(4):
            e(f"ds_read_b128 v[{FR+4*g}:{FR+4*g+3}], v6 offset:{128*i + 32*g}")
            e(f"ds_read_b128 v[{FR+16+4*g}:{FR+16+4*g+3}], v6 offset:{384 + 128*i + 32*g}")
        e("s_waitcnt lgkmcnt(8)" if i == 0 else "s_nop 0")
        for r in range(16): e(f"v_add_f32 v{A0+r}, v{A0+r}, v{B0+r}")
        e("s_waitcnt lgkmcnt(0)")
        for r in range(16): e(f"v_add_f32 v{FR+r}, v{FR+r}, v{FR+16+r}")
        for r in range(16): e(f"v_mul_f32 v{A0+r}, v12, v{A0+r}")
        for r in range(16): e(f"v_fmac_f32 v{A0+r}, v14, v{FR+r}")
        emit_gelu_block(a, list(range(A0, A0 + 16)), list(range(B0, B0 + 16)), 8, 60)
        for p in range(8): e(f"v_cvt_pk_bf16_f32 v{B0+p}, v{A0+2*p}, v{A0+2*p+1}")
        e(f"buffer_store_dwordx4 v[{B0}:{B0+3}], v2, s[32:35], s62 offen offset:{(2048*i) % 4096}{c.sc}")
        e(f"buffer_store_dwordx4 v[{B0+4}:{B0+7}], v2, s[32:35], s62 offen offset:{(2048*i) % 4096 + 1024}{c.sc}")
        if i == 1: e("s_add_u32 s62, s62, 4096")
    e(f"L_{a.name}_w3_done:")


def phase_w4(c, keep):
    a = c.a; e = a.e
    ACC, FR, TMP = 16, 80, 80
    zero(a, ACC, 64)
    if keep is None:
        load_x_tile(c, 144)
        e("s_lshl_b32 s60, s60, 5")
        e("s_lshl_b32 s61, s62, 1")
        e("s_add_u32 s60, s60, s61")
        e("s_lshl_b32 s60, s60, 10")
        e(f"s_add_u32 s60, s60, {X1OFF}")
        e(f"buffer_load_dwordx4 v[152:155], v2, s[32:35], s60 offen{c.sc}")
        e(f"buffer_load_dwordx4 v[156:159], v2, s[32:35], s60 offen offset:1024{c.sc}")
    e("s_mul_i32 s60, s45, 22")
    e("s_sub_u32 s55, 86, s60")
    e("s_min_u32 s55, s55, 22")
    e("s_mul_i32 s56, s40, 172")
    e("s_add_u32 s56, s56, s60")
    e("s_lshl_b32 s56, s56, 10")
    e(f"s_add_u32 s56, s56, {GOFF}")
    e("s_mul_i32 s57, s41, 172")
    e("s_add_u32 s57, s57, s60")
    e("s_lshl_b32 s57, s57, 10")
    e(f"s_add_u32 s57, s57, {W4F}")
    gemm_loop(c, "w4", 2, 2, 24, 4, ACC, FR, 56, 57, 86 * 1024, 86 * 1024, s_cnt=55, sc_act=c.sc)
    reduce4(c, "w4", ACC, TMP)
    if keep is not None:
        for r in range(16): e(f"v_add_f32 v{TMP+r}, v{TMP+r}, v{keep+r}")
    else:
        e("s_mov_b32 s60, 0xffff0000")
        for base in (144, 152):
            for p in range(8):
                e(f"v_lshlrev_b32 v{ACC+2*p}, 16, v{base+p}")
                e(f"v_and_b32 v{ACC+2*p+1}, s60, v{base+p}")
            for r in range(16): e(f"v_add_f32 v{TMP+r}, v{TMP+r}, v{ACC+r}")
    e("s_and_b32 s60, s45, 1")
    e("s_lshl_b32 s61, s40, 1")
    e("s_add_u32 s60, s60, s61")
    e("s_lshl_b32 s60, s60, 4")
    e("s_lshr_b32 s62, s45, 1")
    e("s_lshl_b32 s63, s41, 1")
    e("s_add_u32 s60, s60, s62")
    e("s_add_u32 s60, s60, s63")
    e("s_lshl_b32 s60, s60, 12")
    e(f"s_add_u32 s60, s60, {ROFF}")
    for q in range(4):
        e(f"buffer_store_dwordx4 v[{TMP+4*q}:{TMP+4*q+3}], v2, s[32:35], s60 offen offset:{1024*q}")


def std_prologue(a, T, need_x=True, need_out=False):
    e = a.e
    T.stamp()
    e("s_cmp_ge_u32 s2, 256")
    e(f"s_cbranch_scc1 L_{a.name}_exit")
    e("s_load_dwordx2 s[4:5], s[0:1], 0")
    e("s_load_dwordx2 s[6:7], s[0:1], 64")
    e("s_load_dwordx2 s[20:21], s[0:1], 80")
    e("v_lshrrev_b32 v1, 6, v0")
    e("s_and_b32 s54, s2, 7")
    e("v_readfirstlane_b32 s45, v1")
    e("v_and_b32 v1, 63, v0")
    e("v_lshlrev_b32 v2, 4, v1")
    e("s_lshl_b32 s40, s54, 2")
    e("s_bfe_u32 s54, s2, 0x20003")
    e("s_add_u32 s40, s40, s54")
    e("s_lshr_b32 s41, s2, 5")
    e("s_waitcnt lgkmcnt(0)")
    a.srd(32, 20, WS_USED)
    a.srd(24, 4, 2048 * 1024)
    a.srd(28, 6, 2048 * 1024)


def std_end(a, T):
    T.stamp()
    T.dump(32, 45, 4, 4, 5)
    a.e(f"L_{a.name}_exit:")
    a.e("s_endpgm")


B_LDS = 65536


def keep_store(a, keep, store):
    e = a.e
    e("s_lshl_b32 s60, s2, 2")
    e("s_add_u32 s60, s60, s45")
    e("s_lshl_b32 s60, s60, 12")
    e(f"s_add_u32 s60, s60, {ROFF}")
    for q in range(4):
        if store: e(f"buffer_store_dwordx4 v[{keep+4*q}:{keep+4*q+3}], v2, s[32:35], s60 offen offset:{1024*q}")
        else: e(f"buffer_load_dwordx4 v[{keep+4*q}:{keep+4*q+3}], v2, s[32:35], s60 offen offset:{1024*q}")


def gen_w2():
    a = Asm("w2"); T = Stamper(a, 78, 2)
    std_prologue(a, T)
    c = BCtx(a, 0, lambda tag: a.e("s_barrier"))
    phase_w2(c, 168)
    e = a.e
    e("s_lshl_b32 s60, s2, 2")
    e("s_add_u32 s60, s60, s45")
    e("s_lshl_b32 s60, s60, 12")
    e(f"s_add_u32 s60, s60, {KEEPOFF}")
    for q in range(4):
        e(f"buffer_store_dwordx4 v[{168+4*q}:{171+4*q}], v2, s[32:35], s60 offen offset:{1024*q}")
    std_end(a, T)
    return a.kernel(vgpr=184, sgpr=96)


def gen_w3():
    a = Asm("w3"); T = Stamper(a, 78, 3)
    std_prologue(a, T)
    c = BCtx(a, 0, lambda tag: a.e("s_barrier"))
    phase_w3(c)
    std_end(a, T)
    return a.kernel(vgpr=168, sgpr=96)


def gen_w4():
    a = Asm("w4"); T = Stamper(a, 78, 4)
    std_prologue(a, T)
    c = BCtx(a, 0, lambda tag: a.e("s_barrier"))
    e = a.e
    e("s_lshl_b32 s60, s2, 2")
    e("s_add_u32 s60, s60, s45")
    e("s_lshl_b32 s60, s60, 12")
    e(f"s_add_u32 s60, s60, {KEEPOFF}")
    for q in range(4):
        e(f"buffer_load_dwordx4 v[{144+4*q}:{147+4*q}], v2, s[32:35], s60 offen offset:{1024*q}")
    phase_w4(c, 144)
    std_end(a, T)
    return a.kernel(vgpr=168, sgpr=96)


def gen_fin():
    a = Asm("fin"); T = Stamper(a, 78, 2)
    std_prologue(a, T)
    c = BCtx(a, 0, lambda tag: a.e("s_barrier"))
    e = a.e
    ACC, FR, TMP, RR = 16, 80, 80, 208
    zero(a, ACC, 64)
    e("s_lshl_b32 s56, s40, 6")
    e("s_lshl_b32 s60, s45, 3")
    e("s_add_u32 s56, s56, s60")
    e("s_lshl_b32 s56, s56, 10")
    e(f"s_add_u32 s56, s56, {OOFF}")
    e("s_lshl_b32 s57, s41, 6")
    e("s_add_u32 s57, s57, s60")
    e("s_lshl_b32 s57, s57, 10")
    e(f"s_add_u32 s57, s57, {WOF}")
    e("s_and_b32 s60, s45, 1")
    e("s_lshl_b32 s61, s40, 1")
    e("s_add_u32 s64, s60, s61")
    e("s_lshr_b32 s62, s45, 1")
    e("s_lshl_b32 s63, s41, 1")
    e("s_add_u32 s65, s62, s63")
    e("s_lshl_b32 s60, s64, 4")
    e("s_add_u32 s60, s60, s65")
    e("s_lshl_b32 s60, s60, 12")
    e(f"s_add_u32 s60, s60, {ROFF}")
    for q in range(4):
        e(f"buffer_load_dwordx4 v[{RR+4*q}:{RR+4*q+3}], v2, s[32:35], s60 offen offset:{1024*q}")
    gemm_loop(c, "fin", 2, 2, 8, 8, ACC, FR, 56, 57, 32768, 32768)
    reduce4(c, "fin", ACC, TMP)
    for r in range(16): e(f"v_add_f32 v{TMP+r}, v{TMP+r}, v{RR+r}")
    for p in range(8): e(f"v_cvt_pk_bf16_f32 v{ACC+p}, v{TMP+2*p}, v{TMP+2*p+1}")
    e("v_and_b32 v4, 31, v1")
    e("v_lshrrev_b32 v5, 5, v1")
    e("v_lshlrev_b32 v6, 10, v4")
    e("v_lshl_add_u32 v6, v5, 4, v6")
    e(f"v_permlane32_swap_b32 v{ACC}, v{ACC+2}")
    e(f"v_permlane32_swap_b32 v{ACC+1}, v{ACC+3}")
    e(f"v_permlane32_swap_b32 v{ACC+4}, v{ACC+6}")
    e(f"v_permlane32_swap_b32 v{ACC+5}, v{ACC+7}")
    e("s_lshl_b32 s60, s64, 15")
    e("s_lshl_b32 s61, s65, 6")
    e("s_add_u32 s60, s60, s61")
    e(f"buffer_store_dwordx4 v[{ACC}:{ACC+3}], v6, s[28:31], s60 offen")
    e(f"buffer_store_dwordx4 v[{ACC+4}:{ACC+7}], v6, s[28:31], s60 offen offset:32")
    std_end(a, T)
    return a.kernel(vgpr=224, sgpr=96)


def gen_fin2():
    a = Asm("fin"); T = Stamper(a, 78, 2)
    std_prologue(a, T)
    e = a.e
    c = BCtx(a, 0, lambda tag: a.e("s_barrier"))
    ACC, FR, TMP = 16, 80, 80
    e("s_mov_b32 s44, s45")
    e("s_and_b32 s45, s44, 3")
    e("s_cmp_ge_u32 s44, 2")
    e("s_cbranch_scc1 L_fin_w4")
    e("s_lshl_b32 s60, s44, 4")
    e("s_lshl_b32 s56, s40, 6"); e("s_add_u32 s56, s56, s60"); e("s_lshl_b32 s56, s56, 10"); e(f"s_add_u32 s56, s56, {OOFF}")
    e("s_lshl_b32 s57, s41, 6"); e("s_add_u32 s57, s57, s60"); e("s_lshl_b32 s57, s57, 10"); e(f"s_add_u32 s57, s57, {WOF}")
    e("s_mov_b32 s55, 16"); e("s_mov_b32 s70, 32768")
    e("s_branch L_fin_go")
    e("L_fin_w4:")
    e("s_sub_u32 s61, s44, 2")
    e("s_mul_i32 s60, s61, 14")
    e("s_min_u32 s62, s61, 2")
    e("s_add_u32 s60, s60, s62")
    e("s_cmp_lt_u32 s61, 2")
    e("s_cselect_b32 s55, 15, 14")
    e("s_mul_i32 s56, s40, 172"); e("s_add_u32 s56, s56, s60"); e("s_lshl_b32 s56, s56, 10"); e(f"s_add_u32 s56, s56, {GOFF}")
    e("s_mul_i32 s57, s41, 172"); e("s_add_u32 s57, s57, s60"); e("s_lshl_b32 s57, s57, 10"); e(f"s_add_u32 s57, s57, {W4F}")
    e(f"s_mov_b32 s70, {86*1024}")
    e("L_fin_go:")
    zero(a, ACC, 64)
    gemm_loop(c, "fin", 2, 2, 16, 8, ACC, FR, 56, 57, "s70", "s70", s_cnt=55)
    T.stamp()
    load_x_tile(c, 208)
    e("s_mov_b32 s64, s60"); e("s_mov_b32 s65, s62")
    e("s_lshl_b32 s60, s60, 5"); e("s_lshl_b32 s61, s62, 1"); e("s_add_u32 s60, s60, s61"); e("s_lshl_b32 s60, s60, 10"); e(f"s_add_u32 s60, s60, {X1OFF}")
    e("buffer_load_dwordx4 v[216:219], v2, s[32:35], s60 offen")
    e("buffer_load_dwordx4 v[220:223], v2, s[32:35], s60 offen offset:1024")
    e("s_lshl_b32 s60, s44, 12")
    e("v_add_u32 v3, s60, v2")
    e("v_add_u32 v7, 65536, v3")
    for d in range(4):
        for q in range(4):
            r = ACC + 16 * d + 4 * q
            e(f"ds_write_b128 v{3 if d < 2 else 7}, v[{r}:{r+3}] offset:{(d&1)*32768 + q*1024}")
    e("s_waitcnt lgkmcnt(0)")
    e("s_barrier")
    e("s_lshl_b32 s60, s45, 15")
    e("s_lshr_b32 s61, s44, 2")
    e("s_lshl_b32 s62, s61, 11")
    e("s_add_u32 s60, s60, s62")
    e("v_add_u32 v3, s60, v2")
    for s in range(8):
        for q in range(2):
            r = ACC + 8 * s + 4 * q
            e(f"ds_read_b128 v[{r}:{r+3}], v3 offset:{s*4096 + q*1024}")
        if s == 5: e("s_waitcnt lgkmcnt(8)")
    e("s_waitcnt lgkmcnt(0)")
    for s in range(1, 8):
        for r in range(8): e(f"v_add_f32 v{ACC+r}, v{ACC+r}, v{ACC+8*s+r}")
    e("s_waitcnt vmcnt(0)")
    e("s_cmp_eq_u32 s61, 0")
    e("s_cbranch_scc1 L_fin_lo")
    for p in range(4):
        e(f"v_mov_b32 v{208+p}, v{212+p}"); e(f"v_mov_b32 v{216+p}, v{220+p}")
    e("L_fin_lo:")
    e("s_mov_b32 s60, 0xffff0000")
    for base in (208, 216):
        for p in range(4):
            e(f"v_lshlrev_b32 v{TMP+2*p}, 16, v{base+p}")
            e(f"v_and_b32 v{TMP+2*p+1}, s60, v{base+p}")
        for r in range(8): e(f"v_add_f32 v{ACC+r}, v{ACC+r}, v{TMP+r}")
    for p in range(4): e(f"v_cvt_pk_bf16_f32 v{TMP+p}, v{ACC+2*p}, v{ACC+2*p+1}")
    e("v_lshlrev_b32 v6, 10, v4")
    e("v_lshl_add_u32 v6, v5, 4, v6")
    e("s_lshl_b32 s60, s64, 15")
    e(f"v_permlane32_swap_b32 v{TMP}, v{TMP+2}")
    e(f"v_permlane32_swap_b32 v{TMP+1}, v{TMP+3}")
    e("s_lshl_b32 s62, s65, 6")
    e("s_add_u32 s60, s60, s62")
    e("s_lshl_b32 s62, s61, 5")
    e("s_add_u32 s60, s60, s62")
    e(f"buffer_store_dwordx4 v[{TMP}:{TMP+3}], v6, s[28:31], s60 offen")
    e("s_mov_b32 s45, s44")
    std_end(a, T)
    return a.kernel(vgpr=224, sgpr=96)
```

```python
from k1 import gen_k1, K1_LDS
from k2 import gen_k2, K2_LDS
from bchain import *
import bchain
LAUNCHES = [
    ("k1", gen_k1, 256, 768, K1_LDS),
    ("k2", gen_k2, 256, 768, K2_LDS),
    ("fin", gen_fin2, 256, 512, 131072),
]
```

```python
import struct

def f32(x):
    return "0x%08x" % struct.unpack("<I", struct.pack("<f", x))[0]

MB = 1 << 20
QOFF   = 0 * MB
KOFF   = 2 * MB
VOFF   = 4 * MB
HOFF   = 6 * MB
OOFF   = 8 * MB
X1OFF  = 10 * MB
GOFF   = 12 * MB
W2F    = 18 * MB
WOF    = 18 * MB + 512 * 1024
W3F    = 19 * MB
W4F    = 20 * MB + 512 * 1024
STAT   = 22 * MB
X1STAT = 22 * MB + 512 * 1024
ROFF   = 23 * MB
FLAGS  = 28 * MB
OFLAG  = 28 * MB + 8192
CS3P   = 28 * MB + 65536
TSOFF  = 30 * MB
KEEPOFF = 36 * MB
WS_USED = 40 * MB
import os
STAMP = os.environ.get('STAMP', '0') == '1'

EPS = 1e-5
LOG2E = 1.4426950408889634
QSCALE = 0.25 * LOG2E
GELU_K1 = -2.0 * LOG2E * 0.7978845608028654
GELU_K2 = GELU_K1 * 0.044715


class Asm:
    def __init__(self, name):
        self.name = name
        self.L = []
        self.nlab = 0

    def e(self, s):
        for line in s.split("\n"):
            line = line.strip()
            if line:
                if line.endswith(":"):
                    self.L.append(line)
                else:
                    self.L.append("    " + line)

    def c(self, s):
        self.L.append("    ; " + s)

    def lab(self, base):
        self.nlab += 1
        return f"L_{self.name}_{base}_{self.nlab}"

    def srd(self, d, base, nbytes):
        self.e(f"s_mov_b32 s{d}, s{base}")
        self.e(f"s_and_b32 s{d+1}, s{base+1}, 0xffff")
        self.e(f"s_mov_b32 s{d+2}, {nbytes}")
        self.e(f"s_mov_b32 s{d+3}, 0x00020000")

    def text(self):
        return "\n".join(self.L)

    def kernel(self, vgpr, sgpr=102, accum=None):
        kn = self.name + "_kernel"
        acc = accum if accum is not None else (vgpr + 3) // 4 * 4
        head = f""".globl {kn}
.p2align 8
.type {kn},@function
{kn}:
"""
        desc = f""".amdhsa_kernel {kn}
  .amdhsa_next_free_vgpr {vgpr}
  .amdhsa_next_free_sgpr {102 if STAMP else sgpr}
  .amdhsa_accum_offset {acc}
  .amdhsa_group_segment_fixed_size 0
  .amdhsa_kernarg_size 88
  .amdhsa_user_sgpr_count 2
  .amdhsa_user_sgpr_kernarg_segment_ptr 1
  .amdhsa_system_sgpr_workgroup_id_x 1
.end_amdhsa_kernel
"""
        return head + self.text() + "\n", desc


def vr(a, n=1):
    return f"v{a}" if n == 1 else f"v[{a}:{a+n-1}]"


def sr(a, n=1):
    return f"s{a}" if n == 1 else f"s[{a}:{a+n-1}]"


def emit_gelu(a, x, t0, t1, sK1, sK2):
    a.e(f"v_mul_f32 v{t0}, v{x}, v{x}")
    a.e(f"v_mov_b32 v{t1}, s{sK1}")
    a.e(f"v_fma_f32 v{t0}, v{t0}, s{sK2}, v{t1}")
    a.e(f"v_mul_f32 v{t0}, v{t0}, v{x}")
    a.e(f"v_exp_f32 v{t0}, v{t0}")
    a.e("s_nop 0")
    a.e(f"v_add_f32 v{t0}, 1.0, v{t0}")
    a.e(f"v_rcp_f32 v{t0}, v{t0}")
    a.e("s_nop 0")
    a.e(f"v_mul_f32 v{x}, v{x}, v{t0}")


def emit_gelu_block(a, xs, ts, vK1, sK2):
    assert len(ts) >= len(xs) and len(xs) >= 2
    for x, t in zip(xs, ts): a.e(f"v_mul_f32 v{t}, v{x}, v{x}")
    for x, t in zip(xs, ts): a.e(f"v_fma_f32 v{t}, v{t}, s{sK2}, v{vK1}")
    for x, t in zip(xs, ts): a.e(f"v_mul_f32 v{t}, v{t}, v{x}")
    for x, t in zip(xs, ts): a.e(f"v_exp_f32 v{t}, v{t}")
    for x, t in zip(xs, ts): a.e(f"v_add_f32 v{t}, 1.0, v{t}")
    for x, t in zip(xs, ts): a.e(f"v_rcp_f32 v{t}, v{t}")
    for x, t in zip(xs, ts): a.e(f"v_mul_f32 v{x}, v{x}, v{t}")


class Stamper:
    def __init__(self, a, base, kidx):
        self.a = a; self.base = base; self.n = 0; self.kidx = kidx
    def stamp(self):
        if not STAMP: return
        b = self.base + 2 * self.n
        if self.n == 0 and not getattr(self, "rt", False):
            self.rt = True
            self.a.e(f"s_memrealtime s[98:99]")
        self.a.e(f"s_memtime s[{b}:{b+1}]")
        self.n += 1
    def dump(self, srd, swave, nwaves, vt0, vt1):
        if not STAMP: return
        a = self.a
        a.e("s_memrealtime s[100:101]")
        a.e("s_waitcnt lgkmcnt(0)")
        a.e(f"s_add_u32 s3, s2, {self.kidx*512}")
        a.e("s_lshl_b32 s3, s3, 4")
        a.e(f"s_add_u32 s3, s3, s{swave}")
        a.e("s_lshl_b32 s3, s3, 6")
        a.e(f"s_add_u32 s3, s3, {TSOFF}")
        a.e(f"v_mov_b32 v{vt1}, 0")
        a.e("s_mov_b64 exec, 1")
        for i in range(self.n):
            a.e(f"v_mov_b32 v{vt0}, s{self.base+2*i}")
            a.e(f"buffer_store_dword v{vt0}, v{vt1}, s[{srd}:{srd+3}], s3 offen offset:{4*i}")
            a.e("s_nop 1")
        for i, sreg in ((14, 98), (15, 100)):
            a.e(f"v_mov_b32 v{vt0}, s{sreg}")
            a.e(f"buffer_store_dword v{vt0}, v{vt1}, s[{srd}:{srd+3}], s3 offen offset:{4*i}")
            a.e("s_nop 1")


def emit_gelu_pk(a, x, n, t, vK1, sK2):
    P = lambda r: f"v[{r}:{r+1}]"
    for i in range(0, n, 2): a.e(f"v_pk_mul_f32 {P(t+i)}, {P(x+i)}, {P(x+i)}")
    for i in range(0, n, 2): a.e(f"v_pk_fma_f32 {P(t+i)}, {P(t+i)}, s[{sK2}:{sK2+1}], {P(vK1)} op_sel_hi:[1,1,0]")
    for i in range(0, n, 2): a.e(f"v_pk_mul_f32 {P(t+i)}, {P(t+i)}, {P(x+i)}")
    for i in range(n): a.e(f"v_exp_f32 v{t+i}, v{t+i}")
    for i in range(0, n, 2): a.e(f"v_pk_add_f32 {P(t+i)}, {P(t+i)}, 1.0 op_sel_hi:[1,0]")
    for i in range(n): a.e(f"v_rcp_f32 v{t+i}, v{t+i}")
    for i in range(0, n, 2): a.e(f"v_pk_mul_f32 {P(x+i)}, {P(x+i)}, {P(t+i)}")
```

```python
from common import *

L_CS = 131072
L_ST = L_CS + 512
L_PR = L_ST + 2048
PR_PITCH = 1088
K1_LDS = L_PR + 16 * PR_PITCH


def gen_k1():
    a = Asm("k1")
    e = a.e
    L_exit = "L_k1_exit"
    T = Stamper(a, 78, 0)
    T.stamp()
    e("s_cmp_ge_u32 s2, 256")
    e(f"s_cbranch_scc1 {L_exit}")
    e("s_load_dwordx4 s[4:7], s[0:1], 0")
    e("s_load_dwordx4 s[8:11], s[0:1], 16")
    e("s_load_dwordx4 s[12:15], s[0:1], 32")
    e("s_load_dwordx4 s[16:19], s[0:1], 48")
    e("s_load_dwordx2 s[20:21], s[0:1], 80")
    e("v_lshrrev_b32 v1, 6, v0")
    e("s_and_b32 s54, s2, 7")
    e("v_readfirstlane_b32 s42, v1")
    e("v_and_b32 v1, 63, v0")
    e("s_lshr_b32 s55, s2, 3")
    e("s_lshr_b32 s40, s54, 1")
    e("s_lshl_b32 s40, s40, 2")
    e("s_and_b32 s56, s55, 3")
    e("s_add_u32 s40, s40, s56")
    e("s_and_b32 s41, s54, 1")
    e("s_lshl_b32 s41, s41, 3")
    e("s_lshr_b32 s56, s55, 2")
    e("s_add_u32 s41, s41, s56")
    e("s_and_b32 s45, s42, 3")
    e("s_cmp_lt_u32 s42, 4")
    e("s_cbranch_scc1 L_k1_compute")
    e("s_cmp_ge_u32 s42, 8")
    e("s_cbranch_scc1 L_k1_stat")

    def prep_decode(tag):
        Lp = {k: f"L_k1_{tag}{k}" for k in ("w2", "wo", "w4", "w3", "go")}
        e("s_mov_b32 s62, 0"); e("s_mov_b32 s61, 32"); e("s_mov_b32 s63, 1024"); e("s_mov_b32 s59, 16"); e("s_mov_b32 s73, 0")
        e(f"s_mov_b32 s38, {512*1024}")
        e("s_mov_b32 s56, s2")
        e("s_cmp_lt_u32 s2, 32");  e(f"s_cbranch_scc1 {Lp['w2']}")
        e("s_cmp_lt_u32 s2, 64");  e(f"s_cbranch_scc1 {Lp['wo']}")
        e("s_cmp_lt_u32 s2, 150"); e(f"s_cbranch_scc1 {Lp['w4']}")
        e("s_cmp_lt_u32 s2, 246"); e(f"s_cbranch_scc1 {Lp['w3']}")
        e("s_mov_b32 s38, 0"); e("s_mov_b32 s59, 0"); e("s_mov_b32 s56, 0")
        e(f"{Lp['w2']}:")
        e("s_mov_b32 s36, s14"); e("s_mov_b32 s37, s15"); e(f"s_mov_b32 s60, {W2F}")
        e(f"s_branch {Lp['go']}")
        e(f"{Lp['wo']}:")
        e("s_mov_b32 s36, s8"); e("s_mov_b32 s37, s9"); e(f"s_mov_b32 s60, {WOF}")
        e("s_sub_u32 s56, s2, 32"); e("s_mov_b32 s73, 1")
        e(f"s_branch {Lp['go']}")
        e(f"{Lp['w4']}:")
        e("s_mov_b32 s36, s18"); e("s_mov_b32 s37, s19"); e(f"s_mov_b32 s38, {1376*1024}")
        e("s_sub_u32 s56, s2, 64"); e(f"s_mov_b32 s60, {W4F}"); e("s_mov_b32 s61, 86")
        e(f"s_branch {Lp['go']}")
        e(f"{Lp['w3']}:")
        e("s_mov_b32 s36, s16"); e("s_mov_b32 s37, s17"); e(f"s_mov_b32 s38, {512*2752}")
        e("s_sub_u32 s56, s2, 150")
        e("s_lshr_b32 s62, s56, 5")
        e("s_and_b32 s56, s56, 31")
        e(f"s_mov_b32 s60, {W3F}"); e("s_mov_b32 s63, 2752")
        e("s_cmp_eq_u32 s62, 2")
        e("s_cselect_b32 s59, 11, 16")
        e(f"{Lp['go']}:")

    e("s_lshl_b32 s54, s40, 7")
    e("s_lshl_b32 s55, s45, 5")
    e("s_add_u32 s54, s54, s55")
    e("v_lshrrev_b32 v56, 3, v1")
    e("v_add_u32 v56, s54, v56")
    e("v_lshlrev_b32 v56, 10, v56")
    e("v_lshrrev_b32 v57, 4, v1")
    e("v_and_b32 v58, 7, v1")
    e("v_xor_b32 v59, v58, v57")
    e("v_xor_b32 v60, 4, v59")
    e("v_lshl_add_u32 v2, v59, 4, v56")
    e("v_lshl_add_u32 v3, v60, 4, v56")
    e(f"v_add_u32 v4, {2*8192 - 2048}, v2")
    e(f"v_add_u32 v5, {3*8192 - 3072}, v3")
    e(f"v_add_u32 v3, {8192 - 1024}, v3")
    e("s_lshr_b32 s46, s45, 1")
    e("s_lshl_b32 s44, s41, 1")
    e("s_sub_u32 s44, s44, 8")
    e("s_add_u32 s44, s44, s46")
    e("s_cmp_lt_u32 s41, 8")
    e("s_cselect_b32 s44, s41, s44")
    e("s_cselect_b32 s54, s46, 0")
    e(f"s_mov_b32 s30, {512*3072}")
    e("s_mov_b32 s43, 3072")
    e("s_cmp_eq_u32 s54, 1")
    e(f"s_cselect_b32 s30, {512*1024}, s30")
    e("s_cselect_b32 s43, 1024, s43")
    e("s_waitcnt lgkmcnt(0)")
    e("s_cselect_b32 s28, s12, s6")
    e("s_cselect_b32 s29, s13, s7")
    e("s_and_b32 s29, s29, 0xffff")
    e("s_mov_b32 s31, 0x00020000")
    a.srd(24, 4, 2048 * 1024)
    e("s_lshl_b32 s44, s44, 7")
    e("s_lshl_b32 s53, s43, 6")
    e("v_lshrrev_b32 v58, 3, v1")
    e("v_mul_lo_u32 v58, v58, s43")
    e("v_and_b32 v59, 7, v1")
    e("v_bfe_u32 v60, v1, 4, 1")
    e("v_lshlrev_b32 v60, 2, v60")
    e("v_xor_b32 v59, v59, v60")
    e("v_lshl_add_u32 v58, v59, 4, v58")
    e("v_add_u32 v6, s44, v58")
    e("s_and_b32 s54, s45, 1")
    e("s_lshl_b32 s54, s54, 5")
    e("s_mul_i32 s48, s54, s43")
    e("s_lshl_b32 s54, s43, 3")
    e("s_sub_u32 s54, s54, 1024")
    e("s_add_u32 s49, s48, s54")
    e("s_add_u32 s50, s49, s54")
    e("s_add_u32 s51, s50, s54")
    e("s_mov_b32 s52, 0")
    e("s_lshl_b32 s47, s45, 12")

    def issue_stage(st):
        b = st % 4
        if os.environ.get("K1_NOLOAD") == "1": return
        e(f"s_add_u32 m0, s47, {b*16384}")
        e("s_nop 0")
        for u in range(4):
            e(f"buffer_load_dwordx4 v{2+u}, s[24:27], s52 offen offset:{1024*u} lds")
        e(f"s_add_u32 m0, s47, {65536 + b*16384}")
        e("s_add_u32 s52, s52, 128")
        for u in range(4):
            e(f"buffer_load_dwordx4 v6, s[28:31], s{48+u} offen offset:{1024*u} lds")
        for u in range(4):
            e(f"s_add_u32 s{48+u}, s{48+u}, s53")

    def prep_loads():
        prep_decode("l")
        e("s_and_b32 s37, s37, 0xffff")
        e("s_mov_b32 s39, 0x00020000")
        e("s_lshl_b32 s54, s56, 4")
        e("s_lshl_b32 s55, s45, 2")
        e("s_add_u32 s54, s54, s55")
        e("s_mul_i32 s54, s54, s63")
        e("s_lshl_b32 s55, s62, 10")
        e("s_add_u32 s54, s54, s55")
        e(f"s_mul_i32 s55, s45, {4*PR_PITCH}")
        e(f"s_add_u32 s55, s55, {L_PR}")
        e("v_lshlrev_b32 v56, 4, v1")
        for u in range(4):
            e(f"s_add_u32 m0, s55, {u*PR_PITCH}")
            e("s_nop 0")
            e(f"buffer_load_dwordx4 v56, s[36:39], s54 offen lds")
            e("s_add_u32 s54, s54, s63")

    def wb(n):
        e(f"s_waitcnt vmcnt({n})")
        e("s_barrier")

    issue_stage(0); issue_stage(1)
    T.stamp()
    wb(8)
    T.stamp()
    issue_stage(2); issue_stage(3)
    wb(16)
    issue_stage(4); prep_loads()
    wb(20)
    issue_stage(5)
    wb(20)
    issue_stage(6)
    wb(20)
    T.stamp()
    issue_stage(7)
    wb(16)
    wb(8)
    wb(0)
    T.stamp()
    if STAMP:
        a.srd(32, 20, WS_USED)
        T.dump(32, 42, 8, 60, 61)
    e("s_endpgm")

    e("L_k1_stat:")
    e("v_and_b32 v56, 31, v1")
    e("v_lshrrev_b32 v57, 5, v1")
    e("s_lshl_b32 s54, s45, 5")
    e("v_add_u32 v56, s54, v56")
    e("v_lshlrev_b32 v56, 7, v56")
    e("v_bfe_u32 v58, v1, 1, 3")
    e("v_xor_b32 v58, v57, v58")
    for ks in range(4):
        e(f"v_xor_b32 v59, {2*ks}, v58")
        e(f"v_lshl_add_u32 v{8+ks}, v59, 4, v56")
    for r in range(12, 16): e(f"v_mov_b32 v{r}, 0")
    e("s_mov_b32 s72, 0xffff0000")
    e("s_mov_b32 s71, 0xffff")
    e("s_waitcnt lgkmcnt(0)")
    a.srd(32, 20, WS_USED)
    e("s_cmp_ge_u32 s2, 32")
    e("s_cbranch_scc1 L_k1_noflag")
    e("s_cmp_lg_u32 s45, 0")
    e("s_cbranch_scc1 L_k1_noflag")
    e("s_lshl_b32 s54, s2, 8")
    e(f"s_add_u32 s54, s54, {FLAGS}")
    e("v_lshlrev_b32 v58, 2, v1")
    e("buffer_store_dword v12, v58, s[32:35], s54 offen")
    e("L_k1_noflag:")
    prep_decode("s")
    e("s_add_u32 s54, s73, 2")
    e("v_lshlrev_b32 v56, s54, v57")
    e("v_bfe_u32 v58, v1, 2, 2")
    e("v_add_u32 v56, v56, v58")
    e(f"v_mul_u32_u24 v56, {PR_PITCH}, v56")
    e("v_and_b32 v58, 3, v1")
    e("v_lshl_add_u32 v56, v58, 3, v56")
    e("v_bfe_u32 v58, v1, 4, 1")
    e("v_lshl_add_u32 v56, v58, 5, v56")
    e("s_lshl_b32 s54, s45, 8")
    e(f"s_add_u32 s54, s54, {L_PR}")
    e("v_add_u32 v2, s54, v56")
    e(f"s_mov_b32 s54, {8*PR_PITCH}")
    e("s_cmp_eq_u32 s73, 1")
    e(f"s_cselect_b32 s54, {4*PR_PITCH}, s54")
    e("v_add_u32 v3, s54, v2")
    e("v_lshlrev_b32 v4, 4, v1")
    e("s_lshl_b32 s54, s62, 4")
    e("s_lshl_b32 s55, s45, 2")
    e("s_add_u32 s54, s54, s55")
    e("s_mul_i32 s54, s54, s61")
    e("s_add_u32 s54, s54, s56")
    e("s_lshl_b32 s54, s54, 10")
    e("s_add_u32 s60, s60, s54")
    e("s_lshl_b32 s61, s61, 10")
    e("s_sub_i32 s59, s59, s55")
    e("s_mov_b32 s70, 0")
    for r in range(40, 56): e(f"v_mov_b32 v{r}, 0")
    def process(b):
        if os.environ.get("K1_NOSTAT") == "1": return
        for d in range(16):
            t = 32 + 2 * (d & 3)
            e(f"v_lshlrev_b32 v{t}, 16, v{b+d}")
            e(f"v_and_b32 v{t+1}, s72, v{b+d}")
            if d >= 1:
                t2 = 32 + 2 * ((d - 1) & 3)
                e(f"v_fmac_f32 v{12 + 2*(d&1)}, v{t2}, v{t2}")
                e(f"v_fmac_f32 v{13 + 2*(d&1)}, v{t2+1}, v{t2+1}")
        e("v_fmac_f32 v12, v38, v38")
        e("v_fmac_f32 v13, v39, v39")
    e("L_k1_sloop:")
    for half, (cur, prev) in enumerate(((16, 40), (40, 16))):
        e("s_barrier")
        for ks in range(4):
            e(f"ds_read_b128 v[{cur+4*ks}:{cur+3+4*ks}], v{8+ks} offset:{16384*half}")
        if half == 1:
            e("s_cmp_lg_u32 s70, 2")
            e("s_cbranch_scc1 L_k1_snoprep")
            for i in range(4):
                e(f"ds_read_b64_tr_b16 v[{56+4*i}:{57+4*i}], v2 offset:{64*i}")
                e(f"ds_read_b64_tr_b16 v[{58+4*i}:{59+4*i}], v3 offset:{64*i}")
            e("s_waitcnt lgkmcnt(0)")
            for i in range(4):
                e(f"s_cmp_le_i32 s59, {i}")
                e("s_cbranch_scc1 L_k1_snoprep")
                e(f"buffer_store_dwordx4 v[{56+4*i}:{59+4*i}], v4, s[32:35], s60 offen")
                e("s_add_u32 s60, s60, s61")
            e("L_k1_snoprep:")
            for r in range(8, 12):
                e(f"v_xor_b32 v{r}, 0x8000, v{r}")
        process(prev)
        e("s_waitcnt lgkmcnt(0)")
    e("s_add_u32 s70, s70, 1")
    e("s_cmp_lt_u32 s70, 4")
    e("s_cbranch_scc1 L_k1_sloop")
    process(40)
    e("v_add_f32 v12, v12, v13")
    e("v_add_f32 v14, v14, v15")
    e("s_lshl_b32 s54, s45, 9")
    e(f"s_add_u32 s54, s54, {L_ST}")
    e("v_lshl_add_u32 v56, v1, 2, s54")
    e("v_add_f32 v12, v12, v14")
    e("ds_write_b32 v56, v12 offset:256")
    e("s_waitcnt lgkmcnt(0)")
    e("s_barrier")
    e("s_endpgm")

    e("L_k1_compute:")
    e("v_and_b32 v8, 31, v1")
    e("v_lshrrev_b32 v9, 5, v1")
    e("s_lshl_b32 s54, s45, 5")
    e("v_add_u32 v10, s54, v8")
    e("v_lshlrev_b32 v10, 7, v10")
    e("v_bfe_u32 v11, v1, 1, 3")
    e("v_xor_b32 v11, v9, v11")
    for ks in range(4):
        e(f"v_xor_b32 v12, {2*ks}, v11")
        e(f"v_lshl_add_u32 v{2+ks}, v12, 4, v10")
    e("v_bfe_u32 v10, v1, 2, 2")
    e("v_lshl_add_u32 v10, v9, 3, v10")
    e("v_lshlrev_b32 v10, 7, v10")
    e("v_and_b32 v11, 3, v1")
    e("v_lshl_add_u32 v10, v11, 3, v10")
    e("v_bfe_u32 v11, v1, 3, 1")
    e("v_lshl_add_u32 v10, v11, 6, v10")
    e("v_bfe_u32 v11, v1, 4, 1")
    e("v_lshl_add_u32 v10, v11, 5, v10")
    e("v_add_u32 v6, 65536, v10")
    e("v_xor_b32 v16, 64, v6")
    e("v_xor_b32 v10, v11, v1")
    e("v_and_b32 v10, 1, v10")
    e("v_cmp_eq_u32 vcc, 0, v10")
    e("v_mov_b32 v10, 0x3f803f80")
    e("v_cmp_eq_u32 s[76:77], 1, v11")
    e("v_cndmask_b32 v12, 0, v10, vcc")
    e("v_mov_b32 v13, v12")
    e("v_mov_b32 v14, v12")
    e("v_mov_b32 v15, v12")
    e("s_lshr_b32 s54, s45, 1")
    e("s_lshl_b32 s54, s54, 13")
    e("s_and_b32 s55, s45, 1")
    e("s_lshl_b32 s55, s55, 6")
    e("v_xor_b32 v7, s55, v6")
    e("v_add_u32 v7, s54, v7")
    e("s_mov_b32 s73, 0xffff")
    e("s_mov_b32 s74, 0x10000")
    e("s_waitcnt lgkmcnt(0)")
    a.srd(32, 20, WS_USED)

    def X(s): return 32 + 24 * s
    def W(s, j): return 36 + 24 * s + 4 * j
    def ACC(j): return 96 + 16 * j

    def reads(ks, s):
        R = [f"ds_read_b128 v[{X(s)}:{X(s)+3}], v{2+ks}"]
        for j in range(4):
            for t in range(2):
                R.append(f"ds_read_b64_tr_b16 v[{W(s,j)+2*t}:{W(s,j)+2*t+1}], v{16 if j&1 else 6} offset:{(j>>1)*8192 + (16*ks+4*t)*128}")
        for t in range(2):
            R.append(f"ds_read_b64_tr_b16 v[{W(s,4)+2*t}:{W(s,4)+2*t+1}], v7 offset:{(16*ks+4*t)*128}")
        return R

    def updx(r):
        return [f"v_add_u32 v{r}, 16384, v{r}", f"v_and_b32 v{r}, s73, v{r}"]
    def updw(r):
        return [f"v_add_u32 v{r}, 16384, v{r}", f"v_and_b32 v{r}, s73, v{r}", f"v_or_b32 v{r}, s74, v{r}"]

    for r in list(range(24, 32)) + list(range(96, 160)):
        e(f"v_mov_b32 v{r}, 0")
    T.n = 1
    T.stamp()
    e("s_barrier")
    T.stamp()
    for r in reads(0, 0): e(r)
    for v in updx(2): e(v)
    e("s_mov_b32 s70, 8")
    e("L_k1_loop:")
    s = 0
    for ks in range(4):
        R = reads((ks + 1) % 4, 1 - s)
        M = [f"v_mfma_f32_32x32x16_bf16 v[{ACC(j)}:{ACC(j)+15}], v[{W(s,j)}:{W(s,j)+3}], v[{X(s)}:{X(s)+3}], v[{ACC(j)}:{ACC(j)+15}]" for j in range(4)]
        M.append(f"v_mfma_f32_16x16x32_bf16 v[28:31], v[12:15], v[{X(s)}:{X(s)+3}], v[28:31]")
        M.append(f"v_mfma_f32_16x16x32_bf16 v[24:27], v[12:15], v[{W(s,4)}:{W(s,4)+3}], v[24:27]")
        if os.environ.get("K1_NOMFMA") == "1": M[:4] = ["s_nop 0"]*4
        if os.environ.get("K1_NOREAD") == "1": R = [""]*11
        if os.environ.get("K1_NOM16") == "1": M[4:] = ["", ""]
        if ks < 3:
            e("s_waitcnt lgkmcnt(8)")
            e(M[0])
            for r in R[0:4]: e(r)
            e("s_waitcnt lgkmcnt(10)")
            e(M[1])
            for r in R[4:8]: e(r)
            e("s_waitcnt lgkmcnt(12)")
            e(M[2])
            for r in R[8:11]: e(r)
            e("s_waitcnt lgkmcnt(13)")
            e(M[3])
            for v in updx(2 + ks + 1): e(v)
            if ks == 2:
                for v in updw(6): e(v)
            e(M[4])
            e("s_waitcnt lgkmcnt(11)")
            if ks == 2:
                for v in updw(16): e(v)
            e(M[5])
            if ks == 2:
                for v in updw(7): e(v)
        else:
            e("s_waitcnt lgkmcnt(8)")
            e(M[0])
            e("s_sub_u32 s70, s70, 1")
            e("s_waitcnt lgkmcnt(6)")
            e(M[1])
            e("s_waitcnt lgkmcnt(0)")
            e("s_cmp_eq_u32 s70, 0")
            e("s_cbranch_scc1 L_k1_nobar")
            e("s_barrier")
            e("L_k1_nobar:")
            for r in R[0:3]: e(r)
            e(M[2])
            for r in R[3:7]: e(r)
            e(M[3])
            for r in R[7:11]: e(r)
            e(M[4])
            for v in updx(2): e(v)
            e(M[5])
        s = 1 - s
    e("s_cmp_lg_u32 s70, 0")
    e("s_cbranch_scc1 L_k1_loop")
    T.stamp()

    e("s_lshl_b32 s54, s45, 7")
    e(f"s_add_u32 s54, s54, {L_CS}")
    e("v_lshl_add_u32 v7, v8, 2, s54")
    e("s_lshl_b32 s54, s45, 9")
    e(f"s_add_u32 s54, s54, {L_ST}")
    e("v_lshl_add_u32 v6, v8, 2, s54")
    e("s_lshl_b32 s58, s40, 2")
    e("s_add_u32 s58, s58, s45")
    e("s_nop 2")
    e("v_cndmask_b32 v24, v24, v25, s[76:77]")
    e("ds_write_b32 v7, v24")
    e("v_cndmask_b32 v24, v28, v29, s[76:77]")
    e("v_lshlrev_b32 v20, 4, v1")
    e("v_lshlrev_b32 v21, 5, v8")
    e("v_lshl_add_u32 v21, v9, 4, v21")
    e("s_lshr_b32 s57, s41, 1")
    e("s_lshr_b32 s54, s57, 1")
    e("s_add_u32 s54, s54, 1")
    e("s_sub_u32 s55, 0, s54")
    e("s_bitcmp1_b32 s57, 0")
    e("s_cselect_b32 s54, s55, s54")
    e("s_lshl_b32 s55, s58, 5")
    e("s_add_u32 s55, s55, s54")
    e("v_add_u32 v22, s55, v8")
    e("v_cmp_gt_u32 vcc, 2048, v22")
    e("v_and_b32 v22, 2047, v22")
    e("v_lshrrev_b32 v23, 5, v22")
    e("v_lshlrev_b32 v23, 15, v23")
    e("v_and_b32 v22, 31, v22")
    e("v_lshl_add_u32 v23, v22, 4, v23")
    e("v_lshl_add_u32 v23, v9, 9, v23")
    e("v_cndmask_b32 v22, 0, 1.0, vcc")
    e(f"v_lshlrev_b32 v7, 4, v9")
    e(f"v_add_u32 v7, {L_CS}, v7")
    e("s_waitcnt lgkmcnt(0)")
    T.stamp()
    e("s_barrier")
    T.stamp()
    e("ds_read_b32 v16, v6 offset:256")
    e("ds_read_b32 v17, v6 offset:384")
    for j in range(4):
        for g in range(4):
            if j == 3 and g == 1: e("s_waitcnt lgkmcnt(13)")
            e(f"ds_read_b128 v[{32+16*j+4*g}:{35+16*j+4*g}], v7 offset:{128*j+32*g}")
    e("v_add_f32 v16, v16, v17")
    e(f"v_mul_f32 v24, {f32(1.0/512)}, v24")
    e(f"v_mul_f32 v16, {f32(1.0/512)}, v16")
    e("v_fma_f32 v16, -v24, v24, v16")
    e("v_max_f32 v16, 0, v16")
    e(f"v_add_f32 v17, {f32(EPS)}, v16")
    e("v_rsq_f32 v25, v17")
    e(f"v_mov_b32 v19, {f32(EPS)}")
    e("v_mul_f32 v18, v25, v25")
    e("v_fma_f32 v18, v18, v16, v19")
    e("v_rsq_f32 v18, v18")
    e("v_mul_f32 v26, v24, v25")
    e("v_sub_f32 v26, 0, v26")
    e("v_mul_f32 v18, v18, v22")
    e("s_cmp_lg_u32 s41, 0")
    e("s_cbranch_scc1 L_k1_nostat")
    e("s_lshl_b32 s54, s58, 8")
    e(f"s_add_u32 s54, s54, {STAT}")
    e("v_lshlrev_b32 v19, 3, v8")
    e("buffer_store_dwordx2 v[24:25], v19, s[32:35], s54 offen")
    e("L_k1_nostat:")
    e("s_lshl_b32 s56, s41, 2")
    e("s_sub_u32 s56, s56, 16")
    e("s_lshl_b32 s54, s41, 1")
    e("s_cmp_lt_u32 s41, 8")
    e("s_cselect_b32 s56, s54, s56")
    e(f"s_mov_b32 s60, {f32(QSCALE)}")
    e(f"s_mov_b32 s62, {f32(GELU_K2)}")
    e(f"s_mov_b32 s63, {f32(GELU_K2)}")
    e(f"v_mov_b32 v16, {f32(GELU_K1)}")
    e("s_waitcnt lgkmcnt(0)")
    OUT = [160, 32, 48, 64]
    def tile(j, ish):
        c = ACC(j)
        if not ish:
            e(f"s_add_u32 s55, s56, {j}")
            e("s_cmp_lt_u32 s55, 16")
            e("s_cselect_b32 s54, s60, 1.0")
            e("v_mul_f32 v28, s54, v25")
            e("v_mul_f32 v30, s54, v26")
            e("s_cmp_ge_u32 s55, 32")
            e("s_cselect_b64 vcc, -1, 0")
            e("s_lshl_b32 s55, s55, 7")
            e("s_add_u32 s55, s55, s58")
            e("s_lshl_b32 s55, s55, 10")
            e("s_add_u32 s59, s55, 65536")
            e("v_cndmask_b32 v27, v20, v21, vcc")
        else:
            e("v_mul_f32 v28, v18, v25")
            e("v_mul_f32 v30, v18, v26")
            e("s_lshl_b32 s55, s41, 12")
            e(f"s_add_u32 s55, s55, {HOFF + (j-2)*2048}")
        cs = 32 + 16 * j
        for r in range(0, 16, 2):
            e(f"v_pk_mul_f32 v[{cs+r}:{cs+r+1}], v[{cs+r}:{cs+r+1}], v[30:31] op_sel_hi:[1,0]")
        for r in range(0, 16, 2):
            e(f"v_pk_fma_f32 v[{c+r}:{c+r+1}], v[{c+r}:{c+r+1}], v[28:29], v[{cs+r}:{cs+r+1}] op_sel_hi:[1,0,1]")
        if ish:
            emit_gelu_pk(a, c, 16, cs, 16, 62)
        o = OUT[j]
        for p in range(8):
            e(f"v_cvt_pk_bf16_f32 v{o+p}, v{c+2*p}, v{c+2*p+1}")
        if not ish:
            e(f"buffer_store_dwordx4 v[{o}:{o+3}], v27, s[32:35], s55 offen")
            e(f"buffer_store_dwordx4 v[{o+4}:{o+7}], v27, s[32:35], s59 offen")
        else:
            e(f"buffer_store_dwordx4 v[{o}:{o+3}], v23, s[32:35], s55 offen")
            e(f"buffer_store_dwordx4 v[{o+4}:{o+7}], v23, s[32:35], s55 offen offset:1024")
    tile(0, False)
    T.stamp()
    tile(1, False)
    e("s_cmp_lt_u32 s41, 8")
    e("s_cbranch_scc1 L_k1_htiles")
    tile(2, False)
    tile(3, False)
    e("s_branch L_k1_fin")
    e("L_k1_htiles:")
    tile(2, True)
    tile(3, True)
    e("L_k1_fin:")
    T.stamp()
    T.dump(32, 42, 8, 60, 61)
    e(f"{L_exit}:")
    e("s_endpgm")
    return a.kernel(vgpr=168, sgpr=96)
```

```python
from common import *
from bchain import *

L_V = 0
L_ONES = 65536
L_PAIR = L_ONES + 6144
L_B = L_PAIR + 8 * 3072
L_FLG = L_B + 65536
K2_LDS = L_FLG + 256
SPIN_MAX = 1 << 22


def lds_signal(a, idx, va, vb):
    e = a.e
    e(f"v_mov_b32 v{va}, {L_FLG + 4*idx}")
    e(f"v_mov_b32 v{vb}, 1")
    e("s_mov_b64 exec, 1")
    e(f"ds_add_u32 v{va}, v{vb}")
    e("s_mov_b64 exec, -1")


def lds_wait(a, tag, idx, target, va, vb, s0, s1, sleep=1):
    e = a.e
    e(f"v_mov_b32 v{va}, {L_FLG + 4*idx}")
    e(f"s_mov_b32 s{s0}, {SPIN_MAX}")
    e(f"L_{a.name}_lw{tag}:")
    e(f"ds_read_b32 v{vb}, v{va}")
    e("s_waitcnt lgkmcnt(0)")
    e(f"v_readfirstlane_b32 s{s1}, v{vb}")
    e(f"s_cmp_ge_u32 s{s1}, {target}")
    e(f"s_cbranch_scc1 L_{a.name}_lw{tag}_go")
    e(f"s_sleep {sleep}")
    e(f"s_sub_u32 s{s0}, s{s0}, 1")
    e(f"s_cmp_lg_u32 s{s0}, 0")
    e(f"s_cbranch_scc1 L_{a.name}_lw{tag}")
    e(f"L_{a.name}_lw{tag}_go:")


def attn_wave(a, T):
    e = a.e; n = a.name
    e("s_and_b32 s46, s45, 3")
    e("s_lshr_b32 s47, s45, 2")
    e("s_lshl_b32 s48, s41, 3")
    e("s_lshl_b32 s49, s46, 1")
    e("s_add_u32 s48, s48, s49")
    e("s_add_u32 s48, s48, s47")
    e("s_xor_b32 s49, s48, 1")
    e("s_lshl_b32 s50, s40, 6")
    e("s_add_u32 s51, s50, s48"); e("s_lshl_b32 s51, s51, 10")
    e("s_add_u32 s52, s50, s49"); e("s_lshl_b32 s52, s52, 10")
    e("buffer_load_dwordx4 v[8:11], v2, s[32:35], s51 offen")
    e("buffer_load_dwordx4 v[12:15], v2, s[32:35], s52 offen")
    e("s_lshl_b32 s53, s47, 5")
    e("s_add_u32 s53, s53, s50")
    e("s_lshl_b32 s53, s53, 10")
    e(f"s_add_u32 s53, s53, {KOFF}")
    e("buffer_load_dwordx4 v[112:115], v2, s[32:35], s53 offen")
    e("v_and_b32 v5, 1, v1")
    e("v_cmp_eq_u32 vcc, 0, v5")
    e("v_mov_b32 v5, 0x3f80")
    e("v_mov_b32 v33, 0"); e("v_mov_b32 v35, 0")
    e("v_cndmask_b32 v32, 0, v5, vcc")
    e("v_mov_b32 v34, v32")
    e("s_lshl_b32 s51, s45, 10")
    e(f"s_add_u32 s51, s51, {L_ONES}")
    e("v_add_u32 v3, s51, v2")
    e("s_cmp_ge_u32 s45, 6")
    e(f"s_cbranch_scc1 L_{n}_noones")
    e("ds_write_b128 v3, v[32:35]")
    e(f"L_{n}_noones:")
    e("s_waitcnt lgkmcnt(0)")
    lds_signal(a, 9, 5, 6)
    e("v_lshrrev_b32 v5, 5, v1")
    e("v_bfe_u32 v6, v1, 4, 1")
    e("v_xor_b32 v7, v5, v6")
    e("v_and_b32 v3, 15, v1")
    e("v_lshlrev_b32 v3, 3, v3")
    e("v_lshl_add_u32 v3, v7, 7, v3")
    e("s_lshl_b32 s51, s47, 15")
    e("v_mov_b32 v7, s51")
    e(f"v_mov_b32 v160, {L_ONES}")
    e("v_cmp_eq_u32 vcc, 1, v6")
    e("v_xor_b32 v4, 1, v6")
    e("v_lshlrev_b32 v4, 12, v4")
    e("v_cndmask_b32 v7, v7, v160, vcc")
    e("v_add_u32 v160, v7, v3")
    e("s_mov_b32 s56, 0")
    e("s_waitcnt vmcnt(0)")
    e("v_mfma_f32_32x32x16_bf16 v[32:47], v[112:115], v[8:11], 0")
    e("v_mfma_f32_32x32x16_bf16 v[48:63], v[112:115], v[12:15], 0")
    e("s_nop 7"); e("s_nop 3")
    for (m, S) in ((16, 32), (144, 48)):
        e(f"v_max3_f32 v{m}, v{S}, v{S+1}, v{S+2}")
        e(f"v_max3_f32 v{m+1}, v{S+3}, v{S+4}, v{S+5}")
        e(f"v_max3_f32 v{m}, v{m}, v{S+6}, v{S+7}")
        e(f"v_max3_f32 v{m+1}, v{m+1}, v{S+8}, v{S+9}")
        e(f"v_max3_f32 v{m}, v{m}, v{S+10}, v{S+11}")
        e(f"v_max3_f32 v{m+1}, v{m+1}, v{S+12}, v{S+13}")
        e(f"v_max3_f32 v{m}, v{m}, v{S+14}, v{S+15}")
    lds_wait(a, "c0", 9, 12, 5, 6, 51, 52)
    T.stamp()
    e(f"L_{n}_setmax:")
    e("v_max_f32 v16, v16, v17")
    e("v_max_f32 v144, v144, v145")
    e("v_mov_b32 v17, v16")
    e("v_mov_b32 v145, v144")
    e("s_mov_b32 s54, s53")
    e("v_mov_b32 v3, v160")
    e("v_permlane32_swap_b32 v16, v17")
    e("v_permlane32_swap_b32 v144, v145")
    for i in range(4):
        e(f"buffer_load_dwordx4 v[{112+4*i}:{115+4*i}], v2, s[32:35], s54 offen offset:{1024*i}")
    e("s_add_u32 s54, s54, 4096")
    for u in range(2):
        for t in range(2):
            e(f"ds_read_b64_tr_b16 v[{128+4*u+2*t}:{129+4*u+2*t}], v3 offset:{512*u+256*t}")
    e("v_max_f32 v16, v16, v17")
    e("v_max_f32 v144, v144, v145")
    e("v_sub_f32 v16, 0, v16")
    e("v_sub_f32 v144, 0, v144")
    for r in range(17, 32): e(f"v_mov_b32 v{r}, v16")
    for r in range(145, 160): e(f"v_mov_b32 v{r}, v144")
    for r in list(range(76, 112)) + list(range(136, 144)): e(f"v_mov_b32 v{r}, 0")
    e("s_waitcnt vmcnt(3)")
    e("v_mfma_f32_32x32x16_bf16 v[32:47], v[112:115], v[8:11], v[16:31]")
    e("s_nop 7")
    e("s_mov_b32 s55, 0")
    e(f"L_{n}_loop:")
    e("s_cmp_lg_u32 s55, 1")
    e(f"s_cbranch_scc1 L_{n}_nobar")
    lds_wait(a, "c1", 10, 4, 5, 6, 51, 52)
    e(f"L_{n}_nobar:")
    X = lambda r: e(f"v_exp_f32 v{r}, v{r}")
    def CV(d, s): e(f"v_cvt_pk_bf16_f32 v{d}, v{s}, v{s+1}")
    for tl in range(4):
        K = 112 + 4 * tl; Kn = 112 + 4 * ((tl + 1) % 4)
        V = 128 + 8 * (tl % 2); Vp = 128 + 8 * ((tl + 1) % 2)
        e(f"v_mfma_f32_32x32x16_bf16 v[48:63], v[{K}:{K+3}], v[12:15], v[144:159]")
        if os.environ.get("K2_NOKLOAD") != "1":
            e(f"buffer_load_dwordx4 v[{K}:{K+3}], v2, s[32:35], s54 offen offset:{1024*tl}")
        X(32); X(33); X(34)
        e(f"v_mfma_f32_32x32x16_bf16 v[96:111], v[{Vp+4}:{Vp+7}], v[76:79], v[96:111]")
        for u in range(2):
            for t in range(2):
                e(f"ds_read_b64_tr_b16 v[{Vp+4*u+2*t}:{Vp+4*u+2*t+1}], v3 offset:{1024*(tl+1)+512*u+256*t}")
        for i in range(3, 9): X(32 + i)
        for i in range(4): CV(64 + i, 32 + 2 * i)
        X(41); X(42)
        e("s_waitcnt lgkmcnt(4)")
        e(f"v_mfma_f32_32x32x16_bf16 v[80:95], v[{V}:{V+3}], v[64:67], v[80:95]")
        for i in range(11, 16): X(32 + i)
        X(48)
        for i in range(4, 8): CV(64 + i, 32 + 2 * i)
        X(49); X(50)
        e(f"v_mfma_f32_32x32x16_bf16 v[80:95], v[{V+4}:{V+7}], v[68:71], v[80:95]")
        X(51); X(52); X(53)
        e("s_waitcnt vmcnt(3)")
        e(f"v_mfma_f32_32x32x16_bf16 v[32:47], v[{Kn}:{Kn+3}], v[8:11], v[16:31]")
        for i in range(6, 9): X(48 + i)
        for i in range(4): CV(72 + i, 48 + 2 * i)
        X(57); X(58)
        e(f"v_mfma_f32_32x32x16_bf16 v[96:111], v[{V}:{V+3}], v[72:75], v[96:111]")
        for i in range(11, 16): X(48 + i)
        if tl == 3:
            e("v_add_u32 v3, v4, v3")
            e("s_add_u32 s54, s54, 4096")
        else:
            e("s_nop 0")
        for i in range(4, 8): CV(72 + i, 48 + 2 * i)
    e("s_add_u32 s55, s55, 1")
    e("s_cmp_lt_u32 s55, 8")
    e(f"s_cbranch_scc1 L_{n}_loop")
    e("v_mfma_f32_32x32x16_bf16 v[96:111], v[140:143], v[76:79], v[96:111]")
    T.stamp()
    e("s_waitcnt vmcnt(0) lgkmcnt(0)")
    e("s_nop 7"); e("s_nop 3")
    e("v_mul_f32 v32, 0, v80")
    for r in list(range(81, 88)) + list(range(96, 104)): e(f"v_fma_f32 v32, v{r}, 0, v32")
    e(f"v_mov_b32 v33, {f32(2.0**60)}")
    e("v_add_f32 v32, v32, v88")
    e("v_add_f32 v32, v32, v104")
    e("v_cmp_nlt_f32 vcc, v32, v33")
    e("s_cmp_lg_u32 s56, 0")
    e(f"s_cbranch_scc1 L_{n}_comb")
    e("s_cmp_eq_u64 vcc, 0")
    e(f"s_cbranch_scc1 L_{n}_comb")
    e("s_mov_b32 s56, 1")
    e("s_mov_b32 s55, 0")
    e("s_mov_b32 s54, s53")
    for r in (16, 17, 144, 145): e(f"v_mov_b32 v{r}, 0xff800000")
    e(f"L_{n}_mloop:")
    e("buffer_load_dwordx4 v[112:115], v2, s[32:35], s54 offen")
    e("s_waitcnt vmcnt(0)")
    e("v_mfma_f32_32x32x16_bf16 v[32:47], v[112:115], v[8:11], 0")
    e("v_mfma_f32_32x32x16_bf16 v[48:63], v[112:115], v[12:15], 0")
    e("s_add_u32 s54, s54, 1024")
    e("s_nop 7"); e("s_nop 3")
    for (m, S) in ((16, 32), (144, 48)):
        for i in range(4):
            e(f"v_max3_f32 v{m}, v{m}, v{S+4*i}, v{S+1+4*i}")
            e(f"v_max3_f32 v{m+1}, v{m+1}, v{S+2+4*i}, v{S+3+4*i}")
    e("s_add_u32 s55, s55, 1")
    e("s_cmp_lt_u32 s55, 32")
    e(f"s_cbranch_scc1 L_{n}_mloop")
    e(f"s_branch L_{n}_setmax")
    e(f"L_{n}_comb:")
    e("v_mov_b32 v105, v144")
    e("s_mul_i32 s51, s45, 3072")
    e(f"s_add_u32 s51, s51, {L_PAIR}")
    e("v_add_u32 v3, s51, v2")
    e("ds_write_b128 v3, v[96:99]")
    e("ds_write_b128 v3, v[100:103] offset:1024")
    e("ds_write_b128 v3, v[104:107] offset:2048")
    e("s_lshl_b32 s51, s45, 2")
    e(f"s_add_u32 s51, s51, {L_FLG}")
    e("v_mov_b32 v5, s51")
    e("v_mov_b32 v6, 1")
    e("s_waitcnt lgkmcnt(0)")
    e("ds_write_b32 v5, v6")
    e("v_xor_b32 v5, 16, v5")
    e("s_xor_b32 s51, s45, 4")
    e("s_mul_i32 s51, s51, 3072")
    e(f"s_add_u32 s51, s51, {L_PAIR}")
    e("v_add_u32 v3, s51, v2")
    e(f"s_mov_b32 s52, {SPIN_MAX}")
    e(f"L_{n}_pspin:")
    e("ds_read_b32 v6, v5")
    e("s_waitcnt lgkmcnt(0)")
    e("v_readfirstlane_b32 s51, v6")
    e("s_cmp_lg_u32 s51, 0")
    e(f"s_cbranch_scc1 L_{n}_pgo")
    e("s_sleep 2")
    e("s_sub_u32 s52, s52, 1")
    e("s_cmp_lg_u32 s52, 0")
    e(f"s_cbranch_scc1 L_{n}_pspin")
    e(f"L_{n}_pgo:")
    e("ds_read_b128 v[96:99], v3")
    e("ds_read_b128 v[100:103], v3 offset:1024")
    e("ds_read_b128 v[104:107], v3 offset:2048")
    e("s_lshl_b32 s51, s48, 5")
    e("s_add_u32 s51, s51, s40")
    e("s_lshl_b32 s51, s51, 10")
    e(f"s_add_u32 s51, s51, {OOFF}")
    e("s_waitcnt lgkmcnt(0)")
    e("v_min_f32 v32, v16, v105")
    e("v_sub_f32 v33, v32, v16")
    e("v_sub_f32 v34, v32, v105")
    e("v_exp_f32 v33, v33")
    e("v_exp_f32 v34, v34")
    e("s_nop 0")
    e("v_mul_f32 v88, v88, v33")
    e("v_fmac_f32 v88, v104, v34")
    e("v_rcp_f32 v88, v88")
    e("s_nop 0")
    e("v_mul_f32 v33, v33, v88")
    e("v_mul_f32 v34, v34, v88")
    for i in range(8): e(f"v_mul_f32 v{80+i}, v{80+i}, v33")
    for i in range(8): e(f"v_fmac_f32 v{80+i}, v{96+i}, v34")
    for p in range(4): e(f"v_cvt_pk_bf16_f32 v{64+p}, v{80+2*p}, v{81+2*p}")
    e("buffer_store_dwordx4 v[64:67], v2, s[32:35], s51 offen")


def gen_k2(with_w4=(os.environ.get('K2_W4', '0') == '1')):
    a = Asm("k2"); e = a.e
    T = Stamper(a, 72, 1)
    T.stamp()
    e("s_cmp_ge_u32 s2, 256")
    e("s_cbranch_scc1 L_k2_exit")
    e("s_load_dwordx2 s[4:5], s[0:1], 0")
    e("s_load_dwordx2 s[20:21], s[0:1], 80")
    e("v_lshrrev_b32 v1, 6, v0")
    e("s_and_b32 s54, s2, 7")
    e("v_readfirstlane_b32 s44, v1")
    e("v_and_b32 v1, 63, v0")
    e("v_lshlrev_b32 v2, 4, v1")
    e("s_lshl_b32 s40, s54, 2")
    e("s_bfe_u32 s54, s2, 0x20003")
    e("s_add_u32 s40, s40, s54")
    e("s_lshr_b32 s41, s2, 5")
    e("s_mov_b32 s45, s44")
    e("v_mov_b32 v4, 0")
    e(f"v_mov_b32 v5, {L_FLG}")
    e("v_lshl_add_u32 v5, v1, 2, v5")
    e("ds_write_b32 v5, v4")
    e("s_waitcnt lgkmcnt(0)")
    e("s_barrier")
    a.srd(32, 20, WS_USED)
    e("s_cmp_ge_u32 s44, 8")
    e("s_cbranch_scc1 L_k2_b")
    if os.environ.get("K2_NOA") == "1":
        e("s_endpgm")
    attn_wave(a, T)
    T.stamp()
    T.dump(32, 44, 12, 4, 5)
    e("s_endpgm")

    e("L_k2_b:")
    e("s_setprio %s" % os.environ.get("K2_PRIO", "3"))
    e("s_sub_u32 s45, s44, 8")
    a.srd(24, 4, 2048 * 1024)
    e("s_lshl_b32 s46, s40, 16")
    e(f"s_add_u32 s46, s46, {VOFF}")
    order = [0, 32, 1, 33, 2, 34, 3, 35, 4, 36, 5, 37] + [t + 32 * h for t in range(6, 32) for h in range(2)]
    e("s_lshr_b32 s47, s45, 1")
    e("s_and_b32 s48, s45, 1")
    e("s_lshl_b32 s48, s48, 5")
    e("s_add_u32 s47, s47, s48")
    e("s_lshl_b32 s47, s47, 10")
    e("s_add_u32 s46, s46, s47")
    for i in range(16):
        e(f"s_add_u32 m0, s47, {L_V + 2048*i}")
        e(f"s_add_u32 s48, s46, {2048*i}")
        e("buffer_load_dwordx4 v2, s[32:35], s48 offen lds")
    e("s_waitcnt vmcnt(12)")
    lds_signal(a, 9, 4, 5)
    T.n = 1
    T.stamp()
    st = {"n": 0}
    def sync(tag):
        st["n"] += 1
        e(f"v_mov_b32 v4, {L_FLG + 32}")
        e("v_mov_b32 v5, 1")
        e("s_mov_b64 exec, 1")
        e("ds_add_u32 v4, v5")
        e("s_mov_b64 exec, -1")
        e(f"s_mov_b32 s68, {SPIN_MAX}")
        e(f"L_k2_sy{tag}:")
        e("ds_read_b32 v5, v4")
        e("s_waitcnt lgkmcnt(0)")
        e("v_readfirstlane_b32 s69, v5")
        e(f"s_cmp_ge_u32 s69, {4*st['n']}")
        e(f"s_cbranch_scc1 L_k2_sy{tag}_go")
        e("s_sleep 1")
        e("s_sub_u32 s68, s68, 1")
        e("s_cmp_lg_u32 s68, 0")
        e(f"s_cbranch_scc1 L_k2_sy{tag}")
        e(f"L_k2_sy{tag}_go:")
    def xsync(ph):
        e("s_waitcnt vmcnt(0)")
        e("s_lshl_b32 s60, s40, 8")
        e(f"s_add_u32 s60, s60, {FLAGS + 128*ph}")
        e("s_lshl_b32 s61, s41, 2")
        e("s_add_u32 s61, s61, s45")
        e("s_lshl_b32 s61, s61, 2")
        e("v_mov_b32 v4, s61")
        e("v_mov_b32 v5, 1")
        e("s_mov_b64 exec, 1")
        e("buffer_store_dword v5, v4, s[32:35], s60 offen sc1")
        e("s_mov_b64 exec, -1")
        e("v_lshlrev_b32 v6, 7, v1")
        e("s_and_b32 s61, s40, 3")
        e("s_lshl_b32 s61, s61, 2")
        e("s_add_u32 s61, s61, s45")
        if ph == 0:
            e("s_mul_i32 s62, s41, 172")
            e("s_mul_i32 s63, s61, 11")
            e("s_add_u32 s62, s62, s63")
            e("s_lshl_b32 s62, s62, 10")
            e(f"s_add_u32 s62, s62, {W4F}")
            e("buffer_load_dword v7, v6, s[32:35], s62 offen")
            e("s_add_u32 s62, s62, 3072")
            e("buffer_load_dword v7, v6, s[32:35], s62 offen")
        e("v_and_b32 v4, 31, v1")
        e("v_lshlrev_b32 v4, 2, v4")
        e(f"s_mov_b32 s68, {SPIN_MAX}")
        e(f"L_k2_xs{ph}:")
        e("buffer_load_dword v5, v4, s[32:35], s60 offen sc1")
        e("s_waitcnt vmcnt(0)")
        e("v_cmp_eq_u32 vcc, 0, v5")
        e("s_cmp_eq_u64 vcc, 0")
        e(f"s_cbranch_scc1 L_k2_xs{ph}_go")
        e("s_sleep 4")
        e("s_sub_u32 s68, s68, 1")
        e("s_cmp_lg_u32 s68, 0")
        e(f"s_cbranch_scc1 L_k2_xs{ph}")
        e(f"L_k2_xs{ph}_go:")
        e("s_lshl_b32 s61, s41, 2")
        e("s_add_u32 s61, s61, s45")
        if ph == 0:
            e("s_lshl_b32 s62, s40, 16")
            e("s_lshl_b32 s63, s61, 11")
            e("s_add_u32 s62, s62, s63")
            e(f"s_add_u32 s62, s62, {X1OFF}")
            e("s_mov_b64 exec, 0xffff")
        else:
            e("s_mul_i32 s62, s40, 172*1024")
            e("s_mul_i32 s63, s61, 5504")
            e("s_add_u32 s62, s62, s63")
            e(f"s_add_u32 s62, s62, {GOFF}")
            e("s_mov_b32 exec_lo, -1")
            e("s_mov_b32 exec_hi, 0x7ff")
        e("buffer_load_dword v7, v6, s[32:35], s62 offen sc1")
        e("s_mov_b64 exec, -1")
    c = BCtx(a, L_B, sync, sc=" sc1")
    if os.environ.get("K2_FINE") == "1": c.T = T
    c.pace = os.environ.get("K2_PACE", "") or None
    e("v_lshlrev_b32 v6, 7, v1")
    e("s_and_b32 s61, s40, 3")
    e("s_lshl_b32 s61, s61, 2")
    e("s_add_u32 s61, s61, s45")
    e("s_mul_i32 s62, s41, 5")
    e("s_min_u32 s63, s41, 3")
    e("s_add_u32 s62, s62, s63")
    e("s_lshl_b32 s62, s62, 5")
    e("s_mul_i32 s63, s61, 12")
    e("s_add_u32 s62, s62, s63")
    e("s_lshl_b32 s62, s62, 10")
    e(f"s_add_u32 s62, s62, {W3F}")
    c.w3pre = lambda: (e("buffer_load_dword v7, v6, s[32:35], s70 offen"), e("s_add_u32 s70, s70, 4096"), e("buffer_load_dword v7, v6, s[32:35], s70 offen"))
    e("s_mov_b32 s70, s62")
    def after_gemm():
        e("v_lshlrev_b32 v6, 7, v1")
        c.w3pre()
    c.after_gemm = after_gemm
    def after_issue(nyounger):
        e(f"s_waitcnt vmcnt({nyounger})")
        lds_signal(a, 10, 4, 5)
    c.after_issue = after_issue
    if os.environ.get("K2_NOB") == "1":
        e("s_waitcnt vmcnt(0)"); lds_signal(a, 10, 4, 5); e("s_endpgm")
    if os.environ.get("K2_SLEEP") == "1":
        e("s_waitcnt vmcnt(0)"); lds_signal(a, 10, 4, 5)
        e("s_mov_b32 s60, 400")
        e("L_k2_slp:"); e("s_sleep 1"); e("s_sub_u32 s60, s60, 1"); e("s_cmp_lg_u32 s60, 0"); e("s_cbranch_scc1 L_k2_slp"); e("s_endpgm")
    phase_w2(c, None)
    T.stamp()
    xsync(0)
    T.stamp()
    phase_w3(c)
    T.stamp()
    if with_w4:
        xsync(1)
        T.stamp()
        phase_w4(c, None)
        T.stamp()
    T.dump(32, 44, 12, 4, 5)
    e("L_k2_exit:")
    e("s_endpgm")
    return a.kernel(vgpr=168, sgpr=96)
```

```python
import sys
from cfg import LAUNCHES
from common import *
import build
k1,k2,k3 = LAUNCHES
build.build([k1,k1,k2,k3], "var_b.s")
build.build([k1,k2,k2,k3], "var_c.s")
build.build([k1,k2,k3,k3], "var_d.s")
```

```python
import os
from k1 import gen_k1, K1_LDS
from k2 import gen_k2, K2_LDS
from bchain import *
import bchain
if os.environ.get("K2_W4", "0") == "1":
    LAUNCHES = [
        ("k1", gen_k1, 256, 768, K1_LDS),
        ("k2", gen_k2, 256, 768, K2_LDS),
        ("fin", gen_fin, 256, 256, B_LDS),
    ]
else:
    LAUNCHES = [
        ("k1", gen_k1, 256, 768, K1_LDS),
        ("k2", gen_k2, 256, 768, K2_LDS),
        ("fin", gen_fin2, 256, 512, 131072),
    ]
```

```python
from common import *

L_CS = 131072
L_ST = L_CS + 512
L_PR = L_ST + 2048
PR_PITCH = 1088
K1_LDS = L_PR + 16 * PR_PITCH


def gen_k1():
    a = Asm("k1")
    e = a.e
    L_exit = "L_k1_exit"
    T = Stamper(a, 78, 0)
    T.stamp()
    e("s_cmp_ge_u32 s2, 256")
    e(f"s_cbranch_scc1 {L_exit}")
    e("s_load_dwordx4 s[4:7], s[0:1], 0")
    e("s_load_dwordx4 s[8:11], s[0:1], 16")
    e("s_load_dwordx4 s[12:15], s[0:1], 32")
    e("s_load_dwordx4 s[16:19], s[0:1], 48")
    e("s_load_dwordx2 s[20:21], s[0:1], 80")
    e("v_lshrrev_b32 v1, 6, v0")
    e("s_and_b32 s54, s2, 7")
    e("v_readfirstlane_b32 s42, v1")
    e("v_and_b32 v1, 63, v0")
    e("s_lshr_b32 s55, s2, 3")
    e("s_lshr_b32 s40, s54, 1")
    e("s_lshl_b32 s40, s40, 2")
    e("s_and_b32 s56, s55, 3")
    e("s_add_u32 s40, s40, s56")
    e("s_and_b32 s41, s54, 1")
    e("s_lshl_b32 s41, s41, 3")
    e("s_lshr_b32 s56, s55, 2")
    e("s_add_u32 s41, s41, s56")
    e("s_and_b32 s45, s42, 3")
    e("s_cmp_lt_u32 s42, 4")
    e("s_cbranch_scc1 L_k1_compute")
    e("s_cmp_ge_u32 s42, 8")
    e("s_cbranch_scc1 L_k1_stat")

    def prep_decode(tag):
        Lp = {k: f"L_k1_{tag}{k}" for k in ("w2", "wo", "w4", "w3", "go")}
        e("s_mov_b32 s62, 0"); e("s_mov_b32 s61, 32"); e("s_mov_b32 s63, 1024"); e("s_mov_b32 s59, 16"); e("s_mov_b32 s73, 0")
        e(f"s_mov_b32 s38, {512*1024}")
        e("s_mov_b32 s56, s2")
        e("s_cmp_lt_u32 s2, 32");  e(f"s_cbranch_scc1 {Lp['w2']}")
        e("s_cmp_lt_u32 s2, 64");  e(f"s_cbranch_scc1 {Lp['wo']}")
        e("s_cmp_lt_u32 s2, 150"); e(f"s_cbranch_scc1 {Lp['w4']}")
        e("s_cmp_lt_u32 s2, 246"); e(f"s_cbranch_scc1 {Lp['w3']}")
        e("s_mov_b32 s38, 0"); e("s_mov_b32 s59, 0"); e("s_mov_b32 s56, 0")
        e(f"{Lp['w2']}:")
        e("s_mov_b32 s36, s14"); e("s_mov_b32 s37, s15"); e(f"s_mov_b32 s60, {W2F}")
        e(f"s_branch {Lp['go']}")
        e(f"{Lp['wo']}:")
        e("s_mov_b32 s36, s8"); e("s_mov_b32 s37, s9"); e(f"s_mov_b32 s60, {WOF}")
        e("s_sub_u32 s56, s2, 32"); e("s_mov_b32 s73, 1")
        e(f"s_branch {Lp['go']}")
        e(f"{Lp['w4']}:")
        e("s_mov_b32 s36, s18"); e("s_mov_b32 s37, s19"); e(f"s_mov_b32 s38, {1376*1024}")
        e("s_sub_u32 s56, s2, 64"); e(f"s_mov_b32 s60, {W4F}"); e("s_mov_b32 s61, 86")
        e(f"s_branch {Lp['go']}")
        e(f"{Lp['w3']}:")
        e("s_mov_b32 s36, s16"); e("s_mov_b32 s37, s17"); e(f"s_mov_b32 s38, {512*2752}")
        e("s_sub_u32 s56, s2, 150")
        e("s_lshr_b32 s62, s56, 5")
        e("s_and_b32 s56, s56, 31")
        e(f"s_mov_b32 s60, {W3F}"); e("s_mov_b32 s63, 2752")
        e("s_cmp_eq_u32 s62, 2")
        e("s_cselect_b32 s59, 11, 16")
        e(f"{Lp['go']}:")

    e("s_lshl_b32 s54, s40, 7")
    e("s_lshl_b32 s55, s45, 5")
    e("s_add_u32 s54, s54, s55")
    e("v_lshrrev_b32 v56, 3, v1")
    e("v_add_u32 v56, s54, v56")
    e("v_lshlrev_b32 v56, 10, v56")
    e("v_lshrrev_b32 v57, 4, v1")
    e("v_and_b32 v58, 7, v1")
    e("v_xor_b32 v59, v58, v57")
    e("v_xor_b32 v60, 4, v59")
    e("v_lshl_add_u32 v2, v59, 4, v56")
    e("v_lshl_add_u32 v3, v60, 4, v56")
    e(f"v_add_u32 v4, {2*8192 - 2048}, v2")
    e(f"v_add_u32 v5, {3*8192 - 3072}, v3")
    e(f"v_add_u32 v3, {8192 - 1024}, v3")
    e("s_lshr_b32 s46, s45, 1")
    e("s_lshl_b32 s44, s41, 1")
    e("s_sub_u32 s44, s44, 8")
    e("s_add_u32 s44, s44, s46")
    e("s_cmp_lt_u32 s41, 8")
    e("s_cselect_b32 s44, s41, s44")
    e("s_cselect_b32 s54, s46, 0")
    e(f"s_mov_b32 s30, {512*3072}")
    e("s_mov_b32 s43, 3072")
    e("s_cmp_eq_u32 s54, 1")
    e(f"s_cselect_b32 s30, {512*1024}, s30")
    e("s_cselect_b32 s43, 1024, s43")
    e("s_waitcnt lgkmcnt(0)")
    e("s_cselect_b32 s28, s12, s6")
    e("s_cselect_b32 s29, s13, s7")
    e("s_and_b32 s29, s29, 0xffff")
    e("s_mov_b32 s31, 0x00020000")
    a.srd(24, 4, 2048 * 1024)
    e("s_lshl_b32 s44, s44, 7")
    e("s_lshl_b32 s53, s43, 6")
    e("v_lshrrev_b32 v58, 3, v1")
    e("v_mul_lo_u32 v58, v58, s43")
    e("v_and_b32 v59, 7, v1")
    e("v_bfe_u32 v60, v1, 4, 1")
    e("v_lshlrev_b32 v60, 2, v60")
    e("v_xor_b32 v59, v59, v60")
    e("v_lshl_add_u32 v58, v59, 4, v58")
    e("v_add_u32 v6, s44, v58")
    e("s_and_b32 s54, s45, 1")
    e("s_lshl_b32 s54, s54, 5")
    e("s_mul_i32 s48, s54, s43")
    e("s_lshl_b32 s54, s43, 3")
    e("s_sub_u32 s54, s54, 1024")
    e("s_add_u32 s49, s48, s54")
    e("s_add_u32 s50, s49, s54")
    e("s_add_u32 s51, s50, s54")
    e("s_mov_b32 s52, 0")
    e("s_lshl_b32 s47, s45, 12")

    def issue_stage(st):
        b = st % 4
        if os.environ.get("K1_NOLOAD") == "1": return
        e(f"s_add_u32 m0, s47, {b*16384}")
        e("s_nop 0")
        for u in range(4):
            e(f"buffer_load_dwordx4 v{2+u}, s[24:27], s52 offen offset:{1024*u} lds")
        e(f"s_add_u32 m0, s47, {65536 + b*16384}")
        e("s_add_u32 s52, s52, 128")
        for u in range(4):
            e(f"buffer_load_dwordx4 v6, s[28:31], s{48+u} offen offset:{1024*u} lds")
        for u in range(4):
            e(f"s_add_u32 s{48+u}, s{48+u}, s53")

    def prep_loads():
        prep_decode("l")
        e("s_and_b32 s37, s37, 0xffff")
        e("s_mov_b32 s39, 0x00020000")
        e("s_lshl_b32 s54, s56, 4")
        e("s_lshl_b32 s55, s45, 2")
        e("s_add_u32 s54, s54, s55")
        e("s_mul_i32 s54, s54, s63")
        e("s_lshl_b32 s55, s62, 10")
        e("s_add_u32 s54, s54, s55")
        e(f"s_mul_i32 s55, s45, {4*PR_PITCH}")
        e(f"s_add_u32 s55, s55, {L_PR}")
        e("v_lshlrev_b32 v56, 4, v1")
        for u in range(4):
            e(f"s_add_u32 m0, s55, {u*PR_PITCH}")
            e("s_nop 0")
            e(f"buffer_load_dwordx4 v56, s[36:39], s54 offen lds")
            e("s_add_u32 s54, s54, s63")

    def wb(n):
        e(f"s_waitcnt vmcnt({n})")
        e("s_barrier")

    issue_stage(0); issue_stage(1)
    T.stamp()
    wb(8)
    T.stamp()
    issue_stage(2); issue_stage(3)
    wb(16)
    issue_stage(4); prep_loads()
    wb(20)
    issue_stage(5)
    wb(20)
    issue_stage(6)
    wb(20)
    T.stamp()
    issue_stage(7)
    wb(16)
    wb(8)
    wb(0)
    T.stamp()
    if STAMP:
        a.srd(32, 20, WS_USED)
        T.dump(32, 42, 8, 60, 61)
    e("s_endpgm")

    e("L_k1_stat:")
    e("v_and_b32 v56, 31, v1")
    e("v_lshrrev_b32 v57, 5, v1")
    e("s_lshl_b32 s54, s45, 5")
    e("v_add_u32 v56, s54, v56")
    e("v_lshlrev_b32 v56, 7, v56")
    e("v_bfe_u32 v58, v1, 1, 3")
    e("v_xor_b32 v58, v57, v58")
    for ks in range(4):
        e(f"v_xor_b32 v59, {2*ks}, v58")
        e(f"v_lshl_add_u32 v{8+ks}, v59, 4, v56")
    for r in range(12, 16): e(f"v_mov_b32 v{r}, 0")
    e("s_mov_b32 s72, 0xffff0000")
    e("s_mov_b32 s71, 0xffff")
    e("s_waitcnt lgkmcnt(0)")
    a.srd(32, 20, WS_USED)
    e("s_cmp_ge_u32 s2, 64")
    e("s_cbranch_scc1 L_k1_noflag")
    e("s_cmp_lg_u32 s45, 0")
    e("s_cbranch_scc1 L_k1_noflag")
    e("s_lshl_b32 s54, s2, 8")
    e(f"s_add_u32 s54, s54, {FLAGS}")
    e("v_lshlrev_b32 v58, 2, v1")
    e("buffer_store_dword v12, v58, s[32:35], s54 offen")
    e("L_k1_noflag:")
    prep_decode("s")
    e("s_add_u32 s54, s73, 2")
    e("v_lshlrev_b32 v56, s54, v57")
    e("v_bfe_u32 v58, v1, 2, 2")
    e("v_add_u32 v56, v56, v58")
    e(f"v_mul_u32_u24 v56, {PR_PITCH}, v56")
    e("v_and_b32 v58, 3, v1")
    e("v_lshl_add_u32 v56, v58, 3, v56")
    e("v_bfe_u32 v58, v1, 4, 1")
    e("v_lshl_add_u32 v56, v58, 5, v56")
    e("s_lshl_b32 s54, s45, 8")
    e(f"s_add_u32 s54, s54, {L_PR}")
    e("v_add_u32 v2, s54, v56")
    e(f"s_mov_b32 s54, {8*PR_PITCH}")
    e("s_cmp_eq_u32 s73, 1")
    e(f"s_cselect_b32 s54, {4*PR_PITCH}, s54")
    e("v_add_u32 v3, s54, v2")
    e("v_lshlrev_b32 v4, 4, v1")
    e("s_lshl_b32 s54, s62, 4")
    e("s_lshl_b32 s55, s45, 2")
    e("s_add_u32 s54, s54, s55")
    e("s_mul_i32 s54, s54, s61")
    e("s_add_u32 s54, s54, s56")
    e("s_lshl_b32 s54, s54, 10")
    e("s_add_u32 s60, s60, s54")
    e("s_lshl_b32 s61, s61, 10")
    e("s_sub_i32 s59, s59, s55")
    e("v_bfe_u32 v58, v1, 4, 1")
    e("v_xor_b32 v59, v58, v1")
    e("v_and_b32 v59, 1, v59")
    e("v_cmp_eq_u32 vcc, 0, v59")
    e("v_mov_b32 v59, 0x3f803f80")
    e("v_cmp_eq_u32 s[76:77], 1, v58")
    e("v_cndmask_b32 v72, 0, v59, vcc")
    e("v_mov_b32 v73, v72"); e("v_mov_b32 v74, v72"); e("v_mov_b32 v75, v72")
    e("v_and_b32 v5, 31, v1")
    e("v_lshlrev_b32 v5, 2, v5")
    e("s_mul_i32 s64, s56, 1408*4")
    e("s_lshl_b32 s54, s62, 11")
    e("s_add_u32 s64, s64, s54")
    e("s_lshl_b32 s54, s45, 9")
    e("s_add_u32 s64, s64, s54")
    e(f"s_add_u32 s64, s64, {CS3P}")
    e("s_mov_b32 s70, 0")
    for r in range(40, 56): e(f"v_mov_b32 v{r}, 0")
    def process(b):
        if os.environ.get("K1_NOSTAT") == "1": return
        for d in range(16):
            t = 32 + 2 * (d & 3)
            e(f"v_lshlrev_b32 v{t}, 16, v{b+d}")
            e(f"v_and_b32 v{t+1}, s72, v{b+d}")
            if d >= 1:
                t2 = 32 + 2 * ((d - 1) & 3)
                e(f"v_fmac_f32 v{12 + 2*(d&1)}, v{t2}, v{t2}")
                e(f"v_fmac_f32 v{13 + 2*(d&1)}, v{t2+1}, v{t2+1}")
        e("v_fmac_f32 v12, v38, v38")
        e("v_fmac_f32 v13, v39, v39")
    e("L_k1_sloop:")
    for half, (cur, prev) in enumerate(((16, 40), (40, 16))):
        e("s_barrier")
        for ks in range(4):
            e(f"ds_read_b128 v[{cur+4*ks}:{cur+3+4*ks}], v{8+ks} offset:{16384*half}")
        if half == 1:
            e("s_cmp_lg_u32 s70, 2")
            e("s_cbranch_scc1 L_k1_snoprep")
            for i in range(4):
                e(f"ds_read_b64_tr_b16 v[{56+4*i}:{57+4*i}], v2 offset:{64*i}")
                e(f"ds_read_b64_tr_b16 v[{58+4*i}:{59+4*i}], v3 offset:{64*i}")
            e("s_waitcnt lgkmcnt(0)")
            e("s_cmp_lg_u32 s63, 2752")
            e("s_cbranch_scc1 L_k1_snocs")
            for i in range(4):
                e(f"v_mfma_f32_16x16x32_bf16 v[{76+4*i}:{79+4*i}], v[72:75], v[{56+4*i}:{59+4*i}], 0")
            e("s_nop 7")
            for i in range(4):
                e(f"v_cndmask_b32 v{76+4*i}, v{76+4*i}, v{77+4*i}, s[76:77]")
            for i in range(4):
                e(f"s_cmp_le_i32 s59, {i}")
                e("s_cbranch_scc1 L_k1_snocs")
                e(f"buffer_store_dword v{76+4*i}, v5, s[32:35], s64 offen offset:{128*i} sc1")
            e("L_k1_snocs:")
            for i in range(4):
                e(f"s_cmp_le_i32 s59, {i}")
                e("s_cbranch_scc1 L_k1_snoprep")
                e(f"buffer_store_dwordx4 v[{56+4*i}:{59+4*i}], v4, s[32:35], s60 offen sc1")
                e("s_add_u32 s60, s60, s61")
            e("L_k1_snoprep:")
            for r in range(8, 12):
                e(f"v_xor_b32 v{r}, 0x8000, v{r}")
        process(prev)
        e("s_waitcnt lgkmcnt(0)")
    e("s_add_u32 s70, s70, 1")
    e("s_cmp_lt_u32 s70, 4")
    e("s_cbranch_scc1 L_k1_sloop")
    process(40)
    e("v_add_f32 v12, v12, v13")
    e("v_add_f32 v14, v14, v15")
    e("s_lshl_b32 s54, s45, 9")
    e(f"s_add_u32 s54, s54, {L_ST}")
    e("v_lshl_add_u32 v56, v1, 2, s54")
    e("v_add_f32 v12, v12, v14")
    e("ds_write_b32 v56, v12 offset:256")
    e("s_waitcnt lgkmcnt(0)")
    e("s_barrier")
    e("s_endpgm")

    e("L_k1_compute:")
    e("v_and_b32 v8, 31, v1")
    e("v_lshrrev_b32 v9, 5, v1")
    e("s_lshl_b32 s54, s45, 5")
    e("v_add_u32 v10, s54, v8")
    e("v_lshlrev_b32 v10, 7, v10")
    e("v_bfe_u32 v11, v1, 1, 3")
    e("v_xor_b32 v11, v9, v11")
    for ks in range(4):
        e(f"v_xor_b32 v12, {2*ks}, v11")
        e(f"v_lshl_add_u32 v{2+ks}, v12, 4, v10")
    e("v_bfe_u32 v10, v1, 2, 2")
    e("v_lshl_add_u32 v10, v9, 3, v10")
    e("v_lshlrev_b32 v10, 7, v10")
    e("v_and_b32 v11, 3, v1")
    e("v_lshl_add_u32 v10, v11, 3, v10")
    e("v_bfe_u32 v11, v1, 3, 1")
    e("v_lshl_add_u32 v10, v11, 6, v10")
    e("v_bfe_u32 v11, v1, 4, 1")
    e("v_lshl_add_u32 v10, v11, 5, v10")
    e("v_add_u32 v6, 65536, v10")
    e("v_xor_b32 v16, 64, v6")
    e("v_xor_b32 v10, v11, v1")
    e("v_and_b32 v10, 1, v10")
    e("v_cmp_eq_u32 vcc, 0, v10")
    e("v_mov_b32 v10, 0x3f803f80")
    e("v_cmp_eq_u32 s[76:77], 1, v11")
    e("v_cndmask_b32 v12, 0, v10, vcc")
    e("v_mov_b32 v13, v12")
    e("v_mov_b32 v14, v12")
    e("v_mov_b32 v15, v12")
    e("s_lshr_b32 s54, s45, 1")
    e("s_lshl_b32 s54, s54, 13")
    e("s_and_b32 s55, s45, 1")
    e("s_lshl_b32 s55, s55, 6")
    e("v_xor_b32 v7, s55, v6")
    e("v_add_u32 v7, s54, v7")
    e("s_mov_b32 s73, 0xffff")
    e("s_mov_b32 s74, 0x10000")
    e("s_waitcnt lgkmcnt(0)")
    a.srd(32, 20, WS_USED)

    def X(s): return 32 + 24 * s
    def W(s, j): return 36 + 24 * s + 4 * j
    def ACC(j): return 96 + 16 * j

    def reads(ks, s):
        R = [f"ds_read_b128 v[{X(s)}:{X(s)+3}], v{2+ks}"]
        for j in range(4):
            for t in range(2):
                R.append(f"ds_read_b64_tr_b16 v[{W(s,j)+2*t}:{W(s,j)+2*t+1}], v{16 if j&1 else 6} offset:{(j>>1)*8192 + (16*ks+4*t)*128}")
        for t in range(2):
            R.append(f"ds_read_b64_tr_b16 v[{W(s,4)+2*t}:{W(s,4)+2*t+1}], v7 offset:{(16*ks+4*t)*128}")
        return R

    def updx(r):
        return [f"v_add_u32 v{r}, 16384, v{r}", f"v_and_b32 v{r}, s73, v{r}"]
    def updw(r):
        return [f"v_add_u32 v{r}, 16384, v{r}", f"v_and_b32 v{r}, s73, v{r}", f"v_or_b32 v{r}, s74, v{r}"]

    for r in list(range(24, 32)) + list(range(96, 160)):
        e(f"v_mov_b32 v{r}, 0")
    T.n = 1
    T.stamp()
    e("s_barrier")
    T.stamp()
    for r in reads(0, 0): e(r)
    for v in updx(2): e(v)
    e("s_mov_b32 s70, 8")
    e("L_k1_loop:")
    s = 0
    for ks in range(4):
        R = reads((ks + 1) % 4, 1 - s)
        M = [f"v_mfma_f32_32x32x16_bf16 v[{ACC(j)}:{ACC(j)+15}], v[{W(s,j)}:{W(s,j)+3}], v[{X(s)}:{X(s)+3}], v[{ACC(j)}:{ACC(j)+15}]" for j in range(4)]
        M.append(f"v_mfma_f32_16x16x32_bf16 v[28:31], v[12:15], v[{X(s)}:{X(s)+3}], v[28:31]")
        M.append(f"v_mfma_f32_16x16x32_bf16 v[24:27], v[12:15], v[{W(s,4)}:{W(s,4)+3}], v[24:27]")
        if os.environ.get("K1_NOMFMA") == "1": M[:4] = ["s_nop 0"]*4
        if os.environ.get("K1_NOREAD") == "1": R = [""]*11
        if os.environ.get("K1_NOM16") == "1": M[4:] = ["", ""]
        if ks < 3:
            e("s_waitcnt lgkmcnt(8)")
            e(M[0])
            for r in R[0:4]: e(r)
            e("s_waitcnt lgkmcnt(10)")
            e(M[1])
            for r in R[4:8]: e(r)
            e("s_waitcnt lgkmcnt(12)")
            e(M[2])
            for r in R[8:11]: e(r)
            e("s_waitcnt lgkmcnt(13)")
            e(M[3])
            for v in updx(2 + ks + 1): e(v)
            if ks == 2:
                for v in updw(6): e(v)
            e(M[4])
            e("s_waitcnt lgkmcnt(11)")
            if ks == 2:
                for v in updw(16): e(v)
            e(M[5])
            if ks == 2:
                for v in updw(7): e(v)
        else:
            e("s_waitcnt lgkmcnt(8)")
            e(M[0])
            e("s_sub_u32 s70, s70, 1")
            e("s_waitcnt lgkmcnt(6)")
            e(M[1])
            e("s_waitcnt lgkmcnt(0)")
            e("s_cmp_eq_u32 s70, 0")
            e("s_cbranch_scc1 L_k1_nobar")
            e("s_barrier")
            e("L_k1_nobar:")
            for r in R[0:3]: e(r)
            e(M[2])
            for r in R[3:7]: e(r)
            e(M[3])
            for r in R[7:11]: e(r)
            e(M[4])
            for v in updx(2): e(v)
            e(M[5])
        s = 1 - s
    e("s_cmp_lg_u32 s70, 0")
    e("s_cbranch_scc1 L_k1_loop")
    T.stamp()

    e("s_lshl_b32 s54, s45, 7")
    e(f"s_add_u32 s54, s54, {L_CS}")
    e("v_lshl_add_u32 v7, v8, 2, s54")
    e("s_lshl_b32 s54, s45, 9")
    e(f"s_add_u32 s54, s54, {L_ST}")
    e("v_lshl_add_u32 v6, v8, 2, s54")
    e("s_lshl_b32 s58, s40, 2")
    e("s_add_u32 s58, s58, s45")
    e("s_nop 2")
    e("v_cndmask_b32 v24, v24, v25, s[76:77]")
    e("ds_write_b32 v7, v24")
    e("v_cndmask_b32 v24, v28, v29, s[76:77]")
    e("v_lshlrev_b32 v20, 4, v1")
    e("v_lshlrev_b32 v21, 5, v8")
    e("v_lshl_add_u32 v21, v9, 4, v21")
    e("s_lshr_b32 s57, s41, 1")
    e("s_lshr_b32 s54, s57, 1")
    e("s_add_u32 s54, s54, 1")
    e("s_sub_u32 s55, 0, s54")
    e("s_bitcmp1_b32 s57, 0")
    e("s_cselect_b32 s54, s55, s54")
    e("s_lshl_b32 s55, s58, 5")
    e("s_add_u32 s55, s55, s54")
    e("v_add_u32 v22, s55, v8")
    e("v_cmp_gt_u32 vcc, 2048, v22")
    e("v_and_b32 v22, 2047, v22")
    e("v_lshrrev_b32 v23, 5, v22")
    e("v_lshlrev_b32 v23, 15, v23")
    e("v_and_b32 v22, 31, v22")
    e("v_lshl_add_u32 v23, v22, 4, v23")
    e("v_lshl_add_u32 v23, v9, 9, v23")
    e("v_cndmask_b32 v22, 0, 1.0, vcc")
    e(f"v_lshlrev_b32 v7, 4, v9")
    e(f"v_add_u32 v7, {L_CS}, v7")
    e("s_waitcnt lgkmcnt(0)")
    T.stamp()
    e("s_barrier")
    T.stamp()
    e("ds_read_b32 v16, v6 offset:256")
    e("ds_read_b32 v17, v6 offset:384")
    for j in range(4):
        for g in range(4):
            if j == 3 and g == 1: e("s_waitcnt lgkmcnt(13)")
            e(f"ds_read_b128 v[{32+16*j+4*g}:{35+16*j+4*g}], v7 offset:{128*j+32*g}")
    e("v_add_f32 v16, v16, v17")
    e(f"v_mul_f32 v24, {f32(1.0/512)}, v24")
    e(f"v_mul_f32 v16, {f32(1.0/512)}, v16")
    e("v_fma_f32 v16, -v24, v24, v16")
    e("v_max_f32 v16, 0, v16")
    e(f"v_add_f32 v17, {f32(EPS)}, v16")
    e("v_rsq_f32 v25, v17")
    e(f"v_mov_b32 v19, {f32(EPS)}")
    e("v_mul_f32 v18, v25, v25")
    e("v_fma_f32 v18, v18, v16, v19")
    e("v_rsq_f32 v18, v18")
    e("v_mul_f32 v26, v24, v25")
    e("v_sub_f32 v26, 0, v26")
    e("v_mul_f32 v18, v18, v22")
    e("s_cmp_lg_u32 s41, 0")
    e("s_cbranch_scc1 L_k1_nostat")
    e("s_lshl_b32 s54, s58, 8")
    e(f"s_add_u32 s54, s54, {STAT}")
    e("v_lshlrev_b32 v19, 3, v8")
    e("buffer_store_dwordx2 v[24:25], v19, s[32:35], s54 offen")
    e("L_k1_nostat:")
    e("s_lshl_b32 s56, s41, 2")
    e("s_sub_u32 s56, s56, 16")
    e("s_lshl_b32 s54, s41, 1")
    e("s_cmp_lt_u32 s41, 8")
    e("s_cselect_b32 s56, s54, s56")
    e(f"s_mov_b32 s60, {f32(QSCALE)}")
    e(f"s_mov_b32 s62, {f32(GELU_K2)}")
    e(f"s_mov_b32 s63, {f32(GELU_K2)}")
    e(f"v_mov_b32 v16, {f32(GELU_K1)}")
    e("s_waitcnt lgkmcnt(0)")
    OUT = [160, 32, 48, 64]
    def tile(j, ish):
        c = ACC(j)
        if not ish:
            e(f"s_add_u32 s55, s56, {j}")
            e("s_cmp_lt_u32 s55, 16")
            e("s_cselect_b32 s54, s60, 1.0")
            e("v_mul_f32 v28, s54, v25")
            e("v_mul_f32 v30, s54, v26")
            e("s_cmp_ge_u32 s55, 32")
            e("s_cselect_b64 vcc, -1, 0")
            e("s_lshl_b32 s55, s55, 7")
            e("s_add_u32 s55, s55, s58")
            e("s_lshl_b32 s55, s55, 10")
            e("s_add_u32 s59, s55, 65536")
            e("v_cndmask_b32 v27, v20, v21, vcc")
        else:
            e("v_mul_f32 v28, v18, v25")
            e("v_mul_f32 v30, v18, v26")
            e("s_lshl_b32 s55, s41, 12")
            e(f"s_add_u32 s55, s55, {HOFF + (j-2)*2048}")
        cs = 32 + 16 * j
        for r in range(0, 16, 2):
            e(f"v_pk_mul_f32 v[{cs+r}:{cs+r+1}], v[{cs+r}:{cs+r+1}], v[30:31] op_sel_hi:[1,0]")
        for r in range(0, 16, 2):
            e(f"v_pk_fma_f32 v[{c+r}:{c+r+1}], v[{c+r}:{c+r+1}], v[28:29], v[{cs+r}:{cs+r+1}] op_sel_hi:[1,0,1]")
        if ish:
            emit_gelu_pk(a, c, 16, cs, 16, 62)
        o = OUT[j]
        for p in range(8):
            e(f"v_cvt_pk_bf16_f32 v{o+p}, v{c+2*p}, v{c+2*p+1}")
        if not ish:
            e(f"buffer_store_dwordx4 v[{o}:{o+3}], v27, s[32:35], s55 offen")
            e(f"buffer_store_dwordx4 v[{o+4}:{o+7}], v27, s[32:35], s59 offen")
        else:
            e(f"buffer_store_dwordx4 v[{o}:{o+3}], v23, s[32:35], s55 offen")
            e(f"buffer_store_dwordx4 v[{o+4}:{o+7}], v23, s[32:35], s55 offen offset:1024")
    tile(0, False)
    T.stamp()
    tile(1, False)
    e("s_cmp_lt_u32 s41, 8")
    e("s_cbranch_scc1 L_k1_htiles")
    tile(2, False)
    tile(3, False)
    e("s_branch L_k1_fin")
    e("L_k1_htiles:")
    tile(2, True)
    tile(3, True)
    e("L_k1_fin:")
    T.stamp()
    T.dump(32, 42, 8, 60, 61)
    e(f"{L_exit}:")
    e("s_endpgm")
    return a.kernel(vgpr=168, sgpr=96)
```

```python
from common import *

L_K = 0
L_V = 65536
L_ONES = 131072
L_B = L_ONES + 5632
L_CS = L_B + 24576
L_FLG = L_CS + 768
K2_LDS = L_FLG + 256
SPIN_MAX = 20000
BIG = 0x7ff00000
ENV = os.environ.get


def lds_signal(a, idx, va, vb):
    e = a.e
    e(f"v_mov_b32 v{va}, {L_FLG + 4*idx}")
    e(f"v_mov_b32 v{vb}, 1")
    e("s_mov_b64 exec, 1")
    e(f"ds_add_u32 v{va}, v{vb}")
    e("s_mov_b64 exec, -1")


def lds_wait(a, tag, idx, target, va, vb, s0, s1, sleep=1, setaddr=True):
    e = a.e
    if setaddr: e(f"v_mov_b32 v{va}, {L_FLG + 4*idx}")
    e(f"s_mov_b32 s{s0}, {SPIN_MAX}")
    e(f"L_{a.name}_lw{tag}:")
    e(f"ds_read_b32 v{vb}, v{va}")
    e("s_waitcnt lgkmcnt(0)")
    e(f"v_readfirstlane_b32 s{s1}, v{vb}")
    e(f"s_cmp_ge_u32 s{s1}, {target}")
    e(f"s_cbranch_scc1 L_{a.name}_lw{tag}_go")
    e(f"s_sleep {sleep}")
    e(f"s_sub_u32 s{s0}, s{s0}, 1")
    e(f"s_cmp_lg_u32 s{s0}, 0")
    e(f"s_cbranch_scc1 L_{a.name}_lw{tag}")
    e(f"L_{a.name}_lw{tag}_go:")


def attn_wave(a, T):
    e = a.e; n = a.name
    e("s_lshl_b32 s48, s41, 3")
    e("s_add_u32 s48, s48, s45")
    e("s_lshl_b32 s49, s40, 6")
    e("s_add_u32 s49, s49, s48")
    e("s_lshl_b32 s49, s49, 10")
    e("buffer_load_dwordx4 v[8:11], v2, s[32:35], s49 offen")
    e("v_and_b32 v5, 1, v1")
    e("v_cmp_eq_u32 vcc, 0, v5")
    e("v_mov_b32 v5, 0x3f80")
    e("v_mov_b32 v33, 0"); e("v_mov_b32 v35, 0")
    e("v_cndmask_b32 v32, 0, v5, vcc")
    e("v_mov_b32 v34, v32")
    e("v_lshlrev_b32 v3, 4, v0")
    e(f"v_cmp_gt_u32 vcc, 5632, v3")
    e(f"v_add_u32 v3, {L_ONES}, v3")
    e("s_and_saveexec_b64 s[50:51], vcc")
    e("ds_write_b128 v3, v[32:35]")
    e("s_mov_b64 exec, -1")
    e("s_waitcnt lgkmcnt(0)")
    lds_signal(a, 9, 5, 6)
    e("v_lshrrev_b32 v5, 5, v1")
    e("v_bfe_u32 v6, v1, 4, 1")
    e("v_xor_b32 v7, v5, v6")
    e("v_and_b32 v3, 15, v1")
    e("v_lshlrev_b32 v3, 3, v3")
    e("v_lshl_add_u32 v3, v7, 7, v3")
    e("v_lshl_add_u32 v3, v6, 16, v3")
    e(f"v_add_u32 v112, {L_V}, v3")
    e("v_xor_b32 v4, 1, v6")
    e("v_lshlrev_b32 v4, 12, v4")
    e("s_mov_b32 s56, 0")
    e("s_lshl_b32 s51, s45, 2")
    e(f"s_add_u32 s51, s51, {L_FLG + 64}")
    e("v_mov_b32 v113, s51")
    e("v_xor_b32 v114, 16, v113")
    e("v_mov_b32 v115, 0")
    e("v_mov_b32 v116, 0")
    lds_wait(a, "c0", 9, 12, 5, 6, 51, 52)
    T.stamp()
    e("ds_read_b128 v[88:91], v2")
    e("s_waitcnt vmcnt(0) lgkmcnt(0)")
    e("v_mfma_f32_32x32x16_bf16 v[32:47], v[88:91], v[8:11], 0")
    e("s_nop 7"); e("s_nop 3")
    e("v_max3_f32 v16, v32, v33, v34")
    e("v_max3_f32 v17, v35, v36, v37")
    e("v_max3_f32 v16, v16, v38, v39")
    e("v_max3_f32 v17, v17, v40, v41")
    e("v_max3_f32 v16, v16, v42, v43")
    e("v_max3_f32 v17, v17, v44, v45")
    e("v_max3_f32 v16, v16, v46, v47")
    e(f"L_{n}_setmax:")
    e("v_max_f32 v16, v16, v17")
    e("v_mov_b32 v12, v2")
    e("v_mov_b32 v17, v16")
    e("v_mov_b32 v3, v112")
    e("ds_read_b128 v[88:91], v12")
    e("ds_read_b128 v[92:95], v12 offset:1024")
    e("v_permlane32_swap_b32 v16, v17")
    for u in range(2):
        for t in range(2):
            e(f"ds_read_b64_tr_b16 v[{96+4*u+2*t}:{97+4*u+2*t}], v3 offset:{512*u+256*t}")
    e("v_max_f32 v16, v16, v17")
    e("v_sub_f32 v16, 0, v16")
    for r in range(17, 32): e(f"v_mov_b32 v{r}, v16")
    for r in list(range(68, 88)) + list(range(104, 112)): e(f"v_mov_b32 v{r}, 0")
    e("s_waitcnt lgkmcnt(5)")
    e("v_mfma_f32_32x32x16_bf16 v[32:47], v[88:91], v[8:11], v[16:31]")
    e("s_nop 7")
    e("s_mov_b32 s55, 0")
    e(f"L_{n}_loop:")
    e("s_cmp_eq_u32 s55, 1")
    e(f"s_cbranch_scc1 L_{n}_w1")
    e("s_cmp_lg_u32 s55, 7")
    e(f"s_cbranch_scc1 L_{n}_nobar")
    e(f"v_mov_b32 v5, {L_FLG + 44}")
    e(f"s_branch L_{n}_w2")
    e(f"L_{n}_w1:")
    e(f"v_mov_b32 v5, {L_FLG + 40}")
    e(f"L_{n}_w2:")
    lds_wait(a, "c1", 0, 4, 5, 6, 51, 52, setaddr=False)
    e(f"L_{n}_nobar:")
    X = lambda r: e(f"v_exp_f32 v{r}, v{r}")
    fair = ENV("K2_FAIR", "1") == "1"
    for tl in range(4):
        S = 32 + 16 * (tl % 2); Sn = 32 + 16 * ((tl + 1) % 2)
        Kn = 88 + 4 * ((tl + 1) % 2); Knn = 88 + 4 * (tl % 2)
        V = 96 + 8 * (tl % 2); Vp = 96 + 8 * ((tl + 1) % 2)
        e("s_waitcnt lgkmcnt(4)")
        e(f"v_mfma_f32_32x32x16_bf16 v[{Sn}:{Sn+15}], v[{Kn}:{Kn+3}], v[8:11], v[16:31]")
        if fair and tl == 0:
            e("ds_write_b32 v113, v115")
            e("ds_read_b32 v116, v114")
        e(f"ds_read_b128 v[{Knn}:{Knn+3}], v12 offset:{1024*(tl+2)}")
        X(S); X(S + 1); X(S + 2)
        e(f"v_mfma_f32_32x32x16_bf16 v[72:87], v[{Vp+4}:{Vp+7}], v[68:71], v[72:87]")
        for u in range(2):
            for t in range(2):
                e(f"ds_read_b64_tr_b16 v[{Vp+4*u+2*t}:{Vp+4*u+2*t+1}], v3 offset:{1024*(tl+1)+512*u+256*t}")
        if fair and tl == 1:
            e("v_readfirstlane_b32 s51, v116")
            e("v_add_u32 v115, 1, v115")
            e("s_cmp_gt_u32 s55, s51")
            e(f"s_cbranch_scc1 L_{n}_lo")
            e("s_setprio 1")
            e(f"s_branch L_{n}_pd")
            e(f"L_{n}_lo:")
            e("s_setprio 0")
            e(f"L_{n}_pd:")
        for i in range(3, 9): X(S + i)
        for i in range(4): e(f"v_cvt_pk_bf16_f32 v{64+i}, v{S+2*i}, v{S+2*i+1}")
        X(S + 9); X(S + 10)
        e("s_waitcnt lgkmcnt(5)")
        e(f"v_mfma_f32_32x32x16_bf16 v[72:87], v[{V}:{V+3}], v[64:67], v[72:87]")
        for i in range(11, 16): X(S + i)
        if tl == 3:
            e("v_add_u32 v12, 4096, v12")
            e("v_add_u32 v3, v4, v3")
        else:
            e("s_nop 0")
        for i in range(4, 8): e(f"v_cvt_pk_bf16_f32 v{64+i}, v{S+2*i}, v{S+2*i+1}")
    e("s_add_u32 s55, s55, 1")
    e("s_cmp_lt_u32 s55, 16")
    e(f"s_cbranch_scc1 L_{n}_loop")
    e("v_mfma_f32_32x32x16_bf16 v[72:87], v[108:111], v[68:71], v[72:87]")
    T.stamp()
    e("s_lshl_b32 s49, s48, 5")
    e("s_add_u32 s49, s49, s40")
    e("s_lshl_b32 s49, s49, 10")
    e(f"s_add_u32 s49, s49, {OOFF}")
    e("s_waitcnt lgkmcnt(0)")
    e("s_nop 7")
    e("v_mul_f32 v32, 0, v72")
    for r in range(73, 80): e(f"v_fma_f32 v32, v{r}, 0, v32")
    e(f"v_mov_b32 v33, {f32(2.0**60)}")
    e("v_add_f32 v32, v32, v80")
    e("v_cmp_nlt_f32 vcc, v32, v33")
    e("s_cmp_lg_u32 s56, 0")
    e(f"s_cbranch_scc1 L_{n}_store")
    e("s_cmp_eq_u64 vcc, 0")
    e(f"s_cbranch_scc1 L_{n}_store")
    e("s_mov_b32 s56, 1")
    e("s_mov_b32 s55, 0")
    e("v_mov_b32 v12, v2")
    e("v_mov_b32 v16, 0xff800000")
    e("v_mov_b32 v17, 0xff800000")
    e(f"L_{n}_mloop:")
    e("ds_read_b128 v[88:91], v12")
    e("s_waitcnt lgkmcnt(0)")
    e("v_mfma_f32_32x32x16_bf16 v[32:47], v[88:91], v[8:11], 0")
    e("v_add_u32 v12, 1024, v12")
    e("s_nop 7"); e("s_nop 3")
    for i in range(4):
        e(f"v_max3_f32 v16, v16, v{32+4*i}, v{33+4*i}")
        e(f"v_max3_f32 v17, v17, v{34+4*i}, v{35+4*i}")
    e("s_add_u32 s55, s55, 1")
    e("s_cmp_lt_u32 s55, 64")
    e(f"s_cbranch_scc1 L_{n}_mloop")
    e(f"s_branch L_{n}_setmax")
    e(f"L_{n}_store:")
    e("v_rcp_f32 v80, v80")
    e("s_nop 0")
    for r in range(72, 80): e(f"v_mul_f32 v{r}, v{r}, v80")
    for p in range(4): e(f"v_cvt_pk_bf16_f32 v{64+p}, v{72+2*p}, v{73+2*p}")
    e("buffer_store_dwordx4 v[64:67], v2, s[32:35], s49 offen")


def gemm(a, tag, nact, nw, N, D, acc, fr, s_act, s_w, st_act, st_w, s_cnt=None, sc_act="", pace=None, hook=None, pre_w=False):
    e = a.e
    nf = nact + nw
    def F(r, i): return fr + 4 * (nf * r + i)
    def issue(r):
        if s_cnt is not None:
            e(f"s_cmp_gt_i32 s{s_cnt}, 0")
            e(f"s_cselect_b32 s60, s{s_act}, s59")
            e(f"s_cselect_b32 s61, s{s_w}, s59")
            e(f"s_sub_i32 s{s_cnt}, s{s_cnt}, 1")
            sa, sw = 60, 61
        else:
            sa, sw = s_act, s_w
        for t in range(nact):
            so = f"s{sa}"
            if t:
                e(f"s_add_u32 s62, s{sa}, {st_act if isinstance(st_act, str) else t*st_act}"); so = "s62"
            e(f"buffer_load_dwordx4 v[{F(r,t)}:{F(r,t)+3}], v2, s[32:35], {so} offen{sc_act}")
        for i in range(nw):
            so = f"s{sw}"
            if i:
                e(f"s_add_u32 s62, s{sw}, {st_w if isinstance(st_w, str) else i*st_w}"); so = "s62"
            e(f"buffer_load_dwordx4 v[{F(r,nact+i)}:{F(r,nact+i)+3}], v2, s[32:35], {so} offen")
        e(f"s_add_u32 s{s_act}, s{s_act}, 1024")
        e(f"s_add_u32 s{s_w}, s{s_w}, 1024")
    def step(j, first=False):
        r = j % D
        e(f"s_waitcnt vmcnt({nf*min(D-1, N-1-j)})")
        for i in range(nw):
            for t in range(nact):
                d = acc + 16 * (i * nact + t)
                cc = "0" if first else f"v[{d}:{d+15}]"
                e(f"v_mfma_f32_32x32x16_bf16 v[{d}:{d+15}], v[{F(r,nact+i)}:{F(r,nact+i)+3}], v[{F(r,t)}:{F(r,t)+3}], {cc}")
                if pace: e(pace)
        if j + D < N: issue(r)
    if s_cnt is not None: e(f"s_mov_b32 s59, {BIG}")
    for r in range(D): issue(r)
    if hook: hook(nf * D)
    step(0, True)
    m = (N - 1 - D) // D
    j = 1
    if m >= 2:
        e(f"s_mov_b32 s58, {m}")
        e(f"L_{a.name}_{tag}_loop:")
        for jj in range(1, D + 1): step(jj)
        e("s_sub_u32 s58, s58, 1")
        e("s_cmp_lg_u32 s58, 0")
        e(f"s_cbranch_scc1 L_{a.name}_{tag}_loop")
        j = 1 + m * D
    while j < N:
        step(j); j += 1


def b_waves(a, T, with_w4):
    e = a.e
    pace = ENV("K2_PACE", "s_nop 7") or None
    st = {"n": 0}
    def sync():
        st["n"] += 1
        e("s_waitcnt lgkmcnt(0)")
        lds_signal(a, 8, 6, 7)
        lds_wait(a, f"sy{st['n']}", 8, 4 * st["n"], 6, 7, 68, 69, setaddr=False)

    e("s_sub_u32 s45, s44, 8")
    a.srd(24, 4, 2048 * 1024)
    e("s_lshl_b32 s46, s40, 16")
    e("s_lshl_b32 s47, s45, 10")
    e("s_add_u32 s46, s46, s47")
    e(f"s_add_u32 s46, s46, {KOFF}")
    def kv(t0, cnt):
        for i in range(cnt):
            off = (t0 + 4 * i) * 1024
            e(f"s_add_u32 m0, s47, {L_K + off}")
            e(f"s_add_u32 s48, s46, {off}")
            e("buffer_load_dwordx4 v2, s[32:35], s48 offen lds")
            e(f"s_add_u32 m0, s47, {L_V + off}")
            e(f"s_add_u32 s48, s46, {off + VOFF - KOFF}")
            e("buffer_load_dwordx4 v2, s[32:35], s48 offen lds")
    kv(0, 2)
    kv(8, 6)
    e("s_waitcnt vmcnt(12)")
    lds_signal(a, 9, 6, 7)
    e("s_setprio %s" % ENV("K2_PRIO", "3"))
    T.n = 1
    T.stamp()
    if ENV("K2_NOB") == "1":
        kv(32, 8); e("s_waitcnt vmcnt(0)"); lds_signal(a, 10, 6, 7); lds_signal(a, 11, 6, 7); e("s_endpgm")

    e("s_and_b32 s50, s45, 1")
    e("s_lshr_b32 s51, s45, 1")
    e("s_lshl_b32 s64, s40, 1"); e("s_add_u32 s64, s64, s50")
    e("s_lshl_b32 s65, s41, 1"); e("s_add_u32 s65, s65, s51")
    for j in range(1, 4):
        e(f"s_xor_b32 s60, s45, {j}")
        e("s_mul_i32 s60, s60, 6144")
        e(f"s_add_u32 s60, s60, {L_B + (j-1)*2048}")
        e(f"v_add_u32 v{2+j}, s60, v2")
    e("s_mul_i32 s52, s45, 6144")
    e(f"s_add_u32 s52, s52, {L_B}")

    def signed_stride(sreg, bit_sreg, stride):
        e(f"s_mov_b32 s{sreg}, {stride}")
        e(f"s_cmp_eq_u32 s{bit_sreg}, 1")
        e(f"s_cselect_b32 s{sreg}, {(-stride) & 0xffffffff}, s{sreg}")

    def x_tile(dst, vt):
        e("s_lshl_b32 s60, s64, 15")
        e("s_lshl_b32 s61, s65, 6")
        e("s_add_u32 s60, s60, s61")
        e(f"v_and_b32 v{vt}, 31, v1")
        e(f"v_lshrrev_b32 v{vt+1}, 5, v1")
        e(f"v_lshlrev_b32 v{vt+2}, 10, v{vt}")
        e(f"v_lshl_add_u32 v{vt+2}, v{vt+1}, 3, v{vt+2}")
        for g in range(4):
            e(f"buffer_load_dwordx2 v[{dst+2*g}:{dst+2*g+1}], v{vt+2}, s[24:27], s60 offen offset:{16*g}")

    def reduce22(ACC, TMP):
        e("s_nop 7"); e("s_nop 3")
        e(f"v_add_u32 v{TMP+24}, s52, v2")
        for h in range(2):
            for j in range(1, 4):
                for q in range(2):
                    r = ACC + 16 * j + 8 * h + 4 * q
                    e(f"ds_write_b128 v{2+j}, v[{r}:{r+3}] offset:{q*1024}")
            sync()
            for i in range(6):
                e(f"ds_read_b128 v[{TMP+4*i}:{TMP+4*i+3}], v{TMP+24} offset:{i*1024}")
            if h == 0:
                sync()
            else:
                e("s_waitcnt lgkmcnt(0)")
            for j in range(3):
                for r in range(8):
                    e(f"v_add_f32 v{ACC+8*h+r}, v{ACC+8*h+r}, v{TMP+8*j+r}")

    def xsync(ph, during=None):
        e("s_waitcnt vmcnt(0)")
        if ph == 0: lds_signal(a, 11, 6, 7)
        e("s_lshl_b32 s70, s40, 8")
        e(f"s_add_u32 s70, s70, {FLAGS + 128*ph}")
        e("s_lshl_b32 s61, s41, 2")
        e("s_add_u32 s61, s61, s45")
        e("s_lshl_b32 s61, s61, 2")
        e("v_mov_b32 v6, s61")
        e("v_mov_b32 v7, 1")
        e("s_mov_b64 exec, 1")
        e("buffer_store_dword v7, v6, s[32:35], s70 offen sc1")
        e("s_mov_b64 exec, -1")
        if during: during()
        e("v_and_b32 v6, 31, v1")
        e("v_lshlrev_b32 v6, 2, v6")
        e(f"s_mov_b32 s68, {SPIN_MAX}")
        e(f"L_k2_xs{ph}:")
        e("buffer_load_dword v7, v6, s[32:35], s70 offen sc1")
        e("s_waitcnt vmcnt(0)")
        e("v_cmp_eq_u32 vcc, 0, v7")
        e("s_cmp_eq_u64 vcc, 0")
        e(f"s_cbranch_scc1 L_k2_xs{ph}_go")
        e("s_sleep 2")
        e("s_sub_u32 s68, s68, 1")
        e("s_cmp_lg_u32 s68, 0")
        e(f"s_cbranch_scc1 L_k2_xs{ph}")
        e(f"L_k2_xs{ph}_go:")

    ACC, FR, XR = 8, 72, 136
    x_tile(XR, 146)
    e("s_lshl_b32 s61, s64, 8")
    e(f"s_add_u32 s61, s61, {STAT}")
    e("v_lshlrev_b32 v148, 3, v146")
    e("buffer_load_dwordx2 v[144:145], v148, s[32:35], s61 offen")
    e("s_lshl_b32 s60, s45, 3")
    e("s_lshl_b32 s56, s64, 5"); e("s_add_u32 s56, s56, s60"); e("s_lshl_b32 s56, s56, 10"); e(f"s_add_u32 s56, s56, {HOFF}")
    e("s_lshl_b32 s57, s65, 5"); e("s_add_u32 s57, s57, s60"); e("s_lshl_b32 s57, s57, 10"); e(f"s_add_u32 s57, s57, {W2F}")
    signed_stride(53, 50, 32768)
    signed_stride(54, 51, 32768)
    def hook(ny):
        e(f"s_waitcnt vmcnt({ny + 5})")
        lds_signal(a, 10, 6, 7)
    gemm(a, "w2", 2, 2, 8, 4, ACC, FR, 56, 57, "s53", "s54", pace=pace, hook=hook)
    kv(32, 8)
    e("s_mul_i32 s66, s41, 5")
    e("s_min_u32 s60, s41, 3")
    e("s_add_u32 s66, s66, s60")
    e("s_and_b32 s61, s40, 3"); e("s_lshl_b32 s61, s61, 2"); e("s_add_u32 s61, s61, s45")
    e("s_lshl_b32 s62, s66, 5"); e("s_mul_i32 s63, s61, 12"); e("s_add_u32 s62, s62, s63"); e("s_lshl_b32 s62, s62, 10"); e(f"s_add_u32 s62, s62, {W3F}")
    e("v_lshlrev_b32 v6, 7, v1")
    e("buffer_load_dword v149, v6, s[32:35], s62 offen")
    e("s_add_u32 s62, s62, 4096")
    e("buffer_load_dword v149, v6, s[32:35], s62 offen")
    reduce22(ACC, FR)
    U = FR
    e("v_mul_f32 v146, v144, v145")
    e("s_mov_b32 s60, 0xffff0000")
    for p in range(8):
        e(f"v_lshlrev_b32 v{U+2*p}, 16, v{XR+p}")
        e(f"v_and_b32 v{U+2*p+1}, s60, v{XR+p}")
    for r in range(16): e(f"v_sub_f32 v{ACC+r}, v{ACC+r}, v146")
    for r in range(16): e(f"v_fmac_f32 v{ACC+r}, v{U+r}, v145")
    for p in range(8): e(f"v_cvt_pk_bf16_f32 v{ACC+16+p}, v{ACC+2*p}, v{ACC+2*p+1}")
    e("s_lshl_b32 s60, s64, 5"); e("s_lshl_b32 s61, s65, 1"); e("s_add_u32 s60, s60, s61"); e("s_lshl_b32 s60, s60, 10"); e(f"s_add_u32 s60, s60, {X1OFF}")
    e(f"buffer_store_dwordx4 v[{ACC+16}:{ACC+19}], v2, s[32:35], s60 offen sc1")
    e(f"buffer_store_dwordx4 v[{ACC+20}:{ACC+23}], v2, s[32:35], s60 offen offset:1024 sc1")
    e(f"v_add_f32 v144, v{ACC}, v{ACC+1}")
    e(f"v_mul_f32 v145, v{ACC}, v{ACC}")
    e(f"v_add_f32 v146, v{ACC+2}, v{ACC+3}")
    e(f"v_mul_f32 v147, v{ACC+1}, v{ACC+1}")
    e(f"v_fmac_f32 v145, v{ACC+2}, v{ACC+2}")
    e(f"v_fmac_f32 v147, v{ACC+3}, v{ACC+3}")
    for r in range(4, 16):
        e(f"v_add_f32 v{144 + 2*(r&1)}, v{144 + 2*(r&1)}, v{ACC+r}")
        e(f"v_fmac_f32 v{145 + 2*(r&1)}, v{ACC+r}, v{ACC+r}")
    e("v_add_f32 v144, v144, v146")
    e("v_add_f32 v145, v145, v147")
    e("v_mov_b32 v146, v144")
    e("v_mov_b32 v147, v145")
    e("s_lshl_b32 s60, s64, 4"); e("s_add_u32 s60, s60, s65")
    e("v_permlane32_swap_b32 v144, v146")
    e("v_permlane32_swap_b32 v145, v147")
    e("s_lshl_b32 s60, s60, 8"); e(f"s_add_u32 s60, s60, {X1STAT}")
    e("v_add_f32 v144, v144, v146")
    e("v_add_f32 v145, v145, v147")
    e("s_mov_b32 exec_hi, 0")
    e("buffer_store_dwordx2 v[144:145], v148, s[32:35], s60 offen sc1")
    e("s_mov_b64 exec, -1")
    T.stamp()
    if ENV("K2_STOP") == "1": e("s_waitcnt vmcnt(0)"); lds_signal(a, 11, 6, 7); e("s_endpgm")

    def colsum():
        e("s_mul_i32 s60, s45, 8*1408*4")
        e("s_lshl_b32 s61, s66, 7")
        e("s_add_u32 s60, s60, s61")
        e(f"s_add_u32 s60, s60, {CS3P}")
        e("s_mov_b32 exec_hi, 0xffff")
        for i in range(8):
            e(f"buffer_load_dwordx4 v[{8+4*i}:{11+4*i}], v2, s[32:35], s60 offen")
            if i < 7: e("s_add_u32 s60, s60, 1408*4")
        e(f"v_add_u32 v6, {L_CS}, v2")
        e("s_waitcnt vmcnt(0)")
        for i in range(1, 8):
            for r in range(4): e(f"v_add_f32 v{8+r}, v{8+r}, v{8+4*i+r}")
        for r in range(4): e(f"ds_add_f32 v6, v{8+r} offset:{4*r}")
        e("s_mov_b64 exec, -1")
    xsync(0, colsum)
    T.stamp()
    if ENV("K2_STOP") == "2": e("s_endpgm")

    ACC, FR = 8, 104
    e("s_mul_i32 s61, s51, 3")
    e("s_add_u32 s67, s66, s61")
    e("s_lshl_b32 s60, s50, 4")
    e("s_lshl_b32 s56, s64, 5"); e("s_add_u32 s56, s56, s60"); e("s_lshl_b32 s56, s56, 10"); e(f"s_add_u32 s56, s56, {X1OFF}")
    e("s_lshl_b32 s57, s67, 5"); e("s_add_u32 s57, s57, s60"); e("s_lshl_b32 s57, s57, 10"); e(f"s_add_u32 s57, s57, {W3F}")
    gemm(a, "w3", 2, 3, 16, 3, ACC, FR, 56, 57, "s53", 32768, sc_act=" sc1", pace=pace)
    if ENV("K2_FINE") == "1": T.stamp()
    e("v_and_b32 v164, 31, v1")
    e("v_lshrrev_b32 v165, 5, v1")
    e("v_lshlrev_b32 v166, 3, v164")
    e("v_lshl_add_u32 v166, v165, 11, v166")
    e("s_lshl_b32 s60, s64, 12")
    e(f"s_add_u32 s60, s60, {X1STAT}")
    SR = FR + 40
    for j in range(8):
        e(f"buffer_load_dwordx2 v[{SR+2*j}:{SR+2*j+1}], v166, s[32:35], s60 offen offset:{256*j} sc1")
    e(f"v_add_u32 v167, s52, v2")
    e("s_nop 3")
    quads = [(i, q) for i in range(3) for q in range(4)]
    for h in range(2):
        for s_, (i, q) in enumerate(quads[6*h:6*h+6]):
            r = ACC + 16 * (2 * i + 1) + 4 * q
            e(f"ds_write_b128 v3, v[{r}:{r+3}] offset:{s_*1024}")
        sync()
        for s_ in range(6):
            e(f"ds_read_b128 v[{FR+4*s_}:{FR+4*s_+3}], v167 offset:{s_*1024}")
        if h == 0: sync()
        else: e("s_waitcnt lgkmcnt(0)")
        for s_, (i, q) in enumerate(quads[6*h:6*h+6]):
            for r in range(4):
                d = ACC + 32 * i + 4 * q + r
                e(f"v_add_f32 v{d}, v{d}, v{FR+4*s_+r}")
    if ENV("K2_FINE") == "1": T.stamp()
    e("s_waitcnt vmcnt(0)")
    for j in range(1, 8):
        e(f"v_add_f32 v{SR}, v{SR}, v{SR+2*j}")
        e(f"v_add_f32 v{SR+1}, v{SR+1}, v{SR+2*j+1}")
    e(f"v_mov_b32 v{SR+2}, v{SR}")
    e(f"v_mov_b32 v{SR+3}, v{SR+1}")
    e("s_mul_i32 s60, s51, 384")
    e(f"s_add_u32 s60, s60, {L_CS}")
    e(f"v_permlane32_swap_b32 v{SR}, v{SR+2}")
    e(f"v_permlane32_swap_b32 v{SR+1}, v{SR+3}")
    e("v_lshl_add_u32 v166, v165, 4, s60")
    e(f"v_add_f32 v{SR}, v{SR}, v{SR+2}")
    e(f"v_add_f32 v{SR+1}, v{SR+1}, v{SR+3}")
    NMU, C1, C2, IA = SR + 4, SR + 5, SR + 6, SR + 7
    e(f"v_mul_f32 v{NMU}, {f32(-1/512)}, v{SR}")
    e(f"v_mul_f32 v{SR+1}, {f32(1/512)}, v{SR+1}")
    e(f"v_fma_f32 v{SR+1}, -v{NMU}, v{NMU}, v{SR+1}")
    e(f"v_max_f32 v{SR+1}, 0, v{SR+1}")
    e(f"v_add_f32 v{SR+1}, {f32(EPS)}, v{SR+1}")
    e(f"v_rsq_f32 v{SR}, v{SR+1}")
    e("s_mul_i32 s62, s64, 86")
    e(f"v_mul_f32 v{IA}, v{SR+1}, v{SR}")
    e(f"v_mul_f32 v{C1}, {f32(GELU_K1)}, v{SR}")
    e(f"v_mul_f32 v{C2}, v{SR}, v{SR}")
    e(f"v_mul_f32 v{C2}, v{C2}, v{SR}")
    e(f"v_mul_f32 v{C2}, {f32(GELU_K2)}, v{C2}")
    e("s_lshl_b32 s63, s67, 1"); e("s_add_u32 s62, s62, s63"); e("s_lshl_b32 s62, s62, 10"); e(f"s_add_u32 s62, s62, {GOFF}")
    e("s_cmp_ge_u32 s41, 3")
    e("s_cselect_b32 s63, s51, 0")
    for i in range(3):
        Z = ACC + 32 * i; Tm = Z + 16
        if i == 2:
            e("s_cmp_eq_u32 s63, 1")
            e("s_cbranch_scc1 L_k2_w3_done")
        for g in range(4):
            e(f"ds_read_b128 v[{FR+4*g}:{FR+4*g+3}], v166 offset:{128*i + 32*g}")
        e("s_waitcnt lgkmcnt(0)")
        R = range(16)
        for r in R: e(f"v_fmac_f32 v{Z+r}, v{NMU}, v{FR+r}")
        for r in R: e(f"v_mul_f32 v{Tm+r}, v{Z+r}, v{Z+r}")
        for r in R: e(f"v_fma_f32 v{Tm+r}, v{Tm+r}, v{C2}, v{C1}")
        for r in R: e(f"v_mul_f32 v{Tm+r}, v{Tm+r}, v{Z+r}")
        for r in R: e(f"v_exp_f32 v{Tm+r}, v{Tm+r}")
        for r in R: e(f"v_fma_f32 v{Tm+r}, v{Tm+r}, v{IA}, v{IA}")
        for r in R: e(f"v_rcp_f32 v{Tm+r}, v{Tm+r}")
        for r in R: e(f"v_mul_f32 v{Z+r}, v{Z+r}, v{Tm+r}")
        for p in range(8): e(f"v_cvt_pk_bf16_f32 v{Tm+p}, v{Z+2*p}, v{Z+2*p+1}")
        sc = " sc1" if with_w4 else ""
        e(f"buffer_store_dwordx4 v[{Tm}:{Tm+3}], v2, s[32:35], s62 offen offset:{(2048*i) % 4096}{sc}")
        e(f"buffer_store_dwordx4 v[{Tm+4}:{Tm+7}], v2, s[32:35], s62 offen offset:{(2048*i) % 4096 + 1024}{sc}")
        if i == 1: e("s_add_u32 s62, s62, 4096")
    e("L_k2_w3_done:")
    T.stamp()
    if not with_w4: return

    xsync(1)
    T.stamp()
    ACC, FR, XR, X1R = 8, 72, 136, 144
    x_tile(XR, 152)
    e("s_lshl_b32 s60, s64, 5"); e("s_lshl_b32 s61, s65, 1"); e("s_add_u32 s60, s60, s61"); e("s_lshl_b32 s60, s60, 10"); e(f"s_add_u32 s60, s60, {X1OFF}")
    e(f"buffer_load_dwordx4 v[{X1R}:{X1R+3}], v2, s[32:35], s60 offen sc1")
    e(f"buffer_load_dwordx4 v[{X1R+4}:{X1R+7}], v2, s[32:35], s60 offen offset:1024 sc1")
    e("s_mul_i32 s60, s45, 22")
    e("s_sub_u32 s55, 86, s60")
    e("s_min_u32 s55, s55, 22")
    e("s_mul_i32 s56, s64, 86"); e("s_add_u32 s56, s56, s60"); e("s_lshl_b32 s56, s56, 10"); e(f"s_add_u32 s56, s56, {GOFF}")
    e("s_mul_i32 s57, s65, 86"); e("s_add_u32 s57, s57, s60"); e("s_lshl_b32 s57, s57, 10"); e(f"s_add_u32 s57, s57, {W4F}")
    signed_stride(53, 50, 86 * 1024)
    signed_stride(54, 51, 86 * 1024)
    gemm(a, "w4", 2, 2, 22, 4, ACC, FR, 56, 57, "s53", "s54", s_cnt=55, sc_act=" sc1", pace=pace)
    reduce22(ACC, FR)
    e("s_mov_b32 s60, 0xffff0000")
    for base in (XR, X1R):
        for p in range(8):
            e(f"v_lshlrev_b32 v{FR+2*p}, 16, v{base+p}")
            e(f"v_and_b32 v{FR+2*p+1}, s60, v{base+p}")
        for r in range(16): e(f"v_add_f32 v{ACC+r}, v{ACC+r}, v{FR+r}")
    e("s_lshl_b32 s60, s64, 4"); e("s_add_u32 s60, s60, s65"); e("s_lshl_b32 s60, s60, 12"); e(f"s_add_u32 s60, s60, {ROFF}")
    for q in range(4):
        e(f"buffer_store_dwordx4 v[{ACC+4*q}:{ACC+4*q+3}], v2, s[32:35], s60 offen offset:{1024*q}")
    T.stamp()


def gen_k2(with_w4=(ENV('K2_W4', '0') == '1')):
    a = Asm("k2"); e = a.e
    T = Stamper(a, 72, 1)
    T.stamp()
    e("s_cmp_ge_u32 s2, 256")
    e("s_cbranch_scc1 L_k2_exit")
    e("s_load_dwordx2 s[4:5], s[0:1], 0")
    e("s_load_dwordx2 s[20:21], s[0:1], 80")
    e("v_lshrrev_b32 v1, 6, v0")
    e("s_and_b32 s54, s2, 7")
    e("v_readfirstlane_b32 s44, v1")
    e("v_and_b32 v1, 63, v0")
    e("v_lshlrev_b32 v2, 4, v1")
    e("s_lshl_b32 s40, s54, 2")
    e("s_bfe_u32 s54, s2, 0x20003")
    e("s_add_u32 s40, s40, s54")
    e("s_lshr_b32 s41, s2, 5")
    e("s_mov_b32 s45, s44")
    for r in range(4, 8): e(f"v_mov_b32 v{r}, 0")
    e(f"v_add_u32 v3, {L_CS}, v2")
    e("ds_write_b128 v3, v[4:7]")
    e("s_waitcnt lgkmcnt(0)")
    e("s_barrier")
    a.srd(32, 20, WS_USED)
    e("s_cmp_ge_u32 s44, 8")
    e("s_cbranch_scc1 L_k2_b")
    if ENV("K2_NOA") == "1":
        e("s_endpgm")
    attn_wave(a, T)
    T.stamp()
    T.dump(32, 44, 12, 4, 5)
    e("s_endpgm")
    e("L_k2_b:")
    b_waves(a, T, with_w4)
    T.dump(32, 44, 12, 4, 5)
    e("L_k2_exit:")
    e("s_endpgm")
    return a.kernel(vgpr=168, sgpr=96)
```

```python
from common import *

L_K = 0
L_V = 65536
L_ONES = 131072
L_B = L_ONES + 5632
L_CS = L_B + 24576
L_FLG = L_CS + 768
K2_LDS = L_FLG + 256
SPIN_MAX = 20000
BIG = 0x7ff00000
ENV = os.environ.get


def lds_signal(a, idx, va, vb):
    e = a.e
    e(f"v_mov_b32 v{va}, {L_FLG + 4*idx}")
    e(f"v_mov_b32 v{vb}, 1")
    e("s_mov_b64 exec, 1")
    e(f"ds_add_u32 v{va}, v{vb}")
    e("s_mov_b64 exec, -1")


def lds_wait(a, tag, idx, target, va, vb, s0, s1, sleep=1, setaddr=True):
    e = a.e
    if setaddr: e(f"v_mov_b32 v{va}, {L_FLG + 4*idx}")
    e(f"s_mov_b32 s{s0}, {SPIN_MAX}")
    e(f"L_{a.name}_lw{tag}:")
    e(f"ds_read_b32 v{vb}, v{va}")
    e("s_waitcnt lgkmcnt(0)")
    e(f"v_readfirstlane_b32 s{s1}, v{vb}")
    e(f"s_cmp_ge_u32 s{s1}, {target}")
    e(f"s_cbranch_scc1 L_{a.name}_lw{tag}_go")
    e(f"s_sleep {sleep}")
    e(f"s_sub_u32 s{s0}, s{s0}, 1")
    e(f"s_cmp_lg_u32 s{s0}, 0")
    e(f"s_cbranch_scc1 L_{a.name}_lw{tag}")
    e(f"L_{a.name}_lw{tag}_go:")


def attn_wave(a, T):
    e = a.e; n = a.name
    e("s_lshl_b32 s48, s41, 3")
    e("s_add_u32 s48, s48, s45")
    e("s_lshl_b32 s49, s40, 6")
    e("s_add_u32 s49, s49, s48")
    e("s_lshl_b32 s49, s49, 10")
    e("buffer_load_dwordx4 v[8:11], v2, s[32:35], s49 offen")
    e("v_and_b32 v5, 1, v1")
    e("v_cmp_eq_u32 vcc, 0, v5")
    e("v_mov_b32 v5, 0x3f80")
    e("v_mov_b32 v33, 0"); e("v_mov_b32 v35, 0")
    e("v_cndmask_b32 v32, 0, v5, vcc")
    e("v_mov_b32 v34, v32")
    e("v_lshlrev_b32 v3, 4, v0")
    e(f"v_cmp_gt_u32 vcc, 5632, v3")
    e(f"v_add_u32 v3, {L_ONES}, v3")
    e("s_and_saveexec_b64 s[50:51], vcc")
    e("ds_write_b128 v3, v[32:35]")
    e("s_mov_b64 exec, -1")
    e("v_lshrrev_b32 v5, 5, v1")
    e("v_bfe_u32 v6, v1, 4, 1")
    e("v_xor_b32 v7, v5, v6")
    e("v_and_b32 v3, 15, v1")
    e("v_lshlrev_b32 v3, 3, v3")
    e("v_lshl_add_u32 v3, v7, 7, v3")
    e("v_lshl_add_u32 v3, v6, 16, v3")
    e(f"v_add_u32 v112, {L_V}, v3")
    e("v_xor_b32 v4, 1, v6")
    e("v_lshlrev_b32 v4, 12, v4")
    e("s_mov_b32 s56, 0")
    e("s_lshl_b32 s51, s45, 2")
    e(f"s_add_u32 s51, s51, {L_FLG + 64}")
    e("v_mov_b32 v113, s51")
    e("v_xor_b32 v114, 16, v113")
    e("v_mov_b32 v115, 0")
    e("v_mov_b32 v116, 0")
    e("s_waitcnt lgkmcnt(0)")
    lds_signal(a, 9, 5, 6)
    lds_wait(a, "c0", 9, 12, 5, 6, 51, 52)
    T.stamp()
    e("ds_read_b128 v[88:91], v2")
    e("s_waitcnt vmcnt(0) lgkmcnt(0)")
    e("v_mfma_f32_32x32x16_bf16 v[32:47], v[88:91], v[8:11], 0")
    e("s_nop 7"); e("s_nop 3")
    e("v_max3_f32 v16, v32, v33, v34")
    e("v_max3_f32 v17, v35, v36, v37")
    e("v_max3_f32 v16, v16, v38, v39")
    e("v_max3_f32 v17, v17, v40, v41")
    e("v_max3_f32 v16, v16, v42, v43")
    e("v_max3_f32 v17, v17, v44, v45")
    e("v_max3_f32 v16, v16, v46, v47")
    e(f"L_{n}_setmax:")
    e("v_max_f32 v16, v16, v17")
    e("v_mov_b32 v12, v2")
    e("v_mov_b32 v17, v16")
    e("v_mov_b32 v3, v112")
    e("ds_read_b128 v[88:91], v12")
    e("ds_read_b128 v[92:95], v12 offset:1024")
    e("v_permlane32_swap_b32 v16, v17")
    for u in range(2):
        for t in range(2):
            e(f"ds_read_b64_tr_b16 v[{96+4*u+2*t}:{97+4*u+2*t}], v3 offset:{512*u+256*t}")
    e("v_max_f32 v16, v16, v17")
    e("v_sub_f32 v16, 0, v16")
    for r in range(17, 32): e(f"v_mov_b32 v{r}, v16")
    for r in list(range(68, 88)) + list(range(104, 112)): e(f"v_mov_b32 v{r}, 0")
    e("s_waitcnt lgkmcnt(5)")
    e("v_mfma_f32_32x32x16_bf16 v[32:47], v[88:91], v[8:11], v[16:31]")
    e("s_nop 7")
    e("s_mov_b32 s55, 0")
    e(f"L_{n}_loop:")
    e("s_add_u32 s51, s55, 1")
    e("s_and_b32 s52, s51, s55")
    e("s_cmp_lg_u32 s52, 0")
    e(f"s_cbranch_scc1 L_{n}_nobar")
    e("s_cmp_eq_u32 s55, 0")
    e(f"s_cbranch_scc1 L_{n}_nobar")
    e("s_cmp_eq_u32 s55, 15")
    e(f"s_cbranch_scc1 L_{n}_nobar")
    e("s_bcnt1_i32_b32 s51, s55")
    e("s_lshl_b32 s51, s51, 2")
    e(f"s_add_u32 s51, s51, {L_FLG + 36}")
    e("v_mov_b32 v5, s51")
    lds_wait(a, "c1", 0, 4, 5, 6, 51, 52, setaddr=False)
    e(f"L_{n}_nobar:")
    X = lambda r: e(f"v_exp_f32 v{r}, v{r}")
    fair = ENV("K2_FAIR", "1") == "1"
    for tl in range(4):
        S = 32 + 16 * (tl % 2); Sn = 32 + 16 * ((tl + 1) % 2)
        Kn = 88 + 4 * ((tl + 1) % 2); Knn = 88 + 4 * (tl % 2)
        V = 96 + 8 * (tl % 2); Vp = 96 + 8 * ((tl + 1) % 2)
        e("s_waitcnt lgkmcnt(4)")
        e(f"v_mfma_f32_32x32x16_bf16 v[{Sn}:{Sn+15}], v[{Kn}:{Kn+3}], v[8:11], v[16:31]")
        if fair and tl == 0:
            e("ds_write_b32 v113, v115")
            e("ds_read_b32 v116, v114")
        e(f"ds_read_b128 v[{Knn}:{Knn+3}], v12 offset:{1024*(tl+2)}")
        X(S); X(S + 1); X(S + 2)
        e(f"v_mfma_f32_32x32x16_bf16 v[72:87], v[{Vp+4}:{Vp+7}], v[68:71], v[72:87]")
        for u in range(2):
            for t in range(2):
                e(f"ds_read_b64_tr_b16 v[{Vp+4*u+2*t}:{Vp+4*u+2*t+1}], v3 offset:{1024*(tl+1)+512*u+256*t}")
        if fair and tl == 1:
            e("v_readfirstlane_b32 s51, v116")
            e("v_add_u32 v115, 1, v115")
            e("s_cmp_gt_u32 s55, s51")
            e(f"s_cbranch_scc1 L_{n}_lo")
            e("s_setprio 1")
            e(f"s_branch L_{n}_pd")
            e(f"L_{n}_lo:")
            e("s_setprio 0")
            e(f"L_{n}_pd:")
        for i in range(3, 9): X(S + i)
        for i in range(4): e(f"v_cvt_pk_bf16_f32 v{64+i}, v{S+2*i}, v{S+2*i+1}")
        X(S + 9); X(S + 10)
        e("s_waitcnt lgkmcnt(5)")
        e(f"v_mfma_f32_32x32x16_bf16 v[72:87], v[{V}:{V+3}], v[64:67], v[72:87]")
        for i in range(11, 16): X(S + i)
        if tl == 3:
            e("v_add_u32 v12, 4096, v12")
            e("v_add_u32 v3, v4, v3")
        else:
            e("s_nop 0")
        for i in range(4, 8): e(f"v_cvt_pk_bf16_f32 v{64+i}, v{S+2*i}, v{S+2*i+1}")
    e("s_add_u32 s55, s55, 1")
    e("s_cmp_lt_u32 s55, 16")
    e(f"s_cbranch_scc1 L_{n}_loop")
    e("v_mfma_f32_32x32x16_bf16 v[72:87], v[108:111], v[68:71], v[72:87]")
    T.stamp()
    e("s_lshl_b32 s49, s48, 5")
    e("s_add_u32 s49, s49, s40")
    e("s_lshl_b32 s49, s49, 10")
    e(f"s_add_u32 s49, s49, {OOFF}")
    e("s_waitcnt lgkmcnt(0)")
    e("s_nop 7")
    e("v_mul_f32 v32, 0, v72")
    for r in range(73, 80): e(f"v_fma_f32 v32, v{r}, 0, v32")
    e(f"v_mov_b32 v33, {f32(2.0**60)}")
    e("v_add_f32 v32, v32, v80")
    e("v_cmp_nlt_f32 vcc, v32, v33")
    e("s_cmp_lg_u32 s56, 0")
    e(f"s_cbranch_scc1 L_{n}_store")
    e("s_cmp_eq_u64 vcc, 0")
    e(f"s_cbranch_scc1 L_{n}_store")
    e("s_mov_b32 s56, 1")
    e("s_mov_b32 s55, 0")
    e("v_mov_b32 v12, v2")
    e("v_mov_b32 v16, 0xff800000")
    e("v_mov_b32 v17, 0xff800000")
    e(f"L_{n}_mloop:")
    e("ds_read_b128 v[88:91], v12")
    e("s_waitcnt lgkmcnt(0)")
    e("v_mfma_f32_32x32x16_bf16 v[32:47], v[88:91], v[8:11], 0")
    e("v_add_u32 v12, 1024, v12")
    e("s_nop 7"); e("s_nop 3")
    for i in range(4):
        e(f"v_max3_f32 v16, v16, v{32+4*i}, v{33+4*i}")
        e(f"v_max3_f32 v17, v17, v{34+4*i}, v{35+4*i}")
    e("s_add_u32 s55, s55, 1")
    e("s_cmp_lt_u32 s55, 64")
    e(f"s_cbranch_scc1 L_{n}_mloop")
    e(f"s_branch L_{n}_setmax")
    e(f"L_{n}_store:")
    e("v_rcp_f32 v80, v80")
    e("s_nop 0")
    for r in range(72, 80): e(f"v_mul_f32 v{r}, v{r}, v80")
    for p in range(4): e(f"v_cvt_pk_bf16_f32 v{64+p}, v{72+2*p}, v{73+2*p}")
    e("buffer_store_dwordx4 v[64:67], v2, s[32:35], s49 offen")


def gemm(a, tag, nact, nw, N, D, acc, fr, s_act, s_w, st_act, st_w, s_cnt=None, sc_act="", pace=None, hook=None, hook_step=None):
    e = a.e
    nf = nact + nw
    def F(r, i): return fr + 4 * (nf * r + i)
    def issue(r):
        if s_cnt is not None:
            e(f"s_cmp_gt_i32 s{s_cnt}, 0")
            e(f"s_cselect_b32 s60, s{s_act}, s59")
            e(f"s_cselect_b32 s61, s{s_w}, s59")
            e(f"s_sub_i32 s{s_cnt}, s{s_cnt}, 1")
            sa, sw = 60, 61
        else:
            sa, sw = s_act, s_w
        for t in range(nact):
            so = f"s{sa}"
            if t:
                e(f"s_add_u32 s62, s{sa}, {st_act if isinstance(st_act, str) else t*st_act}"); so = "s62"
            e(f"buffer_load_dwordx4 v[{F(r,t)}:{F(r,t)+3}], v2, s[32:35], {so} offen{sc_act}")
        for i in range(nw):
            so = f"s{sw}"
            if i:
                e(f"s_add_u32 s62, s{sw}, {st_w if isinstance(st_w, str) else i*st_w}"); so = "s62"
            e(f"buffer_load_dwordx4 v[{F(r,nact+i)}:{F(r,nact+i)+3}], v2, s[32:35], {so} offen")
        e(f"s_add_u32 s{s_act}, s{s_act}, 1024")
        e(f"s_add_u32 s{s_w}, s{s_w}, 1024")
    def step(j, first=False):
        r = j % D
        e(f"s_waitcnt vmcnt({nf*min(D-1, N-1-j)})")
        if hook_step: hook_step(j)
        for i in range(nw):
            for t in range(nact):
                d = acc + 16 * (i * nact + t)
                cc = "0" if first else f"v[{d}:{d+15}]"
                e(f"v_mfma_f32_32x32x16_bf16 v[{d}:{d+15}], v[{F(r,nact+i)}:{F(r,nact+i)+3}], v[{F(r,t)}:{F(r,t)+3}], {cc}")
                if pace: e(pace)
        if j + D < N: issue(r)
    if s_cnt is not None: e(f"s_mov_b32 s59, {BIG}")
    for r in range(D): issue(r)
    if hook: hook(nf * D)
    step(0, True)
    m = (N - 1 - D) // D
    j = 1
    if m >= 2:
        e(f"s_mov_b32 s58, {m}")
        e(f"L_{a.name}_{tag}_loop:")
        for jj in range(1, D + 1): step(jj)
        e("s_sub_u32 s58, s58, 1")
        e("s_cmp_lg_u32 s58, 0")
        e(f"s_cbranch_scc1 L_{a.name}_{tag}_loop")
        j = 1 + m * D
    while j < N:
        step(j); j += 1


def b_waves(a, T, with_w4):
    e = a.e
    pace = ENV("K2_PACE", "s_nop 7") or None
    st = {"n": 0}
    def sync():
        st["n"] += 1
        e("s_waitcnt lgkmcnt(0)")
        lds_signal(a, 8, 6, 7)
        lds_wait(a, f"sy{st['n']}", 8, 4 * st["n"], 6, 7, 68, 69, setaddr=False)

    e("s_sub_u32 s45, s44, 8")
    a.srd(24, 4, 2048 * 1024)
    e("s_lshl_b32 s46, s40, 16")
    e("s_lshl_b32 s47, s45, 10")
    e("s_add_u32 s46, s46, s47")
    e(f"s_add_u32 s46, s46, {KOFF}")
    def kv(t0, cnt):
        for i in range(cnt):
            off = (t0 + 4 * i) * 1024
            e(f"s_add_u32 m0, s47, {L_K + off}")
            e(f"s_add_u32 s48, s46, {off}")
            e("buffer_load_dwordx4 v2, s[32:35], s48 offen lds")
            e(f"s_add_u32 m0, s47, {L_V + off}")
            e(f"s_add_u32 s48, s46, {off + VOFF - KOFF}")
            e("buffer_load_dwordx4 v2, s[32:35], s48 offen lds")
    OLD = ENV("K2_ORDER", "old") == "old"
    kv(0, 2)
    if OLD:
        kv(8, 6)
        e("s_waitcnt vmcnt(12)")
        lds_signal(a, 9, 6, 7)
    e("s_setprio %s" % ENV("K2_PRIO", "3"))
    T.n = 1
    T.stamp()
    if ENV("K2_NOB") == "1":
        kv(8, 14); e("s_waitcnt vmcnt(0)")
        for i in (9, 10, 11, 12): lds_signal(a, i, 6, 7)
        e("s_endpgm")

    e("s_and_b32 s50, s45, 1")
    e("s_lshr_b32 s51, s45, 1")
    e("s_lshl_b32 s64, s40, 1"); e("s_add_u32 s64, s64, s50")
    e("s_lshl_b32 s65, s41, 1"); e("s_add_u32 s65, s65, s51")
    for j in range(1, 4):
        e(f"s_xor_b32 s60, s45, {j}")
        e("s_mul_i32 s60, s60, 6144")
        e(f"s_add_u32 s60, s60, {L_B + (j-1)*2048}")
        e(f"v_add_u32 v{2+j}, s60, v2")
    e("s_mul_i32 s52, s45, 6144")
    e(f"s_add_u32 s52, s52, {L_B}")

    def signed_stride(sreg, bit_sreg, stride):
        e(f"s_mov_b32 s{sreg}, {stride}")
        e(f"s_cmp_eq_u32 s{bit_sreg}, 1")
        e(f"s_cselect_b32 s{sreg}, {(-stride) & 0xffffffff}, s{sreg}")

    def x_tile(dst, vt):
        e("s_lshl_b32 s60, s64, 15")
        e("s_lshl_b32 s61, s65, 6")
        e("s_add_u32 s60, s60, s61")
        e(f"v_and_b32 v{vt}, 31, v1")
        e(f"v_lshrrev_b32 v{vt+1}, 5, v1")
        e(f"v_lshlrev_b32 v{vt+2}, 10, v{vt}")
        e(f"v_lshl_add_u32 v{vt+2}, v{vt+1}, 3, v{vt+2}")
        for g in range(4):
            e(f"buffer_load_dwordx2 v[{dst+2*g}:{dst+2*g+1}], v{vt+2}, s[24:27], s60 offen offset:{16*g}")

    def reduce22(ACC, TMP):
        e("s_nop 7"); e("s_nop 3")
        e(f"v_add_u32 v{TMP+24}, s52, v2")
        for h in range(2):
            for j in range(1, 4):
                for q in range(2):
                    r = ACC + 16 * j + 8 * h + 4 * q
                    e(f"ds_write_b128 v{2+j}, v[{r}:{r+3}] offset:{q*1024}")
            sync()
            for i in range(6):
                e(f"ds_read_b128 v[{TMP+4*i}:{TMP+4*i+3}], v{TMP+24} offset:{i*1024}")
            if h == 0:
                sync()
            else:
                e("s_waitcnt lgkmcnt(0)")
            for j in range(3):
                for r in range(8):
                    e(f"v_add_f32 v{ACC+8*h+r}, v{ACC+8*h+r}, v{TMP+8*j+r}")

    def xsync(ph, during=None):
        e("s_waitcnt vmcnt(0)")
        if ph == 0: lds_signal(a, 12, 6, 7)
        e("s_lshl_b32 s70, s40, 8")
        e(f"s_add_u32 s70, s70, {FLAGS + 128*ph}")
        e("s_lshl_b32 s61, s41, 2")
        e("s_add_u32 s61, s61, s45")
        e("s_lshl_b32 s61, s61, 2")
        e("v_mov_b32 v6, s61")
        e("v_mov_b32 v7, 1")
        e("s_mov_b64 exec, 1")
        e("buffer_store_dword v7, v6, s[32:35], s70 offen sc1")
        e("s_mov_b64 exec, -1")
        if during: during()
        e("v_and_b32 v6, 31, v1")
        e("v_lshlrev_b32 v6, 2, v6")
        e(f"s_mov_b32 s68, {SPIN_MAX}")
        e(f"L_k2_xs{ph}:")
        e("buffer_load_dword v7, v6, s[32:35], s70 offen sc1")
        e("s_waitcnt vmcnt(0)")
        e("v_cmp_eq_u32 vcc, 0, v7")
        e("s_cmp_eq_u64 vcc, 0")
        e(f"s_cbranch_scc1 L_k2_xs{ph}_go")
        e("s_sleep 2")
        e("s_sub_u32 s68, s68, 1")
        e("s_cmp_lg_u32 s68, 0")
        e(f"s_cbranch_scc1 L_k2_xs{ph}")
        e(f"L_k2_xs{ph}_go:")

    ACC, FR, XR = 8, 72, 136
    x_tile(XR, 146)
    e("s_lshl_b32 s61, s64, 8")
    e(f"s_add_u32 s61, s61, {STAT}")
    e("v_lshlrev_b32 v148, 3, v146")
    e("buffer_load_dwordx2 v[144:145], v148, s[32:35], s61 offen")
    e("s_lshl_b32 s60, s45, 3")
    e("s_lshl_b32 s56, s64, 5"); e("s_add_u32 s56, s56, s60"); e("s_lshl_b32 s56, s56, 10"); e(f"s_add_u32 s56, s56, {HOFF}")
    e("s_lshl_b32 s57, s65, 5"); e("s_add_u32 s57, s57, s60"); e("s_lshl_b32 s57, s57, 10"); e(f"s_add_u32 s57, s57, {W2F}")
    signed_stride(53, 50, 32768)
    signed_stride(54, 51, 32768)
    def hook(ny):
        if OLD:
            e(f"s_waitcnt vmcnt({ny + 5})")
            lds_signal(a, 10, 6, 7); lds_signal(a, 11, 6, 7)
            return
        kv(8, 2)
        e(f"s_waitcnt vmcnt({ny + 5 + 4})")
        lds_signal(a, 9, 6, 7)
    def hook_step(j):
        if j == 4 and not OLD: lds_signal(a, 10, 6, 7)
    gemm(a, "w2", 2, 2, 8, 4, ACC, FR, 56, 57, "s53", "s54", pace=pace, hook=hook, hook_step=hook_step)
    if ENV("K2_FINE") == "1": T.stamp()
    if not OLD: kv(16, 4)
    kv(32, 8)
    e("s_mul_i32 s66, s41, 5")
    e("s_min_u32 s60, s41, 3")
    e("s_add_u32 s66, s66, s60")
    e("s_and_b32 s61, s40, 3"); e("s_lshl_b32 s61, s61, 2"); e("s_add_u32 s61, s61, s45")
    e("s_lshl_b32 s62, s66, 5"); e("s_mul_i32 s63, s61, 12"); e("s_add_u32 s62, s62, s63"); e("s_lshl_b32 s62, s62, 10"); e(f"s_add_u32 s62, s62, {W3F}")
    e("v_lshlrev_b32 v6, 7, v1")
    e("buffer_load_dword v149, v6, s[32:35], s62 offen")
    e("s_add_u32 s62, s62, 4096")
    e("buffer_load_dword v149, v6, s[32:35], s62 offen")
    if ENV("K2_FINE") == "1": T.stamp()
    reduce22(ACC, FR)
    if ENV("K2_FINE") == "1": T.stamp()
    if not OLD:
        e("s_waitcnt vmcnt(18)")
        lds_signal(a, 11, 6, 7)
    U = FR
    e("v_mul_f32 v146, v144, v145")
    e("s_mov_b32 s60, 0xffff0000")
    for p in range(8):
        e(f"v_lshlrev_b32 v{U+2*p}, 16, v{XR+p}")
        e(f"v_and_b32 v{U+2*p+1}, s60, v{XR+p}")
    for r in range(16): e(f"v_sub_f32 v{ACC+r}, v{ACC+r}, v146")
    for r in range(16): e(f"v_fmac_f32 v{ACC+r}, v{U+r}, v145")
    for p in range(8): e(f"v_cvt_pk_bf16_f32 v{ACC+16+p}, v{ACC+2*p}, v{ACC+2*p+1}")
    e("s_lshl_b32 s60, s64, 5"); e("s_lshl_b32 s61, s65, 1"); e("s_add_u32 s60, s60, s61"); e("s_lshl_b32 s60, s60, 10"); e(f"s_add_u32 s60, s60, {X1OFF}")
    e(f"buffer_store_dwordx4 v[{ACC+16}:{ACC+19}], v2, s[32:35], s60 offen sc1")
    e(f"buffer_store_dwordx4 v[{ACC+20}:{ACC+23}], v2, s[32:35], s60 offen offset:1024 sc1")
    e(f"v_add_f32 v144, v{ACC}, v{ACC+1}")
    e(f"v_mul_f32 v145, v{ACC}, v{ACC}")
    e(f"v_add_f32 v146, v{ACC+2}, v{ACC+3}")
    e(f"v_mul_f32 v147, v{ACC+1}, v{ACC+1}")
    e(f"v_fmac_f32 v145, v{ACC+2}, v{ACC+2}")
    e(f"v_fmac_f32 v147, v{ACC+3}, v{ACC+3}")
    for r in range(4, 16):
        e(f"v_add_f32 v{144 + 2*(r&1)}, v{144 + 2*(r&1)}, v{ACC+r}")
        e(f"v_fmac_f32 v{145 + 2*(r&1)}, v{ACC+r}, v{ACC+r}")
    e("v_add_f32 v144, v144, v146")
    e("v_add_f32 v145, v145, v147")
    e("v_mov_b32 v146, v144")
    e("v_mov_b32 v147, v145")
    e("s_lshl_b32 s60, s64, 4"); e("s_add_u32 s60, s60, s65")
    e("v_permlane32_swap_b32 v144, v146")
    e("v_permlane32_swap_b32 v145, v147")
    e("s_lshl_b32 s60, s60, 8"); e(f"s_add_u32 s60, s60, {X1STAT}")
    e("v_add_f32 v144, v144, v146")
    e("v_add_f32 v145, v145, v147")
    e("s_mov_b32 exec_hi, 0")
    e("buffer_store_dwordx2 v[144:145], v148, s[32:35], s60 offen sc1")
    e("s_mov_b64 exec, -1")
    T.stamp()
    if ENV("K2_STOP") == "1": e("s_endpgm")

    def colsum():
        e("s_mul_i32 s60, s45, 8*1408*4")
        e("s_lshl_b32 s61, s66, 7")
        e("s_add_u32 s60, s60, s61")
        e(f"s_add_u32 s60, s60, {CS3P}")
        e("s_mov_b32 exec_hi, 0xffff")
        for i in range(8):
            e(f"buffer_load_dwordx4 v[{8+4*i}:{11+4*i}], v2, s[32:35], s60 offen")
            if i < 7: e("s_add_u32 s60, s60, 1408*4")
        e(f"v_add_u32 v6, {L_CS}, v2")
        e("s_waitcnt vmcnt(0)")
        for i in range(1, 8):
            for r in range(4): e(f"v_add_f32 v{8+r}, v{8+r}, v{8+4*i+r}")
        for r in range(4): e(f"ds_add_f32 v6, v{8+r} offset:{4*r}")
        e("s_mov_b64 exec, -1")
    xsync(0, colsum)
    T.stamp()
    if ENV("K2_STOP") == "2": e("s_endpgm")

    ACC, FR = 8, 104
    e("s_mul_i32 s61, s51, 3")
    e("s_add_u32 s67, s66, s61")
    e("s_lshl_b32 s60, s50, 4")
    e("s_lshl_b32 s56, s64, 5"); e("s_add_u32 s56, s56, s60"); e("s_lshl_b32 s56, s56, 10"); e(f"s_add_u32 s56, s56, {X1OFF}")
    e("s_lshl_b32 s57, s67, 5"); e("s_add_u32 s57, s57, s60"); e("s_lshl_b32 s57, s57, 10"); e(f"s_add_u32 s57, s57, {W3F}")
    gemm(a, "w3", 2, 3, 16, 3, ACC, FR, 56, 57, "s53", 32768, sc_act=" sc1", pace=pace)
    if ENV("K2_FINE") == "1": T.stamp()
    if with_w4:
        e("s_and_b32 s61, s40, 3"); e("s_lshl_b32 s61, s61, 2"); e("s_add_u32 s61, s61, s45")
        e("s_mul_i32 s62, s41, 172"); e("s_mul_i32 s63, s61, 11"); e("s_add_u32 s62, s62, s63"); e("s_lshl_b32 s62, s62, 10"); e(f"s_add_u32 s62, s62, {W4F}")
        e("v_lshlrev_b32 v6, 7, v1")
        e("buffer_load_dword v163, v6, s[32:35], s62 offen")
        e("s_add_u32 s62, s62, 3072")
        e("buffer_load_dword v163, v6, s[32:35], s62 offen")
    e("v_and_b32 v164, 31, v1")
    e("v_lshrrev_b32 v165, 5, v1")
    e("v_lshlrev_b32 v166, 3, v164")
    e("v_lshl_add_u32 v166, v165, 11, v166")
    e("s_lshl_b32 s60, s64, 12")
    e(f"s_add_u32 s60, s60, {X1STAT}")
    SR = FR + 40
    for j in range(8):
        e(f"buffer_load_dwordx2 v[{SR+2*j}:{SR+2*j+1}], v166, s[32:35], s60 offen offset:{256*j} sc1")
    e(f"v_add_u32 v167, s52, v2")
    e("s_nop 3")
    quads = [(i, q) for i in range(3) for q in range(4)]
    for h in range(2):
        for s_, (i, q) in enumerate(quads[6*h:6*h+6]):
            r = ACC + 16 * (2 * i + 1) + 4 * q
            e(f"ds_write_b128 v3, v[{r}:{r+3}] offset:{s_*1024}")
        sync()
        for s_ in range(6):
            e(f"ds_read_b128 v[{FR+4*s_}:{FR+4*s_+3}], v167 offset:{s_*1024}")
        if h == 0: sync()
        else: e("s_waitcnt lgkmcnt(0)")
        for s_, (i, q) in enumerate(quads[6*h:6*h+6]):
            for r in range(4):
                d = ACC + 32 * i + 4 * q + r
                e(f"v_add_f32 v{d}, v{d}, v{FR+4*s_+r}")
    if ENV("K2_FINE") == "1": T.stamp()
    e("s_waitcnt vmcnt(0)")
    for j in range(1, 8):
        e(f"v_add_f32 v{SR}, v{SR}, v{SR+2*j}")
        e(f"v_add_f32 v{SR+1}, v{SR+1}, v{SR+2*j+1}")
    e(f"v_mov_b32 v{SR+2}, v{SR}")
    e(f"v_mov_b32 v{SR+3}, v{SR+1}")
    e("s_mul_i32 s60, s51, 384")
    e(f"s_add_u32 s60, s60, {L_CS}")
    e(f"v_permlane32_swap_b32 v{SR}, v{SR+2}")
    e(f"v_permlane32_swap_b32 v{SR+1}, v{SR+3}")
    e("v_lshl_add_u32 v166, v165, 4, s60")
    e(f"v_add_f32 v{SR}, v{SR}, v{SR+2}")
    e(f"v_add_f32 v{SR+1}, v{SR+1}, v{SR+3}")
    NMU, C1, C2, IA = SR + 4, SR + 5, SR + 6, SR + 7
    e(f"v_mul_f32 v{NMU}, {f32(-1/512)}, v{SR}")
    e(f"v_mul_f32 v{SR+1}, {f32(1/512)}, v{SR+1}")
    e(f"v_fma_f32 v{SR+1}, -v{NMU}, v{NMU}, v{SR+1}")
    e(f"v_max_f32 v{SR+1}, 0, v{SR+1}")
    e(f"v_add_f32 v{SR+1}, {f32(EPS)}, v{SR+1}")
    e(f"v_rsq_f32 v{SR}, v{SR+1}")
    e("s_mul_i32 s62, s64, 86")
    e(f"v_mul_f32 v{IA}, v{SR+1}, v{SR}")
    e(f"v_mul_f32 v{C1}, {f32(GELU_K1)}, v{SR}")
    e(f"v_mul_f32 v{C2}, v{SR}, v{SR}")
    e(f"v_mul_f32 v{C2}, v{C2}, v{SR}")
    e(f"v_mul_f32 v{C2}, {f32(GELU_K2)}, v{C2}")
    e("s_lshl_b32 s63, s67, 1"); e("s_add_u32 s62, s62, s63"); e("s_lshl_b32 s62, s62, 10"); e(f"s_add_u32 s62, s62, {GOFF}")
    e("s_cmp_ge_u32 s41, 3")
    e("s_cselect_b32 s63, s51, 0")
    for i in range(3):
        Z = ACC + 32 * i; Tm = Z + 16
        if i == 2:
            e("s_cmp_eq_u32 s63, 1")
            e("s_cbranch_scc1 L_k2_w3_done")
        for g in range(4):
            e(f"ds_read_b128 v[{FR+4*g}:{FR+4*g+3}], v166 offset:{128*i + 32*g}")
        e("s_waitcnt lgkmcnt(0)")
        R = range(16)
        for r in R: e(f"v_fmac_f32 v{Z+r}, v{NMU}, v{FR+r}")
        for r in R: e(f"v_mul_f32 v{Tm+r}, v{Z+r}, v{Z+r}")
        for r in R: e(f"v_fma_f32 v{Tm+r}, v{Tm+r}, v{C2}, v{C1}")
        for r in R: e(f"v_mul_f32 v{Tm+r}, v{Tm+r}, v{Z+r}")
        for r in R: e(f"v_exp_f32 v{Tm+r}, v{Tm+r}")
        for r in R: e(f"v_fma_f32 v{Tm+r}, v{Tm+r}, v{IA}, v{IA}")
        for r in R: e(f"v_rcp_f32 v{Tm+r}, v{Tm+r}")
        for r in R: e(f"v_mul_f32 v{Z+r}, v{Z+r}, v{Tm+r}")
        for p in range(8): e(f"v_cvt_pk_bf16_f32 v{Tm+p}, v{Z+2*p}, v{Z+2*p+1}")
        sc = " sc1" if with_w4 else ""
        e(f"buffer_store_dwordx4 v[{Tm}:{Tm+3}], v2, s[32:35], s62 offen offset:{(2048*i) % 4096}{sc}")
        e(f"buffer_store_dwordx4 v[{Tm+4}:{Tm+7}], v2, s[32:35], s62 offen offset:{(2048*i) % 4096 + 1024}{sc}")
        if i == 1: e("s_add_u32 s62, s62, 4096")
    e("L_k2_w3_done:")
    T.stamp()
    if not with_w4: return

    xsync(1)
    T.stamp()
    ACC, FR, XR, X1R = 8, 72, 136, 144
    x_tile(XR, 152)
    e("s_lshl_b32 s60, s64, 5"); e("s_lshl_b32 s61, s65, 1"); e("s_add_u32 s60, s60, s61"); e("s_lshl_b32 s60, s60, 10"); e(f"s_add_u32 s60, s60, {X1OFF}")
    e(f"buffer_load_dwordx4 v[{X1R}:{X1R+3}], v2, s[32:35], s60 offen sc1")
    e(f"buffer_load_dwordx4 v[{X1R+4}:{X1R+7}], v2, s[32:35], s60 offen offset:1024 sc1")
    e("s_mul_i32 s60, s45, 22")
    e("s_sub_u32 s55, 86, s60")
    e("s_min_u32 s55, s55, 22")
    e("s_mul_i32 s56, s64, 86"); e("s_add_u32 s56, s56, s60"); e("s_lshl_b32 s56, s56, 10"); e(f"s_add_u32 s56, s56, {GOFF}")
    e("s_mul_i32 s57, s65, 86"); e("s_add_u32 s57, s57, s60"); e("s_lshl_b32 s57, s57, 10"); e(f"s_add_u32 s57, s57, {W4F}")
    signed_stride(53, 50, 86 * 1024)
    signed_stride(54, 51, 86 * 1024)
    gemm(a, "w4", 2, 2, 22, 4, ACC, FR, 56, 57, "s53", "s54", s_cnt=55, sc_act=" sc1", pace=pace)
    if ENV("K2_FINE") == "1": T.stamp()
    if ENV("K2_WOT", "1") == "1":
        e("s_lshr_b32 s60, s2, 3"); e("s_lshl_b32 s60, s60, 2"); e("s_add_u32 s60, s60, s45"); e("s_lshl_b32 s60, s60, 12"); e(f"s_add_u32 s60, s60, {WOF}")
        e("v_lshlrev_b32 v156, 7, v1")
        e("s_mov_b32 exec_hi, 0")
        e("buffer_load_dword v157, v156, s[32:35], s60 offen")
        e("s_mov_b64 exec, -1")
    reduce22(ACC, FR)
    e("s_mov_b32 s60, 0xffff0000")
    for base in (XR, X1R):
        for p in range(8):
            e(f"v_lshlrev_b32 v{FR+2*p}, 16, v{base+p}")
            e(f"v_and_b32 v{FR+2*p+1}, s60, v{base+p}")
        for r in range(16): e(f"v_add_f32 v{ACC+r}, v{ACC+r}, v{FR+r}")
    e("s_lshl_b32 s60, s64, 4"); e("s_add_u32 s60, s60, s65"); e("s_lshl_b32 s60, s60, 12"); e(f"s_add_u32 s60, s60, {ROFF}")
    for q in range(4):
        e(f"buffer_store_dwordx4 v[{ACC+4*q}:{ACC+4*q+3}], v2, s[32:35], s60 offen offset:{1024*q}")
    T.stamp()


def gen_k2(with_w4=(ENV('K2_W4', '0') == '1')):
    a = Asm("k2"); e = a.e
    T = Stamper(a, 72, 1)
    T.stamp()
    e("s_cmp_ge_u32 s2, 256")
    e("s_cbranch_scc1 L_k2_exit")
    e("s_load_dwordx2 s[4:5], s[0:1], 0")
    e("s_load_dwordx2 s[20:21], s[0:1], 80")
    e("v_lshrrev_b32 v1, 6, v0")
    e("s_and_b32 s54, s2, 7")
    e("v_readfirstlane_b32 s44, v1")
    e("v_and_b32 v1, 63, v0")
    e("v_lshlrev_b32 v2, 4, v1")
    e("s_lshl_b32 s40, s54, 2")
    e("s_bfe_u32 s54, s2, 0x20003")
    e("s_add_u32 s40, s40, s54")
    e("s_lshr_b32 s41, s2, 5")
    e("s_mov_b32 s45, s44")
    for r in range(4, 8): e(f"v_mov_b32 v{r}, 0")
    e(f"v_add_u32 v3, {L_CS}, v2")
    e("ds_write_b128 v3, v[4:7]")
    e("s_waitcnt lgkmcnt(0)")
    e("s_barrier")
    a.srd(32, 20, WS_USED)
    e("s_cmp_ge_u32 s44, 8")
    e("s_cbranch_scc1 L_k2_b")
    if ENV("K2_NOA") == "1":
        e("s_endpgm")
    attn_wave(a, T)
    T.stamp()
    T.dump(32, 44, 12, 4, 5)
    e("s_endpgm")
    e("L_k2_b:")
    b_waves(a, T, with_w4)
    T.dump(32, 44, 12, 4, 5)
    e("L_k2_exit:")
    e("s_endpgm")
    return a.kernel(vgpr=168, sgpr=96)
```

```python
import os
from k1 import gen_k1, K1_LDS
from k2 import gen_k2, K2_LDS, FUSE
from bchain import *
LAUNCHES = [
    ("k1", gen_k1, 256, 768, K1_LDS),
    ("k2", gen_k2, 256, 768, K2_LDS),
]
if not FUSE:
    LAUNCHES.append(("fin", gen_fin, 256, 256, B_LDS))
```

```python
from common import *

L_K = 0
L_V = 65536
L_ONES = 131072
L_B = L_ONES + 5632
L_CS = L_B + 24576
L_FLG = L_CS + 768
K2_LDS = L_FLG + 256
SPIN_MAX = 20000
BIG = 0x7ff00000
ENV = os.environ.get
FUSE = ENV("K2_FUSE", "1") == "1"


def lds_signal(a, idx, va, vb):
    e = a.e
    e(f"v_mov_b32 v{va}, {L_FLG + 4*idx}")
    e(f"v_mov_b32 v{vb}, 1")
    e("s_mov_b64 exec, 1")
    e(f"ds_add_u32 v{va}, v{vb}")
    e("s_mov_b64 exec, -1")


def lds_wait(a, tag, idx, target, va, vb, s0, s1, sleep=1, setaddr=True):
    e = a.e
    if setaddr: e(f"v_mov_b32 v{va}, {L_FLG + 4*idx}")
    e(f"s_mov_b32 s{s0}, {SPIN_MAX}")
    e(f"L_{a.name}_lw{tag}:")
    e(f"ds_read_b32 v{vb}, v{va}")
    e("s_waitcnt lgkmcnt(0)")
    e(f"v_readfirstlane_b32 s{s1}, v{vb}")
    e(f"s_cmp_ge_u32 s{s1}, {target}")
    e(f"s_cbranch_scc1 L_{a.name}_lw{tag}_go")
    e(f"s_sleep {sleep}")
    e(f"s_sub_u32 s{s0}, s{s0}, 1")
    e(f"s_cmp_lg_u32 s{s0}, 0")
    e(f"s_cbranch_scc1 L_{a.name}_lw{tag}")
    e(f"L_{a.name}_lw{tag}_go:")


def attn_wave(a, T):
    e = a.e; n = a.name
    e("s_lshl_b32 s48, s41, 3")
    e("s_add_u32 s48, s48, s45")
    e("s_lshl_b32 s49, s40, 6")
    e("s_add_u32 s49, s49, s48")
    e("s_lshl_b32 s49, s49, 10")
    e("buffer_load_dwordx4 v[8:11], v2, s[32:35], s49 offen")
    e("v_and_b32 v5, 1, v1")
    e("v_cmp_eq_u32 vcc, 0, v5")
    e("v_mov_b32 v5, 0x3f80")
    e("v_mov_b32 v33, 0"); e("v_mov_b32 v35, 0")
    e("v_cndmask_b32 v32, 0, v5, vcc")
    e("v_mov_b32 v34, v32")
    e("v_lshlrev_b32 v3, 4, v0")
    e(f"v_cmp_gt_u32 vcc, 5632, v3")
    e(f"v_add_u32 v3, {L_ONES}, v3")
    e("s_and_saveexec_b64 s[50:51], vcc")
    e("ds_write_b128 v3, v[32:35]")
    e("s_mov_b64 exec, -1")
    e("v_lshrrev_b32 v5, 5, v1")
    e("v_bfe_u32 v6, v1, 4, 1")
    e("v_xor_b32 v7, v5, v6")
    e("v_and_b32 v3, 15, v1")
    e("v_lshlrev_b32 v3, 3, v3")
    e("v_lshl_add_u32 v3, v7, 7, v3")
    e("v_lshl_add_u32 v3, v6, 16, v3")
    e(f"v_add_u32 v112, {L_V}, v3")
    e("v_xor_b32 v4, 1, v6")
    e("v_lshlrev_b32 v4, 12, v4")
    e("s_mov_b32 s56, 0")
    e("s_lshl_b32 s51, s45, 2")
    e(f"s_add_u32 s51, s51, {L_FLG + 64}")
    e("v_mov_b32 v113, s51")
    e("v_xor_b32 v114, 16, v113")
    e("v_mov_b32 v115, 0")
    e("v_mov_b32 v116, 0")
    e("s_waitcnt lgkmcnt(0)")
    lds_signal(a, 9, 5, 6)
    lds_wait(a, "c0", 9, 12, 5, 6, 51, 52)
    T.stamp()
    e("ds_read_b128 v[88:91], v2")
    e("s_waitcnt vmcnt(0) lgkmcnt(0)")
    e("v_mfma_f32_32x32x16_bf16 v[32:47], v[88:91], v[8:11], 0")
    e("s_nop 7"); e("s_nop 3")
    e("v_max3_f32 v16, v32, v33, v34")
    e("v_max3_f32 v17, v35, v36, v37")
    e("v_max3_f32 v16, v16, v38, v39")
    e("v_max3_f32 v17, v17, v40, v41")
    e("v_max3_f32 v16, v16, v42, v43")
    e("v_max3_f32 v17, v17, v44, v45")
    e("v_max3_f32 v16, v16, v46, v47")
    e(f"L_{n}_setmax:")
    e("v_max_f32 v16, v16, v17")
    e("v_mov_b32 v12, v2")
    e("v_mov_b32 v17, v16")
    e("v_mov_b32 v3, v112")
    e("ds_read_b128 v[88:91], v12")
    e("ds_read_b128 v[92:95], v12 offset:1024")
    e("v_permlane32_swap_b32 v16, v17")
    for u in range(2):
        for t in range(2):
            e(f"ds_read_b64_tr_b16 v[{96+4*u+2*t}:{97+4*u+2*t}], v3 offset:{512*u+256*t}")
    e("v_max_f32 v16, v16, v17")
    e("v_sub_f32 v16, 0, v16")
    for r in range(17, 32): e(f"v_mov_b32 v{r}, v16")
    for r in list(range(68, 88)) + list(range(104, 112)): e(f"v_mov_b32 v{r}, 0")
    e("s_waitcnt lgkmcnt(5)")
    e("v_mfma_f32_32x32x16_bf16 v[32:47], v[88:91], v[8:11], v[16:31]")
    e("s_nop 7")
    e("s_mov_b32 s55, 0")
    e(f"L_{n}_loop:")
    e("s_add_u32 s51, s55, 1")
    e("s_and_b32 s52, s51, s55")
    e("s_cmp_lg_u32 s52, 0")
    e(f"s_cbranch_scc1 L_{n}_nobar")
    e("s_cmp_eq_u32 s55, 0")
    e(f"s_cbranch_scc1 L_{n}_nobar")
    e("s_cmp_eq_u32 s55, 15")
    e(f"s_cbranch_scc1 L_{n}_nobar")
    e("s_bcnt1_i32_b32 s51, s55")
    e("s_lshl_b32 s51, s51, 2")
    e(f"s_add_u32 s51, s51, {L_FLG + 36}")
    e("v_mov_b32 v5, s51")
    lds_wait(a, "c1", 0, 4, 5, 6, 51, 52, setaddr=False)
    e(f"L_{n}_nobar:")
    X = lambda r: e(f"v_exp_f32 v{r}, v{r}")
    fair = ENV("K2_FAIR", "1") == "1"
    for tl in range(4):
        S = 32 + 16 * (tl % 2); Sn = 32 + 16 * ((tl + 1) % 2)
        Kn = 88 + 4 * ((tl + 1) % 2); Knn = 88 + 4 * (tl % 2)
        V = 96 + 8 * (tl % 2); Vp = 96 + 8 * ((tl + 1) % 2)
        e("s_waitcnt lgkmcnt(4)")
        e(f"v_mfma_f32_32x32x16_bf16 v[{Sn}:{Sn+15}], v[{Kn}:{Kn+3}], v[8:11], v[16:31]")
        if fair and tl == 0:
            e("ds_write_b32 v113, v115")
            e("ds_read_b32 v116, v114")
        e(f"ds_read_b128 v[{Knn}:{Knn+3}], v12 offset:{1024*(tl+2)}")
        X(S); X(S + 1); X(S + 2)
        e(f"v_mfma_f32_32x32x16_bf16 v[72:87], v[{Vp+4}:{Vp+7}], v[68:71], v[72:87]")
        for u in range(2):
            for t in range(2):
                e(f"ds_read_b64_tr_b16 v[{Vp+4*u+2*t}:{Vp+4*u+2*t+1}], v3 offset:{1024*(tl+1)+512*u+256*t}")
        if fair and tl == 1:
            e("v_readfirstlane_b32 s51, v116")
            e("v_add_u32 v115, 1, v115")
            e("s_cmp_gt_u32 s55, s51")
            e(f"s_cbranch_scc1 L_{n}_lo")
            e("s_setprio 1")
            e(f"s_branch L_{n}_pd")
            e(f"L_{n}_lo:")
            e("s_setprio 0")
            e(f"L_{n}_pd:")
        for i in range(3, 9): X(S + i)
        for i in range(4): e(f"v_cvt_pk_bf16_f32 v{64+i}, v{S+2*i}, v{S+2*i+1}")
        X(S + 9); X(S + 10)
        e("s_waitcnt lgkmcnt(5)")
        e(f"v_mfma_f32_32x32x16_bf16 v[72:87], v[{V}:{V+3}], v[64:67], v[72:87]")
        for i in range(11, 16): X(S + i)
        if tl == 3:
            e("v_add_u32 v12, 4096, v12")
            e("v_add_u32 v3, v4, v3")
        else:
            e("s_nop 0")
        for i in range(4, 8): e(f"v_cvt_pk_bf16_f32 v{64+i}, v{S+2*i}, v{S+2*i+1}")
    e("s_add_u32 s55, s55, 1")
    e("s_cmp_lt_u32 s55, 16")
    e(f"s_cbranch_scc1 L_{n}_loop")
    e("v_mfma_f32_32x32x16_bf16 v[72:87], v[108:111], v[68:71], v[72:87]")
    T.stamp()
    e("s_lshl_b32 s49, s48, 5")
    e("s_add_u32 s49, s49, s40")
    e("s_lshl_b32 s49, s49, 10")
    e(f"s_add_u32 s49, s49, {OOFF}")
    e("s_waitcnt lgkmcnt(0)")
    e("s_nop 7")
    e("v_mul_f32 v32, 0, v72")
    for r in range(73, 80): e(f"v_fma_f32 v32, v{r}, 0, v32")
    e(f"v_mov_b32 v33, {f32(2.0**60)}")
    e("v_add_f32 v32, v32, v80")
    e("v_cmp_nlt_f32 vcc, v32, v33")
    e("s_cmp_lg_u32 s56, 0")
    e(f"s_cbranch_scc1 L_{n}_store")
    e("s_cmp_eq_u64 vcc, 0")
    e(f"s_cbranch_scc1 L_{n}_store")
    e("s_mov_b32 s56, 1")
    e("s_mov_b32 s55, 0")
    e("v_mov_b32 v12, v2")
    e("v_mov_b32 v16, 0xff800000")
    e("v_mov_b32 v17, 0xff800000")
    e(f"L_{n}_mloop:")
    e("ds_read_b128 v[88:91], v12")
    e("s_waitcnt lgkmcnt(0)")
    e("v_mfma_f32_32x32x16_bf16 v[32:47], v[88:91], v[8:11], 0")
    e("v_add_u32 v12, 1024, v12")
    e("s_nop 7"); e("s_nop 3")
    for i in range(4):
        e(f"v_max3_f32 v16, v16, v{32+4*i}, v{33+4*i}")
        e(f"v_max3_f32 v17, v17, v{34+4*i}, v{35+4*i}")
    e("s_add_u32 s55, s55, 1")
    e("s_cmp_lt_u32 s55, 64")
    e(f"s_cbranch_scc1 L_{n}_mloop")
    e(f"s_branch L_{n}_setmax")
    e(f"L_{n}_store:")
    e("v_rcp_f32 v80, v80")
    e("s_nop 0")
    for r in range(72, 80): e(f"v_mul_f32 v{r}, v{r}, v80")
    for p in range(4): e(f"v_cvt_pk_bf16_f32 v{64+p}, v{72+2*p}, v{73+2*p}")
    if FUSE:
        e("buffer_store_dwordx4 v[64:67], v2, s[32:35], s49 offen sc1")
        e("s_lshl_b32 s49, s48, 5")
        e("s_add_u32 s49, s49, s40")
        e("s_lshl_b32 s49, s49, 2")
        e(f"s_add_u32 s49, s49, {OFLAG}")
        e("v_mov_b32 v5, 0")
        e("v_mov_b32 v6, 1")
        e("s_waitcnt vmcnt(0)")
        e("s_mov_b64 exec, 1")
        e("buffer_store_dword v6, v5, s[32:35], s49 offen sc1")
        e("s_mov_b64 exec, -1")
    else:
        e("buffer_store_dwordx4 v[64:67], v2, s[32:35], s49 offen")


def gemm(a, tag, nact, nw, N, D, acc, fr, s_act, s_w, st_act, st_w, s_cnt=None, sc_act="", pace=None, hook=None, hook_step=None, noinit=False, between=None):
    e = a.e
    nf = nact + nw
    def F(r, i): return fr + 4 * (nf * r + i)
    def issue(r, part=3):
        if part != 3:
            for t in range(nact if part == 1 else 0):
                e(f"s_add_u32 s62, s{s_act}, {1024*r}")
                if t: e(f"s_add_u32 s62, s62, {st_act}")
                e(f"buffer_load_dwordx4 v[{F(r,t)}:{F(r,t)+3}], v2, s[32:35], s62 offen{sc_act}")
            for i in range(nw if part == 2 else 0):
                e(f"s_add_u32 s62, s{s_w}, {1024*r}")
                if i: e(f"s_add_u32 s62, s62, {st_w if isinstance(st_w, str) else i*st_w}")
                e(f"buffer_load_dwordx4 v[{F(r,nact+i)}:{F(r,nact+i)+3}], v2, s[32:35], s62 offen")
            return
        if s_cnt is not None:
            e(f"s_cmp_gt_i32 s{s_cnt}, 0")
            e(f"s_cselect_b32 s60, s{s_act}, s59")
            e(f"s_cselect_b32 s61, s{s_w}, s59")
            e(f"s_sub_i32 s{s_cnt}, s{s_cnt}, 1")
            sa, sw = 60, 61
        else:
            sa, sw = s_act, s_w
        for t in range(nact):
            so = f"s{sa}"
            if t:
                e(f"s_add_u32 s62, s{sa}, {st_act if isinstance(st_act, str) else t*st_act}"); so = "s62"
            e(f"buffer_load_dwordx4 v[{F(r,t)}:{F(r,t)+3}], v2, s[32:35], {so} offen{sc_act}")
        for i in range(nw):
            so = f"s{sw}"
            if i:
                e(f"s_add_u32 s62, s{sw}, {st_w if isinstance(st_w, str) else i*st_w}"); so = "s62"
            e(f"buffer_load_dwordx4 v[{F(r,nact+i)}:{F(r,nact+i)+3}], v2, s[32:35], {so} offen")
        e(f"s_add_u32 s{s_act}, s{s_act}, 1024")
        e(f"s_add_u32 s{s_w}, s{s_w}, 1024")
    def step(j, first=False):
        r = j % D
        if between and j < D:
            e(f"s_waitcnt vmcnt({nact*(D-1-j) + nf*min(j, max(N-D, 0))})")
        else:
            e(f"s_waitcnt vmcnt({nf*min(D-1, N-1-j)})")
        if hook_step: hook_step(j)
        for i in range(nw):
            for t in range(nact):
                d = acc + 16 * (i * nact + t)
                cc = "0" if first else f"v[{d}:{d+15}]"
                e(f"v_mfma_f32_32x32x16_bf16 v[{d}:{d+15}], v[{F(r,nact+i)}:{F(r,nact+i)+3}], v[{F(r,t)}:{F(r,t)+3}], {cc}")
                if pace: e(pace)
        if j + D < N: issue(r)
    if s_cnt is not None: e(f"s_mov_b32 s59, {BIG}")
    if between:
        for r in range(D): issue(r, 2)
        between()
        for r in range(D): issue(r, 1)
        e(f"s_add_u32 s{s_act}, s{s_act}, {1024*D}")
        e(f"s_add_u32 s{s_w}, s{s_w}, {1024*D}")
        if s_cnt is not None: e(f"s_sub_i32 s{s_cnt}, s{s_cnt}, {D}")
        for j in range(D): step(j, first=(j == 0 and not noinit))
        j0 = D
    else:
        for r in range(D): issue(r)
        if hook: hook(nf * D)
        step(0, not noinit)
        j0 = 1
    m = (N - j0 - D) // D
    j = j0
    if m >= 2:
        e(f"s_mov_b32 s58, {m}")
        e(f"L_{a.name}_{tag}_loop:")
        for jj in range(j0, j0 + D): step(jj)
        e("s_sub_u32 s58, s58, 1")
        e("s_cmp_lg_u32 s58, 0")
        e(f"s_cbranch_scc1 L_{a.name}_{tag}_loop")
        j = j0 + m * D
    while j < N:
        step(j); j += 1


def b_waves(a, T, with_w4):
    e = a.e
    pace = ENV("K2_PACE", "s_nop 7") or None
    st = {"n": 0}
    def sync():
        st["n"] += 1
        e("s_waitcnt lgkmcnt(0)")
        lds_signal(a, 8, 6, 7)
        lds_wait(a, f"sy{st['n']}", 8, 4 * st["n"], 6, 7, 68, 69, setaddr=False)

    e("s_sub_u32 s45, s44, 8")
    a.srd(24, 4, 2048 * 1024)
    a.srd(28, 6, 2048 * 1024)
    e("s_lshl_b32 s46, s40, 16")
    e("s_lshl_b32 s47, s45, 10")
    e("s_add_u32 s46, s46, s47")
    e(f"s_add_u32 s46, s46, {KOFF}")
    def kv(t0, cnt):
        for i in range(cnt):
            off = (t0 + 4 * i) * 1024
            e(f"s_add_u32 m0, s47, {L_K + off}")
            e(f"s_add_u32 s48, s46, {off}")
            e("buffer_load_dwordx4 v2, s[32:35], s48 offen lds")
            e(f"s_add_u32 m0, s47, {L_V + off}")
            e(f"s_add_u32 s48, s46, {off + VOFF - KOFF}")
            e("buffer_load_dwordx4 v2, s[32:35], s48 offen lds")
    OLD = ENV("K2_ORDER", "old") == "old"
    kv(0, 2)
    if OLD:
        kv(8, 6)
        e("s_waitcnt vmcnt(12)")
        lds_signal(a, 9, 6, 7)
    e("s_setprio %s" % ENV("K2_PRIO", "3"))
    T.n = 1
    T.stamp()
    if ENV("K2_NOB") == "1":
        kv(8, 14); e("s_waitcnt vmcnt(0)")
        for i in (9, 10, 11, 12): lds_signal(a, i, 6, 7)
        e("s_endpgm")

    e("s_and_b32 s50, s45, 1")
    e("s_lshr_b32 s51, s45, 1")
    e("s_lshl_b32 s64, s40, 1"); e("s_add_u32 s64, s64, s50")
    e("s_lshl_b32 s65, s41, 1"); e("s_add_u32 s65, s65, s51")
    for j in range(1, 4):
        e(f"s_xor_b32 s60, s45, {j}")
        e("s_mul_i32 s60, s60, 6144")
        e(f"s_add_u32 s60, s60, {L_B + (j-1)*2048}")
        e(f"v_add_u32 v{2+j}, s60, v2")
    e("s_mul_i32 s52, s45, 6144")
    e(f"s_add_u32 s52, s52, {L_B}")

    def signed_stride(sreg, bit_sreg, stride):
        e(f"s_mov_b32 s{sreg}, {stride}")
        e(f"s_cmp_eq_u32 s{bit_sreg}, 1")
        e(f"s_cselect_b32 s{sreg}, {(-stride) & 0xffffffff}, s{sreg}")

    def x_tile(dst, vt):
        e("s_lshl_b32 s60, s64, 15")
        e("s_lshl_b32 s61, s65, 6")
        e("s_add_u32 s60, s60, s61")
        e(f"v_and_b32 v{vt}, 31, v1")
        e(f"v_lshrrev_b32 v{vt+1}, 5, v1")
        e(f"v_lshlrev_b32 v{vt+2}, 10, v{vt}")
        e(f"v_lshl_add_u32 v{vt+2}, v{vt+1}, 3, v{vt+2}")
        for g in range(4):
            e(f"buffer_load_dwordx2 v[{dst+2*g}:{dst+2*g+1}], v{vt+2}, s[24:27], s60 offen offset:{16*g}")

    def reduce22(ACC, TMP):
        e("s_nop 7"); e("s_nop 3")
        e(f"v_add_u32 v{TMP+24}, s52, v2")
        for h in range(2):
            for j in range(1, 4):
                for q in range(2):
                    r = ACC + 16 * j + 8 * h + 4 * q
                    e(f"ds_write_b128 v{2+j}, v[{r}:{r+3}] offset:{q*1024}")
            sync()
            for i in range(6):
                e(f"ds_read_b128 v[{TMP+4*i}:{TMP+4*i+3}], v{TMP+24} offset:{i*1024}")
            if h == 0:
                sync()
            else:
                e("s_waitcnt lgkmcnt(0)")
            for j in range(3):
                for r in range(8):
                    e(f"v_add_f32 v{ACC+8*h+r}, v{ACC+8*h+r}, v{TMP+8*j+r}")

    def xsync(ph, during=None):
        e("s_waitcnt vmcnt(0)")
        if ph == 0: lds_signal(a, 12, 6, 7)
        e("s_lshl_b32 s70, s40, 8")
        e(f"s_add_u32 s70, s70, {FLAGS + 128*ph}")
        e("s_lshl_b32 s61, s41, 2")
        e("s_add_u32 s61, s61, s45")
        e("s_lshl_b32 s61, s61, 2")
        e("v_mov_b32 v6, s61")
        e("v_mov_b32 v7, 1")
        e("s_mov_b64 exec, 1")
        e("buffer_store_dword v7, v6, s[32:35], s70 offen sc1")
        e("s_mov_b64 exec, -1")
        if during: during()
        e("v_and_b32 v6, 31, v1")
        e("v_lshlrev_b32 v6, 2, v6")
        e(f"s_mov_b32 s68, {SPIN_MAX}")
        e(f"L_k2_xs{ph}:")
        e("buffer_load_dword v7, v6, s[32:35], s70 offen sc1")
        e("s_waitcnt vmcnt(0)")
        e("v_cmp_eq_u32 vcc, 0, v7")
        e("s_cmp_eq_u64 vcc, 0")
        e(f"s_cbranch_scc1 L_k2_xs{ph}_go")
        e("s_sleep 2")
        e("s_sub_u32 s68, s68, 1")
        e("s_cmp_lg_u32 s68, 0")
        e(f"s_cbranch_scc1 L_k2_xs{ph}")
        e(f"L_k2_xs{ph}_go:")

    ACC, FR, XR = 8, 72, 136
    x_tile(XR, 146)
    e("s_lshl_b32 s61, s64, 8")
    e(f"s_add_u32 s61, s61, {STAT}")
    e("v_lshlrev_b32 v148, 3, v146")
    e("buffer_load_dwordx2 v[144:145], v148, s[32:35], s61 offen")
    e("s_lshl_b32 s60, s45, 3")
    e("s_lshl_b32 s56, s64, 5"); e("s_add_u32 s56, s56, s60"); e("s_lshl_b32 s56, s56, 10"); e(f"s_add_u32 s56, s56, {HOFF}")
    e("s_lshl_b32 s57, s65, 5"); e("s_add_u32 s57, s57, s60"); e("s_lshl_b32 s57, s57, 10"); e(f"s_add_u32 s57, s57, {W2F}")
    signed_stride(53, 50, 32768)
    signed_stride(54, 51, 32768)
    def hook(ny):
        if OLD:
            e(f"s_waitcnt vmcnt({ny + 5})")
            lds_signal(a, 10, 6, 7); lds_signal(a, 11, 6, 7)
            return
        kv(8, 2)
        e(f"s_waitcnt vmcnt({ny + 5 + 4})")
        lds_signal(a, 9, 6, 7)
    def hook_step(j):
        if j == 4 and not OLD: lds_signal(a, 10, 6, 7)
    gemm(a, "w2", 2, 2, 8, 4, ACC, FR, 56, 57, "s53", "s54", pace=pace, hook=hook, hook_step=hook_step)
    if ENV("K2_FINE") == "1": T.stamp()
    if not OLD: kv(16, 4)
    kv(32, 8)
    e("s_mul_i32 s66, s41, 5")
    e("s_min_u32 s60, s41, 3")
    e("s_add_u32 s66, s66, s60")
    e("s_and_b32 s61, s40, 3"); e("s_lshl_b32 s61, s61, 2"); e("s_add_u32 s61, s61, s45")
    e("s_lshl_b32 s62, s66, 5"); e("s_mul_i32 s63, s61, 12"); e("s_add_u32 s62, s62, s63"); e("s_lshl_b32 s62, s62, 10"); e(f"s_add_u32 s62, s62, {W3F}")
    e("v_lshlrev_b32 v6, 7, v1")
    e("buffer_load_dword v149, v6, s[32:35], s62 offen")
    e("s_add_u32 s62, s62, 4096")
    e("buffer_load_dword v149, v6, s[32:35], s62 offen")
    reduce22(ACC, FR)
    if ENV("K2_FINE") == "1": T.stamp()
    if not OLD:
        e("s_waitcnt vmcnt(18)")
        lds_signal(a, 11, 6, 7)
    U = FR
    e("v_mul_f32 v146, v144, v145")
    e("s_mov_b32 s60, 0xffff0000")
    for p in range(8):
        e(f"v_lshlrev_b32 v{U+2*p}, 16, v{XR+p}")
        e(f"v_and_b32 v{U+2*p+1}, s60, v{XR+p}")
    for r in range(16): e(f"v_sub_f32 v{ACC+r}, v{ACC+r}, v146")
    for r in range(16): e(f"v_fmac_f32 v{ACC+r}, v{U+r}, v145")
    for p in range(8): e(f"v_cvt_pk_bf16_f32 v{ACC+16+p}, v{ACC+2*p}, v{ACC+2*p+1}")
    e("s_lshl_b32 s60, s64, 5"); e("s_lshl_b32 s61, s65, 1"); e("s_add_u32 s60, s60, s61"); e("s_lshl_b32 s60, s60, 10"); e(f"s_add_u32 s60, s60, {X1OFF}")
    e(f"buffer_store_dwordx4 v[{ACC+16}:{ACC+19}], v2, s[32:35], s60 offen sc1")
    e(f"buffer_store_dwordx4 v[{ACC+20}:{ACC+23}], v2, s[32:35], s60 offen offset:1024 sc1")
    e(f"v_add_f32 v144, v{ACC}, v{ACC+1}")
    e(f"v_mul_f32 v145, v{ACC}, v{ACC}")
    e(f"v_add_f32 v146, v{ACC+2}, v{ACC+3}")
    e(f"v_mul_f32 v147, v{ACC+1}, v{ACC+1}")
    e(f"v_fmac_f32 v145, v{ACC+2}, v{ACC+2}")
    e(f"v_fmac_f32 v147, v{ACC+3}, v{ACC+3}")
    for r in range(4, 16):
        e(f"v_add_f32 v{144 + 2*(r&1)}, v{144 + 2*(r&1)}, v{ACC+r}")
        e(f"v_fmac_f32 v{145 + 2*(r&1)}, v{ACC+r}, v{ACC+r}")
    e("v_add_f32 v144, v144, v146")
    e("v_add_f32 v145, v145, v147")
    e("v_mov_b32 v146, v144")
    e("v_mov_b32 v147, v145")
    e("s_lshl_b32 s60, s64, 4"); e("s_add_u32 s60, s60, s65")
    e("v_permlane32_swap_b32 v144, v146")
    e("v_permlane32_swap_b32 v145, v147")
    e("s_lshl_b32 s60, s60, 8"); e(f"s_add_u32 s60, s60, {X1STAT}")
    e("v_add_f32 v144, v144, v146")
    e("v_add_f32 v145, v145, v147")
    e("s_mov_b32 exec_hi, 0")
    e("buffer_store_dwordx2 v[144:145], v148, s[32:35], s60 offen sc1")
    e("s_mov_b64 exec, -1")
    T.stamp()
    if ENV("K2_STOP") == "1": e("s_endpgm")

    def colsum():
        e("s_mul_i32 s60, s45, 8*1408*4")
        e("s_lshl_b32 s61, s66, 7")
        e("s_add_u32 s60, s60, s61")
        e(f"s_add_u32 s60, s60, {CS3P}")
        e("s_mov_b32 exec_hi, 0xffff")
        for i in range(8):
            e(f"buffer_load_dwordx4 v[{8+4*i}:{11+4*i}], v2, s[32:35], s60 offen")
            if i < 7: e("s_add_u32 s60, s60, 1408*4")
        e(f"v_add_u32 v6, {L_CS}, v2")
        e("s_waitcnt vmcnt(0)")
        for i in range(1, 8):
            for r in range(4): e(f"v_add_f32 v{8+r}, v{8+r}, v{8+4*i+r}")
        for r in range(4): e(f"ds_add_f32 v6, v{8+r} offset:{4*r}")
        e("s_mov_b64 exec, -1")
    xsync(0, colsum)
    T.stamp()
    if ENV("K2_STOP") == "2": e("s_endpgm")

    ACC, FR = 8, 104
    e("s_mul_i32 s61, s51, 3")
    e("s_add_u32 s67, s66, s61")
    e("s_lshl_b32 s60, s50, 4")
    e("s_lshl_b32 s56, s64, 5"); e("s_add_u32 s56, s56, s60"); e("s_lshl_b32 s56, s56, 10"); e(f"s_add_u32 s56, s56, {X1OFF}")
    e("s_lshl_b32 s57, s67, 5"); e("s_add_u32 s57, s57, s60"); e("s_lshl_b32 s57, s57, 10"); e(f"s_add_u32 s57, s57, {W3F}")
    gemm(a, "w3", 2, 3, 16, 3, ACC, FR, 56, 57, "s53", 32768, sc_act=" sc1", pace=pace)
    if ENV("K2_FINE") == "1": T.stamp()
    if with_w4:
        e("s_and_b32 s61, s40, 3"); e("s_lshl_b32 s61, s61, 2"); e("s_add_u32 s61, s61, s45")
        e("s_mul_i32 s62, s41, 172"); e("s_mul_i32 s63, s61, 11"); e("s_add_u32 s62, s62, s63"); e("s_lshl_b32 s62, s62, 10"); e(f"s_add_u32 s62, s62, {W4F}")
        e("v_lshlrev_b32 v6, 7, v1")
        e("buffer_load_dword v163, v6, s[32:35], s62 offen")
        e("s_add_u32 s62, s62, 3072")
        e("buffer_load_dword v163, v6, s[32:35], s62 offen")
    e("v_and_b32 v164, 31, v1")
    e("v_lshrrev_b32 v165, 5, v1")
    e("v_lshlrev_b32 v166, 3, v164")
    e("v_lshl_add_u32 v166, v165, 11, v166")
    e("s_lshl_b32 s60, s64, 12")
    e(f"s_add_u32 s60, s60, {X1STAT}")
    SR = FR + 40
    for j in range(8):
        e(f"buffer_load_dwordx2 v[{SR+2*j}:{SR+2*j+1}], v166, s[32:35], s60 offen offset:{256*j} sc1")
    e(f"v_add_u32 v167, s52, v2")
    e("s_nop 3")
    quads = [(i, q) for i in range(3) for q in range(4)]
    for h in range(2):
        for s_, (i, q) in enumerate(quads[6*h:6*h+6]):
            r = ACC + 16 * (2 * i + 1) + 4 * q
            e(f"ds_write_b128 v3, v[{r}:{r+3}] offset:{s_*1024}")
        sync()
        for s_ in range(6):
            e(f"ds_read_b128 v[{FR+4*s_}:{FR+4*s_+3}], v167 offset:{s_*1024}")
        if h == 0: sync()
        else: e("s_waitcnt lgkmcnt(0)")
        for s_, (i, q) in enumerate(quads[6*h:6*h+6]):
            for r in range(4):
                d = ACC + 32 * i + 4 * q + r
                e(f"v_add_f32 v{d}, v{d}, v{FR+4*s_+r}")
    if ENV("K2_FINE") == "1": T.stamp()
    e("s_waitcnt vmcnt(0)")
    for j in range(1, 8):
        e(f"v_add_f32 v{SR}, v{SR}, v{SR+2*j}")
        e(f"v_add_f32 v{SR+1}, v{SR+1}, v{SR+2*j+1}")
    e(f"v_mov_b32 v{SR+2}, v{SR}")
    e(f"v_mov_b32 v{SR+3}, v{SR+1}")
    e("s_mul_i32 s60, s51, 384")
    e(f"s_add_u32 s60, s60, {L_CS}")
    e(f"v_permlane32_swap_b32 v{SR}, v{SR+2}")
    e(f"v_permlane32_swap_b32 v{SR+1}, v{SR+3}")
    e("v_lshl_add_u32 v166, v165, 4, s60")
    e(f"v_add_f32 v{SR}, v{SR}, v{SR+2}")
    e(f"v_add_f32 v{SR+1}, v{SR+1}, v{SR+3}")
    NMU, C1, C2, IA = SR + 4, SR + 5, SR + 6, SR + 7
    e(f"v_mul_f32 v{NMU}, {f32(-1/512)}, v{SR}")
    e(f"v_mul_f32 v{SR+1}, {f32(1/512)}, v{SR+1}")
    e(f"v_fma_f32 v{SR+1}, -v{NMU}, v{NMU}, v{SR+1}")
    e(f"v_max_f32 v{SR+1}, 0, v{SR+1}")
    e(f"v_add_f32 v{SR+1}, {f32(EPS)}, v{SR+1}")
    e(f"v_rsq_f32 v{SR}, v{SR+1}")
    e("s_mul_i32 s62, s64, 86")
    e(f"v_mul_f32 v{IA}, v{SR+1}, v{SR}")
    e(f"v_mul_f32 v{C1}, {f32(GELU_K1)}, v{SR}")
    e(f"v_mul_f32 v{C2}, v{SR}, v{SR}")
    e(f"v_mul_f32 v{C2}, v{C2}, v{SR}")
    e(f"v_mul_f32 v{C2}, {f32(GELU_K2)}, v{C2}")
    e("s_lshl_b32 s63, s67, 1"); e("s_add_u32 s62, s62, s63"); e("s_lshl_b32 s62, s62, 10"); e(f"s_add_u32 s62, s62, {GOFF}")
    e("s_cmp_ge_u32 s41, 3")
    e("s_cselect_b32 s63, s51, 0")
    for i in range(3):
        Z = ACC + 32 * i; Tm = Z + 16
        if i == 2:
            e("s_cmp_eq_u32 s63, 1")
            e("s_cbranch_scc1 L_k2_w3_done")
        for g in range(4):
            e(f"ds_read_b128 v[{FR+4*g}:{FR+4*g+3}], v166 offset:{128*i + 32*g}")
        e("s_waitcnt lgkmcnt(0)")
        R = range(16)
        for r in R: e(f"v_fmac_f32 v{Z+r}, v{NMU}, v{FR+r}")
        for r in R: e(f"v_mul_f32 v{Tm+r}, v{Z+r}, v{Z+r}")
        for r in R: e(f"v_fma_f32 v{Tm+r}, v{Tm+r}, v{C2}, v{C1}")
        for r in R: e(f"v_mul_f32 v{Tm+r}, v{Tm+r}, v{Z+r}")
        for r in R: e(f"v_exp_f32 v{Tm+r}, v{Tm+r}")
        for r in R: e(f"v_fma_f32 v{Tm+r}, v{Tm+r}, v{IA}, v{IA}")
        for r in R: e(f"v_rcp_f32 v{Tm+r}, v{Tm+r}")
        for r in R: e(f"v_mul_f32 v{Z+r}, v{Z+r}, v{Tm+r}")
        for p in range(8): e(f"v_cvt_pk_bf16_f32 v{Tm+p}, v{Z+2*p}, v{Z+2*p+1}")
        sc = " sc1" if with_w4 else ""
        e(f"buffer_store_dwordx4 v[{Tm}:{Tm+3}], v2, s[32:35], s62 offen offset:{(2048*i) % 4096}{sc}")
        e(f"buffer_store_dwordx4 v[{Tm+4}:{Tm+7}], v2, s[32:35], s62 offen offset:{(2048*i) % 4096 + 1024}{sc}")
        if i == 1: e("s_add_u32 s62, s62, 4096")
    e("L_k2_w3_done:")
    T.stamp()
    if not with_w4: return

    xsync(1)
    T.stamp()
    ACC, FR, XR, X1R = 8, 72, 136, 144
    x_tile(XR, 152)
    e("s_lshl_b32 s60, s64, 5"); e("s_lshl_b32 s61, s65, 1"); e("s_add_u32 s60, s60, s61"); e("s_lshl_b32 s60, s60, 10"); e(f"s_add_u32 s60, s60, {X1OFF}")
    e(f"buffer_load_dwordx4 v[{X1R}:{X1R+3}], v2, s[32:35], s60 offen sc1")
    e(f"buffer_load_dwordx4 v[{X1R+4}:{X1R+7}], v2, s[32:35], s60 offen offset:1024 sc1")
    e("s_mul_i32 s60, s45, 22")
    e("s_sub_u32 s55, 86, s60")
    e("s_min_u32 s55, s55, 22")
    e("s_mul_i32 s56, s64, 86"); e("s_add_u32 s56, s56, s60"); e("s_lshl_b32 s56, s56, 10"); e(f"s_add_u32 s56, s56, {GOFF}")
    e("s_mul_i32 s57, s65, 86"); e("s_add_u32 s57, s57, s60"); e("s_lshl_b32 s57, s57, 10"); e(f"s_add_u32 s57, s57, {W4F}")
    signed_stride(53, 50, 86 * 1024)
    signed_stride(54, 51, 86 * 1024)
    gemm(a, "w4", 2, 2, 22, 4, ACC, FR, 56, 57, "s53", "s54", s_cnt=55, sc_act=" sc1", pace=pace)
    if ENV("K2_FINE") == "1": T.stamp()
    if FUSE:
        e("s_lshl_b32 s60, s45, 3")
        e("s_lshl_b32 s56, s64, 5"); e("s_add_u32 s56, s56, s60"); e("s_lshl_b32 s56, s56, 10"); e(f"s_add_u32 s56, s56, {OOFF}")
        e("s_lshl_b32 s57, s65, 5"); e("s_add_u32 s57, s57, s60"); e("s_lshl_b32 s57, s57, 10"); e(f"s_add_u32 s57, s57, {WOF}")
        signed_stride(53, 50, 32768)
        signed_stride(54, 51, 32768)
        def owait():
            e("s_lshl_b32 s70, s40, 8")
            e("s_lshl_b32 s60, s45, 5")
            e("s_add_u32 s70, s70, s60")
            e(f"s_add_u32 s70, s70, {OFLAG}")
            e("v_and_b32 v6, 7, v1")
            e("v_lshlrev_b32 v6, 2, v6")
            e("v_bfe_u32 v7, v1, 3, 1")
            e("v_lshl_add_u32 v6, v7, 7, v6")
            e(f"s_mov_b32 s68, {SPIN_MAX}")
            e("s_setprio 0")
            e("L_k2_ow:")
            e("buffer_load_dword v7, v6, s[32:35], s70 offen sc1")
            e("s_waitcnt vmcnt(0)")
            e("v_cmp_eq_u32 vcc, 0, v7")
            e("s_cmp_eq_u64 vcc, 0")
            e("s_cbranch_scc1 L_k2_ow_go")
            e("s_sleep 2")
            e("s_sub_u32 s68, s68, 1")
            e("s_cmp_lg_u32 s68, 0")
            e("s_cbranch_scc1 L_k2_ow")
            e("L_k2_ow_go:")
            e("s_setprio 3")
            if ENV("K2_FINE") == "1": T.stamp()
        gemm(a, "wo", 2, 2, 8, 4, ACC, FR, 56, 57, "s53", "s54", sc_act=" sc1", noinit=True, between=owait)
    reduce22(ACC, FR)
    e("s_mov_b32 s60, 0xffff0000")
    for base in (XR, X1R):
        for p in range(8):
            e(f"v_lshlrev_b32 v{FR+2*p}, 16, v{base+p}")
            e(f"v_and_b32 v{FR+2*p+1}, s60, v{base+p}")
        for r in range(16): e(f"v_add_f32 v{ACC+r}, v{ACC+r}, v{FR+r}")
    if FUSE:
        for p in range(8): e(f"v_cvt_pk_bf16_f32 v{FR+p}, v{ACC+2*p}, v{ACC+2*p+1}")
        e("v_lshlrev_b32 v154, 10, v152")
        e("v_lshl_add_u32 v154, v153, 4, v154")
        e("s_lshl_b32 s60, s64, 15")
        e("s_lshl_b32 s61, s65, 6")
        e(f"v_permlane32_swap_b32 v{FR}, v{FR+2}")
        e(f"v_permlane32_swap_b32 v{FR+1}, v{FR+3}")
        e(f"v_permlane32_swap_b32 v{FR+4}, v{FR+6}")
        e(f"v_permlane32_swap_b32 v{FR+5}, v{FR+7}")
        e("s_add_u32 s60, s60, s61")
        e(f"buffer_store_dwordx4 v[{FR}:{FR+3}], v154, s[28:31], s60 offen")
        e(f"buffer_store_dwordx4 v[{FR+4}:{FR+7}], v154, s[28:31], s60 offen offset:32")
    else:
        e("s_lshl_b32 s60, s64, 4"); e("s_add_u32 s60, s60, s65"); e("s_lshl_b32 s60, s60, 12"); e(f"s_add_u32 s60, s60, {ROFF}")
        for q in range(4):
            e(f"buffer_store_dwordx4 v[{ACC+4*q}:{ACC+4*q+3}], v2, s[32:35], s60 offen offset:{1024*q}")
    T.stamp()


def gen_k2(with_w4=True):
    a = Asm("k2"); e = a.e
    T = Stamper(a, 72, 1)
    T.stamp()
    e("s_cmp_ge_u32 s2, 256")
    e("s_cbranch_scc1 L_k2_exit")
    e("s_load_dwordx2 s[4:5], s[0:1], 0")
    e("s_load_dwordx2 s[6:7], s[0:1], 64")
    e("s_load_dwordx2 s[20:21], s[0:1], 80")
    e("v_lshrrev_b32 v1, 6, v0")
    e("s_and_b32 s54, s2, 7")
    e("v_readfirstlane_b32 s44, v1")
    e("v_and_b32 v1, 63, v0")
    e("v_lshlrev_b32 v2, 4, v1")
    e("s_lshl_b32 s40, s54, 2")
    e("s_bfe_u32 s54, s2, 0x20003")
    e("s_add_u32 s40, s40, s54")
    e("s_lshr_b32 s41, s2, 5")
    e("s_mov_b32 s45, s44")
    for r in range(4, 8): e(f"v_mov_b32 v{r}, 0")
    e(f"v_add_u32 v3, {L_CS}, v2")
    e("ds_write_b128 v3, v[4:7]")
    e("s_waitcnt lgkmcnt(0)")
    e("s_barrier")
    a.srd(32, 20, WS_USED)
    e("s_cmp_ge_u32 s44, 8")
    e("s_cbranch_scc1 L_k2_b")
    if ENV("K2_NOA") == "1":
        e("s_endpgm")
    attn_wave(a, T)
    T.stamp()
    T.dump(32, 44, 12, 4, 5)
    e("s_endpgm")
    e("L_k2_b:")
    b_waves(a, T, with_w4)
    T.dump(32, 44, 12, 4, 5)
    e("L_k2_exit:")
    e("s_endpgm")
    return a.kernel(vgpr=168, sgpr=96)
```

```python
from common import *

L_CS = 131072
L_ST = L_CS + 512
L_PR = L_ST + 2048
PR_PITCH = 1088
K1_LDS = L_PR + 16 * PR_PITCH


def gen_k1():
    a = Asm("k1")
    e = a.e
    L_exit = "L_k1_exit"
    T = Stamper(a, 78, 0)
    T.stamp()
    e("s_cmp_ge_u32 s2, 256")
    e(f"s_cbranch_scc1 {L_exit}")
    e("s_load_dwordx4 s[4:7], s[0:1], 0")
    e("s_load_dwordx4 s[8:11], s[0:1], 16")
    e("s_load_dwordx4 s[12:15], s[0:1], 32")
    e("s_load_dwordx4 s[16:19], s[0:1], 48")
    e("s_load_dwordx2 s[20:21], s[0:1], 80")
    e("v_lshrrev_b32 v1, 6, v0")
    e("s_and_b32 s54, s2, 7")
    e("v_readfirstlane_b32 s42, v1")
    e("v_and_b32 v1, 63, v0")
    e("s_lshr_b32 s55, s2, 3")
    e("s_lshr_b32 s40, s54, 1")
    e("s_lshl_b32 s40, s40, 2")
    e("s_and_b32 s56, s55, 3")
    e("s_add_u32 s40, s40, s56")
    e("s_and_b32 s41, s54, 1")
    e("s_lshl_b32 s41, s41, 3")
    e("s_lshr_b32 s56, s55, 2")
    e("s_add_u32 s41, s41, s56")
    e("s_and_b32 s45, s42, 3")
    e("s_cmp_lt_u32 s42, 4")
    e("s_cbranch_scc1 L_k1_compute")
    e("s_cmp_ge_u32 s42, 8")
    e("s_cbranch_scc1 L_k1_stat")

    def prep_decode(tag):
        Lp = {k: f"L_k1_{tag}{k}" for k in ("w2", "wo", "w4", "w3", "go")}
        e("s_mov_b32 s62, 0"); e("s_mov_b32 s61, 32"); e("s_mov_b32 s63, 1024"); e("s_mov_b32 s59, 16"); e("s_mov_b32 s73, 0")
        e(f"s_mov_b32 s38, {512*1024}")
        e("s_mov_b32 s56, s2")
        e("s_cmp_lt_u32 s2, 32");  e(f"s_cbranch_scc1 {Lp['w2']}")
        e("s_cmp_lt_u32 s2, 64");  e(f"s_cbranch_scc1 {Lp['wo']}")
        e("s_cmp_lt_u32 s2, 150"); e(f"s_cbranch_scc1 {Lp['w4']}")
        e("s_cmp_lt_u32 s2, 246"); e(f"s_cbranch_scc1 {Lp['w3']}")
        e("s_mov_b32 s38, 0"); e("s_mov_b32 s59, 0"); e("s_mov_b32 s56, 0")
        e(f"{Lp['w2']}:")
        e("s_mov_b32 s36, s14"); e("s_mov_b32 s37, s15"); e(f"s_mov_b32 s60, {W2F}")
        e(f"s_branch {Lp['go']}")
        e(f"{Lp['wo']}:")
        e("s_mov_b32 s36, s8"); e("s_mov_b32 s37, s9"); e(f"s_mov_b32 s60, {WOF}")
        e("s_sub_u32 s56, s2, 32"); e("s_mov_b32 s73, 1")
        e(f"s_branch {Lp['go']}")
        e(f"{Lp['w4']}:")
        e("s_mov_b32 s36, s18"); e("s_mov_b32 s37, s19"); e(f"s_mov_b32 s38, {1376*1024}")
        e("s_sub_u32 s56, s2, 64"); e(f"s_mov_b32 s60, {W4F}"); e("s_mov_b32 s61, 86")
        e(f"s_branch {Lp['go']}")
        e(f"{Lp['w3']}:")
        e("s_mov_b32 s36, s16"); e("s_mov_b32 s37, s17"); e(f"s_mov_b32 s38, {512*2752}")
        e("s_sub_u32 s56, s2, 150")
        e("s_lshr_b32 s62, s56, 5")
        e("s_and_b32 s56, s56, 31")
        e(f"s_mov_b32 s60, {W3F}"); e("s_mov_b32 s63, 2752")
        e("s_cmp_eq_u32 s62, 2")
        e("s_cselect_b32 s59, 11, 16")
        e(f"{Lp['go']}:")

    e("s_lshl_b32 s54, s40, 7")
    e("s_lshl_b32 s55, s45, 5")
    e("s_add_u32 s54, s54, s55")
    e("v_lshrrev_b32 v56, 3, v1")
    e("v_add_u32 v56, s54, v56")
    e("v_lshlrev_b32 v56, 10, v56")
    e("v_lshrrev_b32 v57, 4, v1")
    e("v_and_b32 v58, 7, v1")
    e("v_xor_b32 v59, v58, v57")
    e("v_xor_b32 v60, 4, v59")
    e("v_lshl_add_u32 v2, v59, 4, v56")
    e("v_lshl_add_u32 v3, v60, 4, v56")
    e(f"v_add_u32 v4, {2*8192 - 2048}, v2")
    e(f"v_add_u32 v5, {3*8192 - 3072}, v3")
    e(f"v_add_u32 v3, {8192 - 1024}, v3")
    e("s_lshr_b32 s46, s45, 1")
    e("s_lshl_b32 s44, s41, 1")
    e("s_sub_u32 s44, s44, 8")
    e("s_add_u32 s44, s44, s46")
    e("s_cmp_lt_u32 s41, 8")
    e("s_cselect_b32 s44, s41, s44")
    e("s_cselect_b32 s54, s46, 0")
    e(f"s_mov_b32 s30, {512*3072}")
    e("s_mov_b32 s43, 3072")
    e("s_cmp_eq_u32 s54, 1")
    e(f"s_cselect_b32 s30, {512*1024}, s30")
    e("s_cselect_b32 s43, 1024, s43")
    e("s_waitcnt lgkmcnt(0)")
    e("s_cselect_b32 s28, s12, s6")
    e("s_cselect_b32 s29, s13, s7")
    e("s_and_b32 s29, s29, 0xffff")
    e("s_mov_b32 s31, 0x00020000")
    a.srd(24, 4, 2048 * 1024)
    e("s_lshl_b32 s44, s44, 7")
    e("s_lshl_b32 s53, s43, 6")
    e("v_lshrrev_b32 v58, 3, v1")
    e("v_mul_lo_u32 v58, v58, s43")
    e("v_and_b32 v59, 7, v1")
    e("v_bfe_u32 v60, v1, 4, 1")
    e("v_lshlrev_b32 v60, 2, v60")
    e("v_xor_b32 v59, v59, v60")
    e("v_lshl_add_u32 v58, v59, 4, v58")
    e("v_add_u32 v6, s44, v58")
    e("s_and_b32 s54, s45, 1")
    e("s_lshl_b32 s54, s54, 5")
    e("s_mul_i32 s48, s54, s43")
    e("s_lshl_b32 s54, s43, 3")
    e("s_sub_u32 s54, s54, 1024")
    e("s_add_u32 s49, s48, s54")
    e("s_add_u32 s50, s49, s54")
    e("s_add_u32 s51, s50, s54")
    e("s_mov_b32 s52, 0")
    e("s_lshl_b32 s47, s45, 12")

    def issue_stage(st):
        b = st % 4
        if os.environ.get("K1_NOLOAD") == "1": return
        e(f"s_add_u32 m0, s47, {b*16384}")
        e("s_nop 0")
        for u in range(4):
            e(f"buffer_load_dwordx4 v{2+u}, s[24:27], s52 offen offset:{1024*u} lds")
        e(f"s_add_u32 m0, s47, {65536 + b*16384}")
        e("s_add_u32 s52, s52, 128")
        for u in range(4):
            e(f"buffer_load_dwordx4 v6, s[28:31], s{48+u} offen offset:{1024*u} lds")
        for u in range(4):
            e(f"s_add_u32 s{48+u}, s{48+u}, s53")

    def prep_loads():
        prep_decode("l")
        e("s_and_b32 s37, s37, 0xffff")
        e("s_mov_b32 s39, 0x00020000")
        e("s_lshl_b32 s54, s56, 4")
        e("s_lshl_b32 s55, s45, 2")
        e("s_add_u32 s54, s54, s55")
        e("s_mul_i32 s54, s54, s63")
        e("s_lshl_b32 s55, s62, 10")
        e("s_add_u32 s54, s54, s55")
        e(f"s_mul_i32 s55, s45, {4*PR_PITCH}")
        e(f"s_add_u32 s55, s55, {L_PR}")
        e("v_lshlrev_b32 v56, 4, v1")
        for u in range(4):
            e(f"s_add_u32 m0, s55, {u*PR_PITCH}")
            e("s_nop 0")
            e(f"buffer_load_dwordx4 v56, s[36:39], s54 offen lds")
            e("s_add_u32 s54, s54, s63")

    def wb(n):
        e(f"s_waitcnt vmcnt({n})")
        e("s_barrier")

    issue_stage(0); issue_stage(1)
    T.stamp()
    wb(8)
    T.stamp()
    issue_stage(2); issue_stage(3)
    wb(16)
    issue_stage(4); prep_loads()
    wb(20)
    issue_stage(5)
    wb(20)
    issue_stage(6)
    wb(20)
    T.stamp()
    issue_stage(7)
    wb(16)
    wb(8)
    wb(0)
    T.stamp()
    if STAMP:
        a.srd(32, 20, WS_USED)
        T.dump(32, 42, 8, 60, 61)
    e("s_endpgm")

    e("L_k1_stat:")
    e("v_and_b32 v56, 31, v1")
    e("v_lshrrev_b32 v57, 5, v1")
    e("s_lshl_b32 s54, s45, 5")
    e("v_add_u32 v56, s54, v56")
    e("v_lshlrev_b32 v56, 7, v56")
    e("v_bfe_u32 v58, v1, 1, 3")
    e("v_xor_b32 v58, v57, v58")
    for ks in range(4):
        e(f"v_xor_b32 v59, {2*ks}, v58")
        e(f"v_lshl_add_u32 v{8+ks}, v59, 4, v56")
    for r in range(12, 16): e(f"v_mov_b32 v{r}, 0")
    e("s_mov_b32 s72, 0xffff0000")
    e("s_mov_b32 s71, 0xffff")
    e("s_waitcnt lgkmcnt(0)")
    a.srd(32, 20, WS_USED)
    if os.environ.get("CODE_WARM", "1") == "1":
        e("s_getpc_b64 s[66:67]")
        e("L_k1_pc:")
        e("s_sub_u32 s66, s66, L_k1_pc-k1_kernel")
        e("s_subb_u32 s67, s67, 0")
        e("s_lshl_b32 s54, s45, 13")
        e("v_lshlrev_b32 v58, 7, v1")
        e("v_add_u32 v58, s54, v58")
        e("v_mov_b32 v59, L_code_end-k1_kernel-4")
        e("v_min_u32 v58, v58, v59")
        e("v_mov_b32 v59, s67")
        e("v_add_co_u32 v58, vcc, s66, v58")
        e("v_addc_co_u32 v59, vcc, 0, v59, vcc")
        e("global_load_dword v92, v[58:59], off")
    e("s_cmp_ge_u32 s2, 64")
    e("s_cbranch_scc1 L_k1_noflag")
    e("s_cmp_lg_u32 s45, 0")
    e("s_cbranch_scc1 L_k1_noflag")
    e("s_lshl_b32 s54, s2, 8")
    e(f"s_add_u32 s54, s54, {FLAGS}")
    e("v_lshlrev_b32 v58, 2, v1")
    e("buffer_store_dword v12, v58, s[32:35], s54 offen")
    e("L_k1_noflag:")
    prep_decode("s")
    e("s_add_u32 s54, s73, 2")
    e("v_lshlrev_b32 v56, s54, v57")
    e("v_bfe_u32 v58, v1, 2, 2")
    e("v_add_u32 v56, v56, v58")
    e(f"v_mul_u32_u24 v56, {PR_PITCH}, v56")
    e("v_and_b32 v58, 3, v1")
    e("v_lshl_add_u32 v56, v58, 3, v56")
    e("v_bfe_u32 v58, v1, 4, 1")
    e("v_lshl_add_u32 v56, v58, 5, v56")
    e("s_lshl_b32 s54, s45, 8")
    e(f"s_add_u32 s54, s54, {L_PR}")
    e("v_add_u32 v2, s54, v56")
    e(f"s_mov_b32 s54, {8*PR_PITCH}")
    e("s_cmp_eq_u32 s73, 1")
    e(f"s_cselect_b32 s54, {4*PR_PITCH}, s54")
    e("v_add_u32 v3, s54, v2")
    e("v_lshlrev_b32 v4, 4, v1")
    e("s_lshl_b32 s54, s62, 4")
    e("s_lshl_b32 s55, s45, 2")
    e("s_add_u32 s54, s54, s55")
    e("s_mul_i32 s54, s54, s61")
    e("s_add_u32 s54, s54, s56")
    e("s_lshl_b32 s54, s54, 10")
    e("s_add_u32 s60, s60, s54")
    e("s_lshl_b32 s61, s61, 10")
    e("s_sub_i32 s59, s59, s55")
    e("v_bfe_u32 v58, v1, 4, 1")
    e("v_xor_b32 v59, v58, v1")
    e("v_and_b32 v59, 1, v59")
    e("v_cmp_eq_u32 vcc, 0, v59")
    e("v_mov_b32 v59, 0x3f803f80")
    e("v_cmp_eq_u32 s[76:77], 1, v58")
    e("v_cndmask_b32 v72, 0, v59, vcc")
    e("v_mov_b32 v73, v72"); e("v_mov_b32 v74, v72"); e("v_mov_b32 v75, v72")
    e("v_and_b32 v5, 31, v1")
    e("v_lshlrev_b32 v5, 2, v5")
    e("s_mul_i32 s64, s56, 1408*4")
    e("s_lshl_b32 s54, s62, 11")
    e("s_add_u32 s64, s64, s54")
    e("s_lshl_b32 s54, s45, 9")
    e("s_add_u32 s64, s64, s54")
    e(f"s_add_u32 s64, s64, {CS3P}")
    e("s_mov_b32 s70, 0")
    for r in range(40, 56): e(f"v_mov_b32 v{r}, 0")
    def process(b):
        if os.environ.get("K1_NOSTAT") == "1": return
        for d in range(16):
            t = 32 + 2 * (d & 3)
            e(f"v_lshlrev_b32 v{t}, 16, v{b+d}")
            e(f"v_and_b32 v{t+1}, s72, v{b+d}")
            if d >= 1:
                t2 = 32 + 2 * ((d - 1) & 3)
                e(f"v_fmac_f32 v{12 + 2*(d&1)}, v{t2}, v{t2}")
                e(f"v_fmac_f32 v{13 + 2*(d&1)}, v{t2+1}, v{t2+1}")
        e("v_fmac_f32 v12, v38, v38")
        e("v_fmac_f32 v13, v39, v39")
    e("L_k1_sloop:")
    for half, (cur, prev) in enumerate(((16, 40), (40, 16))):
        e("s_barrier")
        for ks in range(4):
            e(f"ds_read_b128 v[{cur+4*ks}:{cur+3+4*ks}], v{8+ks} offset:{16384*half}")
        if half == 1:
            e("s_cmp_lg_u32 s70, 2")
            e("s_cbranch_scc1 L_k1_snoprep")
            for i in range(4):
                e(f"ds_read_b64_tr_b16 v[{56+4*i}:{57+4*i}], v2 offset:{64*i}")
                e(f"ds_read_b64_tr_b16 v[{58+4*i}:{59+4*i}], v3 offset:{64*i}")
            e("s_waitcnt lgkmcnt(0)")
            e("s_cmp_lg_u32 s63, 2752")
            e("s_cbranch_scc1 L_k1_snocs")
            for i in range(4):
                e(f"v_mfma_f32_16x16x32_bf16 v[{76+4*i}:{79+4*i}], v[72:75], v[{56+4*i}:{59+4*i}], 0")
            e("s_nop 7")
            for i in range(4):
                e(f"v_cndmask_b32 v{76+4*i}, v{76+4*i}, v{77+4*i}, s[76:77]")
            for i in range(4):
                e(f"s_cmp_le_i32 s59, {i}")
                e("s_cbranch_scc1 L_k1_snocs")
                e(f"buffer_store_dword v{76+4*i}, v5, s[32:35], s64 offen offset:{128*i} sc1")
            e("L_k1_snocs:")
            for i in range(4):
                e(f"s_cmp_le_i32 s59, {i}")
                e("s_cbranch_scc1 L_k1_snoprep")
                e(f"buffer_store_dwordx4 v[{56+4*i}:{59+4*i}], v4, s[32:35], s60 offen sc1")
                e("s_add_u32 s60, s60, s61")
            e("L_k1_snoprep:")
            for r in range(8, 12):
                e(f"v_xor_b32 v{r}, 0x8000, v{r}")
        process(prev)
        e("s_waitcnt lgkmcnt(0)")
    e("s_add_u32 s70, s70, 1")
    e("s_cmp_lt_u32 s70, 4")
    e("s_cbranch_scc1 L_k1_sloop")
    process(40)
    e("v_add_f32 v12, v12, v13")
    e("v_add_f32 v14, v14, v15")
    e("s_lshl_b32 s54, s45, 9")
    e(f"s_add_u32 s54, s54, {L_ST}")
    e("v_lshl_add_u32 v56, v1, 2, s54")
    e("v_add_f32 v12, v12, v14")
    e("ds_write_b32 v56, v12 offset:256")
    e("s_waitcnt lgkmcnt(0)")
    e("s_barrier")
    e("s_endpgm")

    e("L_k1_compute:")
    e("v_and_b32 v8, 31, v1")
    e("v_lshrrev_b32 v9, 5, v1")
    e("s_lshl_b32 s54, s45, 5")
    e("v_add_u32 v10, s54, v8")
    e("v_lshlrev_b32 v10, 7, v10")
    e("v_bfe_u32 v11, v1, 1, 3")
    e("v_xor_b32 v11, v9, v11")
    for ks in range(4):
        e(f"v_xor_b32 v12, {2*ks}, v11")
        e(f"v_lshl_add_u32 v{2+ks}, v12, 4, v10")
    e("v_bfe_u32 v10, v1, 2, 2")
    e("v_lshl_add_u32 v10, v9, 3, v10")
    e("v_lshlrev_b32 v10, 7, v10")
    e("v_and_b32 v11, 3, v1")
    e("v_lshl_add_u32 v10, v11, 3, v10")
    e("v_bfe_u32 v11, v1, 3, 1")
    e("v_lshl_add_u32 v10, v11, 6, v10")
    e("v_bfe_u32 v11, v1, 4, 1")
    e("v_lshl_add_u32 v10, v11, 5, v10")
    e("v_add_u32 v6, 65536, v10")
    e("v_xor_b32 v16, 64, v6")
    e("v_xor_b32 v10, v11, v1")
    e("v_and_b32 v10, 1, v10")
    e("v_cmp_eq_u32 vcc, 0, v10")
    e("v_mov_b32 v10, 0x3f803f80")
    e("v_cmp_eq_u32 s[76:77], 1, v11")
    e("v_cndmask_b32 v12, 0, v10, vcc")
    e("v_mov_b32 v13, v12")
    e("v_mov_b32 v14, v12")
    e("v_mov_b32 v15, v12")
    e("s_lshr_b32 s54, s45, 1")
    e("s_lshl_b32 s54, s54, 13")
    e("s_and_b32 s55, s45, 1")
    e("s_lshl_b32 s55, s55, 6")
    e("v_xor_b32 v7, s55, v6")
    e("v_add_u32 v7, s54, v7")
    e("s_mov_b32 s73, 0xffff")
    e("s_mov_b32 s74, 0x10000")
    e("s_waitcnt lgkmcnt(0)")
    a.srd(32, 20, WS_USED)

    def X(s): return 32 + 24 * s
    def W(s, j): return 36 + 24 * s + 4 * j
    def ACC(j): return 96 + 16 * j

    def reads(ks, s):
        R = [f"ds_read_b128 v[{X(s)}:{X(s)+3}], v{2+ks}"]
        for j in range(4):
            for t in range(2):
                R.append(f"ds_read_b64_tr_b16 v[{W(s,j)+2*t}:{W(s,j)+2*t+1}], v{16 if j&1 else 6} offset:{(j>>1)*8192 + (16*ks+4*t)*128}")
        for t in range(2):
            R.append(f"ds_read_b64_tr_b16 v[{W(s,4)+2*t}:{W(s,4)+2*t+1}], v7 offset:{(16*ks+4*t)*128}")
        return R

    def updx(r):
        return [f"v_add_u32 v{r}, 16384, v{r}", f"v_and_b32 v{r}, s73, v{r}"]
    def updw(r):
        return [f"v_add_u32 v{r}, 16384, v{r}", f"v_and_b32 v{r}, s73, v{r}", f"v_or_b32 v{r}, s74, v{r}"]

    for r in list(range(24, 32)) + list(range(96, 160)):
        e(f"v_mov_b32 v{r}, 0")
    T.n = 1
    T.stamp()
    e("s_barrier")
    T.stamp()
    for r in reads(0, 0): e(r)
    for v in updx(2): e(v)
    e("s_mov_b32 s70, 8")
    e("L_k1_loop:")
    s = 0
    for ks in range(4):
        R = reads((ks + 1) % 4, 1 - s)
        M = [f"v_mfma_f32_32x32x16_bf16 v[{ACC(j)}:{ACC(j)+15}], v[{W(s,j)}:{W(s,j)+3}], v[{X(s)}:{X(s)+3}], v[{ACC(j)}:{ACC(j)+15}]" for j in range(4)]
        M.append(f"v_mfma_f32_16x16x32_bf16 v[28:31], v[12:15], v[{X(s)}:{X(s)+3}], v[28:31]")
        M.append(f"v_mfma_f32_16x16x32_bf16 v[24:27], v[12:15], v[{W(s,4)}:{W(s,4)+3}], v[24:27]")
        if os.environ.get("K1_NOMFMA") == "1": M[:4] = ["s_nop 0"]*4
        if os.environ.get("K1_NOREAD") == "1": R = [""]*11
        if os.environ.get("K1_NOM16") == "1": M[4:] = ["", ""]
        if ks < 3:
            e("s_waitcnt lgkmcnt(8)")
            e(M[0])
            for r in R[0:4]: e(r)
            e("s_waitcnt lgkmcnt(10)")
            e(M[1])
            for r in R[4:8]: e(r)
            e("s_waitcnt lgkmcnt(12)")
            e(M[2])
            for r in R[8:11]: e(r)
            e("s_waitcnt lgkmcnt(13)")
            e(M[3])
            for v in updx(2 + ks + 1): e(v)
            if ks == 2:
                for v in updw(6): e(v)
            e(M[4])
            e("s_waitcnt lgkmcnt(11)")
            if ks == 2:
                for v in updw(16): e(v)
            e(M[5])
            if ks == 2:
                for v in updw(7): e(v)
        else:
            e("s_waitcnt lgkmcnt(8)")
            e(M[0])
            e("s_sub_u32 s70, s70, 1")
            e("s_waitcnt lgkmcnt(6)")
            e(M[1])
            e("s_waitcnt lgkmcnt(0)")
            e("s_cmp_eq_u32 s70, 0")
            e("s_cbranch_scc1 L_k1_nobar")
            e("s_barrier")
            e("L_k1_nobar:")
            for r in R[0:3]: e(r)
            e(M[2])
            for r in R[3:7]: e(r)
            e(M[3])
            for r in R[7:11]: e(r)
            e(M[4])
            for v in updx(2): e(v)
            e(M[5])
        s = 1 - s
    e("s_cmp_lg_u32 s70, 0")
    e("s_cbranch_scc1 L_k1_loop")
    T.stamp()

    e("s_lshl_b32 s54, s45, 7")
    e(f"s_add_u32 s54, s54, {L_CS}")
    e("v_lshl_add_u32 v7, v8, 2, s54")
    e("s_lshl_b32 s54, s45, 9")
    e(f"s_add_u32 s54, s54, {L_ST}")
    e("v_lshl_add_u32 v6, v8, 2, s54")
    e("s_lshl_b32 s58, s40, 2")
    e("s_add_u32 s58, s58, s45")
    e("s_nop 2")
    e("v_cndmask_b32 v24, v24, v25, s[76:77]")
    e("ds_write_b32 v7, v24")
    e("v_cndmask_b32 v24, v28, v29, s[76:77]")
    e("v_lshlrev_b32 v20, 4, v1")
    e("v_lshlrev_b32 v21, 5, v8")
    e("v_lshl_add_u32 v21, v9, 4, v21")
    e("s_lshr_b32 s57, s41, 1")
    e("s_lshr_b32 s54, s57, 1")
    e("s_add_u32 s54, s54, 1")
    e("s_sub_u32 s55, 0, s54")
    e("s_bitcmp1_b32 s57, 0")
    e("s_cselect_b32 s54, s55, s54")
    e("s_lshl_b32 s55, s58, 5")
    e("s_add_u32 s55, s55, s54")
    e("v_add_u32 v22, s55, v8")
    e("v_cmp_gt_u32 vcc, 2048, v22")
    e("v_and_b32 v22, 2047, v22")
    e("v_lshrrev_b32 v23, 5, v22")
    e("v_lshlrev_b32 v23, 15, v23")
    e("v_and_b32 v22, 31, v22")
    e("v_lshl_add_u32 v23, v22, 4, v23")
    e("v_lshl_add_u32 v23, v9, 9, v23")
    e("v_cndmask_b32 v22, 0, 1.0, vcc")
    e(f"v_lshlrev_b32 v7, 4, v9")
    e(f"v_add_u32 v7, {L_CS}, v7")
    e("s_waitcnt lgkmcnt(0)")
    T.stamp()
    e("s_barrier")
    T.stamp()
    e("ds_read_b32 v16, v6 offset:256")
    e("ds_read_b32 v17, v6 offset:384")
    for j in range(4):
        for g in range(4):
            if j == 3 and g == 1: e("s_waitcnt lgkmcnt(13)")
            e(f"ds_read_b128 v[{32+16*j+4*g}:{35+16*j+4*g}], v7 offset:{128*j+32*g}")
    e("v_add_f32 v16, v16, v17")
    e(f"v_mul_f32 v24, {f32(1.0/512)}, v24")
    e(f"v_mul_f32 v16, {f32(1.0/512)}, v16")
    e("v_fma_f32 v16, -v24, v24, v16")
    e("v_max_f32 v16, 0, v16")
    e(f"v_add_f32 v17, {f32(EPS)}, v16")
    e("v_rsq_f32 v25, v17")
    e(f"v_mov_b32 v19, {f32(EPS)}")
    e("v_mul_f32 v18, v25, v25")
    e("v_fma_f32 v18, v18, v16, v19")
    e("v_rsq_f32 v18, v18")
    e("v_mul_f32 v26, v24, v25")
    e("v_sub_f32 v26, 0, v26")
    e("v_mul_f32 v18, v18, v22")
    e("s_cmp_lg_u32 s41, 0")
    e("s_cbranch_scc1 L_k1_nostat")
    e("s_lshl_b32 s54, s58, 8")
    e(f"s_add_u32 s54, s54, {STAT}")
    e("v_lshlrev_b32 v19, 3, v8")
    e("buffer_store_dwordx2 v[24:25], v19, s[32:35], s54 offen")
    e("L_k1_nostat:")
    e("s_lshl_b32 s56, s41, 2")
    e("s_sub_u32 s56, s56, 16")
    e("s_lshl_b32 s54, s41, 1")
    e("s_cmp_lt_u32 s41, 8")
    e("s_cselect_b32 s56, s54, s56")
    e(f"s_mov_b32 s60, {f32(QSCALE)}")
    e(f"s_mov_b32 s62, {f32(GELU_K2)}")
    e(f"s_mov_b32 s63, {f32(GELU_K2)}")
    e(f"v_mov_b32 v16, {f32(GELU_K1)}")
    e("s_waitcnt lgkmcnt(0)")
    OUT = [160, 32, 48, 64]
    def tile(j, ish):
        c = ACC(j)
        if not ish:
            e(f"s_add_u32 s55, s56, {j}")
            e("s_cmp_lt_u32 s55, 16")
            e("s_cselect_b32 s54, s60, 1.0")
            e("v_mul_f32 v28, s54, v25")
            e("v_mul_f32 v30, s54, v26")
            e("s_cmp_ge_u32 s55, 32")
            e("s_cselect_b64 vcc, -1, 0")
            e("s_lshl_b32 s55, s55, 7")
            e("s_add_u32 s55, s55, s58")
            e("s_lshl_b32 s55, s55, 10")
            e("s_add_u32 s59, s55, 65536")
            e("v_cndmask_b32 v27, v20, v21, vcc")
        else:
            e("v_mul_f32 v28, v18, v25")
            e("v_mul_f32 v30, v18, v26")
            e("s_lshl_b32 s55, s41, 12")
            e(f"s_add_u32 s55, s55, {HOFF + (j-2)*2048}")
        cs = 32 + 16 * j
        for r in range(0, 16, 2):
            e(f"v_pk_mul_f32 v[{cs+r}:{cs+r+1}], v[{cs+r}:{cs+r+1}], v[30:31] op_sel_hi:[1,0]")
        for r in range(0, 16, 2):
            e(f"v_pk_fma_f32 v[{c+r}:{c+r+1}], v[{c+r}:{c+r+1}], v[28:29], v[{cs+r}:{cs+r+1}] op_sel_hi:[1,0,1]")
        if ish:
            emit_gelu_pk(a, c, 16, cs, 16, 62)
        o = OUT[j]
        for p in range(8):
            e(f"v_cvt_pk_bf16_f32 v{o+p}, v{c+2*p}, v{c+2*p+1}")
        if not ish:
            e(f"buffer_store_dwordx4 v[{o}:{o+3}], v27, s[32:35], s55 offen")
            e(f"buffer_store_dwordx4 v[{o+4}:{o+7}], v27, s[32:35], s59 offen")
        else:
            e(f"buffer_store_dwordx4 v[{o}:{o+3}], v23, s[32:35], s55 offen")
            e(f"buffer_store_dwordx4 v[{o+4}:{o+7}], v23, s[32:35], s55 offen offset:1024")
    tile(0, False)
    T.stamp()
    tile(1, False)
    e("s_cmp_lt_u32 s41, 8")
    e("s_cbranch_scc1 L_k1_htiles")
    tile(2, False)
    tile(3, False)
    e("s_branch L_k1_fin")
    e("L_k1_htiles:")
    tile(2, True)
    tile(3, True)
    e("L_k1_fin:")
    T.stamp()
    T.dump(32, 42, 8, 60, 61)
    e(f"{L_exit}:")
    e("s_endpgm")
    return a.kernel(vgpr=168, sgpr=96)
```

```python
from common import *

L_K = 0
L_V = 65536
L_ONES = 131072
L_B = L_ONES + 5632
L_CS = L_B + 24576
L_FLG = L_CS + 768
K2_LDS = L_FLG + 256
SPIN_MAX = 20000
BIG = 0x7ff00000
ENV = os.environ.get
FUSE = ENV("K2_FUSE", "1") == "1"


def lds_signal(a, idx, va, vb):
    e = a.e
    e(f"v_mov_b32 v{va}, {L_FLG + 4*idx}")
    e(f"v_mov_b32 v{vb}, 1")
    e("s_mov_b64 exec, 1")
    e(f"ds_add_u32 v{va}, v{vb}")
    e("s_mov_b64 exec, -1")


def lds_wait(a, tag, idx, target, va, vb, s0, s1, sleep=1, setaddr=True):
    e = a.e
    if setaddr: e(f"v_mov_b32 v{va}, {L_FLG + 4*idx}")
    e(f"s_mov_b32 s{s0}, {SPIN_MAX}")
    e(f"L_{a.name}_lw{tag}:")
    e(f"ds_read_b32 v{vb}, v{va}")
    e("s_waitcnt lgkmcnt(0)")
    e(f"v_readfirstlane_b32 s{s1}, v{vb}")
    e(f"s_cmp_ge_u32 s{s1}, {target}")
    e(f"s_cbranch_scc1 L_{a.name}_lw{tag}_go")
    e(f"s_sleep {sleep}")
    e(f"s_sub_u32 s{s0}, s{s0}, 1")
    e(f"s_cmp_lg_u32 s{s0}, 0")
    e(f"s_cbranch_scc1 L_{a.name}_lw{tag}")
    e(f"L_{a.name}_lw{tag}_go:")


def attn_wave(a, T):
    e = a.e; n = a.name
    e("s_lshl_b32 s48, s41, 3")
    e("s_add_u32 s48, s48, s45")
    e("s_lshl_b32 s49, s40, 6")
    e("s_add_u32 s49, s49, s48")
    e("s_lshl_b32 s49, s49, 10")
    e("buffer_load_dwordx4 v[8:11], v2, s[32:35], s49 offen")
    e("v_and_b32 v5, 1, v1")
    e("v_cmp_eq_u32 vcc, 0, v5")
    e("v_mov_b32 v5, 0x3f80")
    e("v_mov_b32 v33, 0"); e("v_mov_b32 v35, 0")
    e("v_cndmask_b32 v32, 0, v5, vcc")
    e("v_mov_b32 v34, v32")
    e("v_lshlrev_b32 v3, 4, v0")
    e(f"v_cmp_gt_u32 vcc, 5632, v3")
    e(f"v_add_u32 v3, {L_ONES}, v3")
    e("s_and_saveexec_b64 s[50:51], vcc")
    e("ds_write_b128 v3, v[32:35]")
    e("s_mov_b64 exec, -1")
    e("v_lshrrev_b32 v5, 5, v1")
    e("v_bfe_u32 v6, v1, 4, 1")
    e("v_xor_b32 v7, v5, v6")
    e("v_and_b32 v3, 15, v1")
    e("v_lshlrev_b32 v3, 3, v3")
    e("v_lshl_add_u32 v3, v7, 7, v3")
    e("v_lshl_add_u32 v3, v6, 16, v3")
    e(f"v_add_u32 v112, {L_V}, v3")
    e("v_xor_b32 v4, 1, v6")
    e("v_lshlrev_b32 v4, 12, v4")
    e("s_mov_b32 s56, 0")
    e("s_lshl_b32 s51, s45, 2")
    e(f"s_add_u32 s51, s51, {L_FLG + 64}")
    e("v_mov_b32 v113, s51")
    e("v_xor_b32 v114, 16, v113")
    e("v_mov_b32 v115, 0")
    e("v_mov_b32 v116, 0")
    e("s_waitcnt lgkmcnt(0)")
    lds_signal(a, 9, 5, 6)
    lds_wait(a, "c0", 9, 12, 5, 6, 51, 52)
    T.stamp()
    e("ds_read_b128 v[88:91], v2")
    e("s_waitcnt vmcnt(0) lgkmcnt(0)")
    e("v_mfma_f32_32x32x16_bf16 v[32:47], v[88:91], v[8:11], 0")
    e("s_nop 7"); e("s_nop 3")
    e("v_max3_f32 v16, v32, v33, v34")
    e("v_max3_f32 v17, v35, v36, v37")
    e("v_max3_f32 v16, v16, v38, v39")
    e("v_max3_f32 v17, v17, v40, v41")
    e("v_max3_f32 v16, v16, v42, v43")
    e("v_max3_f32 v17, v17, v44, v45")
    e("v_max3_f32 v16, v16, v46, v47")
    e(f"L_{n}_setmax:")
    e("v_max_f32 v16, v16, v17")
    e("v_mov_b32 v12, v2")
    e("v_mov_b32 v17, v16")
    e("v_mov_b32 v3, v112")
    e("ds_read_b128 v[88:91], v12")
    e("ds_read_b128 v[92:95], v12 offset:1024")
    e("v_permlane32_swap_b32 v16, v17")
    for u in range(2):
        for t in range(2):
            e(f"ds_read_b64_tr_b16 v[{96+4*u+2*t}:{97+4*u+2*t}], v3 offset:{512*u+256*t}")
    e("v_max_f32 v16, v16, v17")
    e("v_sub_f32 v16, 0, v16")
    for r in range(17, 32): e(f"v_mov_b32 v{r}, v16")
    for r in list(range(68, 88)) + list(range(104, 112)): e(f"v_mov_b32 v{r}, 0")
    e("s_waitcnt lgkmcnt(5)")
    e("v_mfma_f32_32x32x16_bf16 v[32:47], v[88:91], v[8:11], v[16:31]")
    e("s_nop 7")
    e("s_mov_b32 s55, 0")
    e(f"L_{n}_loop:")
    e("s_add_u32 s51, s55, 1")
    e("s_and_b32 s52, s51, s55")
    e("s_cmp_lg_u32 s52, 0")
    e(f"s_cbranch_scc1 L_{n}_nobar")
    e("s_cmp_eq_u32 s55, 0")
    e(f"s_cbranch_scc1 L_{n}_nobar")
    e("s_cmp_eq_u32 s55, 15")
    e(f"s_cbranch_scc1 L_{n}_nobar")
    e("s_bcnt1_i32_b32 s51, s55")
    e("s_lshl_b32 s51, s51, 2")
    e(f"s_add_u32 s51, s51, {L_FLG + 36}")
    e("v_mov_b32 v5, s51")
    lds_wait(a, "c1", 0, 4, 5, 6, 51, 52, setaddr=False)
    e(f"L_{n}_nobar:")
    X = lambda r: e(f"v_exp_f32 v{r}, v{r}")
    fair = ENV("K2_FAIR", "1") == "1"
    for tl in range(4):
        S = 32 + 16 * (tl % 2); Sn = 32 + 16 * ((tl + 1) % 2)
        Kn = 88 + 4 * ((tl + 1) % 2); Knn = 88 + 4 * (tl % 2)
        V = 96 + 8 * (tl % 2); Vp = 96 + 8 * ((tl + 1) % 2)
        e("s_waitcnt lgkmcnt(4)")
        e(f"v_mfma_f32_32x32x16_bf16 v[{Sn}:{Sn+15}], v[{Kn}:{Kn+3}], v[8:11], v[16:31]")
        if fair and tl == 0:
            e("ds_write_b32 v113, v115")
            e("ds_read_b32 v116, v114")
        e(f"ds_read_b128 v[{Knn}:{Knn+3}], v12 offset:{1024*(tl+2)}")
        X(S); X(S + 1); X(S + 2)
        e(f"v_mfma_f32_32x32x16_bf16 v[72:87], v[{Vp+4}:{Vp+7}], v[68:71], v[72:87]")
        for u in range(2):
            for t in range(2):
                e(f"ds_read_b64_tr_b16 v[{Vp+4*u+2*t}:{Vp+4*u+2*t+1}], v3 offset:{1024*(tl+1)+512*u+256*t}")
        if fair and tl == 1:
            e("v_readfirstlane_b32 s51, v116")
            e("v_add_u32 v115, 1, v115")
            e("s_cmp_gt_u32 s55, s51")
            e(f"s_cbranch_scc1 L_{n}_lo")
            e("s_setprio 1")
            e(f"s_branch L_{n}_pd")
            e(f"L_{n}_lo:")
            e("s_setprio 0")
            e(f"L_{n}_pd:")
        for i in range(3, 9): X(S + i)
        for i in range(4): e(f"v_cvt_pk_bf16_f32 v{64+i}, v{S+2*i}, v{S+2*i+1}")
        X(S + 9); X(S + 10)
        e("s_waitcnt lgkmcnt(5)")
        e(f"v_mfma_f32_32x32x16_bf16 v[72:87], v[{V}:{V+3}], v[64:67], v[72:87]")
        for i in range(11, 16): X(S + i)
        if tl == 3:
            e("v_add_u32 v12, 4096, v12")
            e("v_add_u32 v3, v4, v3")
        else:
            e("s_nop 0")
        for i in range(4, 8): e(f"v_cvt_pk_bf16_f32 v{64+i}, v{S+2*i}, v{S+2*i+1}")
    e("s_add_u32 s55, s55, 1")
    e("s_cmp_lt_u32 s55, 16")
    e(f"s_cbranch_scc1 L_{n}_loop")
    e("v_mfma_f32_32x32x16_bf16 v[72:87], v[108:111], v[68:71], v[72:87]")
    T.stamp()
    e("s_lshl_b32 s49, s48, 5")
    e("s_add_u32 s49, s49, s40")
    e("s_lshl_b32 s49, s49, 10")
    e(f"s_add_u32 s49, s49, {OOFF}")
    e("s_waitcnt lgkmcnt(0)")
    e("s_nop 7")
    e("v_mul_f32 v32, 0, v72")
    for r in range(73, 80): e(f"v_fma_f32 v32, v{r}, 0, v32")
    e(f"v_mov_b32 v33, {f32(2.0**60)}")
    e("v_add_f32 v32, v32, v80")
    e("v_cmp_nlt_f32 vcc, v32, v33")
    e("s_cmp_lg_u32 s56, 0")
    e(f"s_cbranch_scc1 L_{n}_store")
    e("s_cmp_eq_u64 vcc, 0")
    e(f"s_cbranch_scc1 L_{n}_store")
    e("s_mov_b32 s56, 1")
    e("s_mov_b32 s55, 0")
    e("v_mov_b32 v12, v2")
    e("v_mov_b32 v16, 0xff800000")
    e("v_mov_b32 v17, 0xff800000")
    e(f"L_{n}_mloop:")
    e("ds_read_b128 v[88:91], v12")
    e("s_waitcnt lgkmcnt(0)")
    e("v_mfma_f32_32x32x16_bf16 v[32:47], v[88:91], v[8:11], 0")
    e("v_add_u32 v12, 1024, v12")
    e("s_nop 7"); e("s_nop 3")
    for i in range(4):
        e(f"v_max3_f32 v16, v16, v{32+4*i}, v{33+4*i}")
        e(f"v_max3_f32 v17, v17, v{34+4*i}, v{35+4*i}")
    e("s_add_u32 s55, s55, 1")
    e("s_cmp_lt_u32 s55, 64")
    e(f"s_cbranch_scc1 L_{n}_mloop")
    e(f"s_branch L_{n}_setmax")
    e(f"L_{n}_store:")
    lds_signal(a, 13, 5, 6)
    e("v_rcp_f32 v80, v80")
    e("s_nop 0")
    for r in range(72, 80): e(f"v_mul_f32 v{r}, v{r}, v80")
    for p in range(4): e(f"v_cvt_pk_bf16_f32 v{64+p}, v{72+2*p}, v{73+2*p}")
    if FUSE:
        e("buffer_store_dwordx4 v[64:67], v2, s[32:35], s49 offen sc1")
        e("s_lshl_b32 s49, s48, 5")
        e("s_add_u32 s49, s49, s40")
        e("s_lshl_b32 s49, s49, 2")
        e(f"s_add_u32 s49, s49, {OFLAG}")
        e("v_mov_b32 v5, 0")
        e("v_mov_b32 v6, 1")
        e("s_waitcnt vmcnt(0)")
        e("s_mov_b64 exec, 1")
        e("buffer_store_dword v6, v5, s[32:35], s49 offen sc1")
        e("s_mov_b64 exec, -1")
    else:
        e("buffer_store_dwordx4 v[64:67], v2, s[32:35], s49 offen")


def gemm(a, tag, nact, nw, N, D, acc, fr, s_act, s_w, st_act, st_w, s_cnt=None, sc_act="", pace=None, hook=None, hook_step=None, noinit=False, between=None):
    e = a.e
    nf = nact + nw
    def F(r, i): return fr + 4 * (nf * r + i)
    def issue(r, part=3):
        if part != 3:
            for t in range(nact if part == 1 else 0):
                e(f"s_add_u32 s62, s{s_act}, {1024*r}")
                if t: e(f"s_add_u32 s62, s62, {st_act}")
                e(f"buffer_load_dwordx4 v[{F(r,t)}:{F(r,t)+3}], v2, s[32:35], s62 offen{sc_act}")
            for i in range(nw if part == 2 else 0):
                e(f"s_add_u32 s62, s{s_w}, {1024*r}")
                if i: e(f"s_add_u32 s62, s62, {st_w if isinstance(st_w, str) else i*st_w}")
                e(f"buffer_load_dwordx4 v[{F(r,nact+i)}:{F(r,nact+i)+3}], v2, s[32:35], s62 offen")
            return
        if s_cnt is not None:
            e(f"s_cmp_gt_i32 s{s_cnt}, 0")
            e(f"s_cselect_b32 s60, s{s_act}, s59")
            e(f"s_cselect_b32 s61, s{s_w}, s59")
            e(f"s_sub_i32 s{s_cnt}, s{s_cnt}, 1")
            sa, sw = 60, 61
        else:
            sa, sw = s_act, s_w
        for t in range(nact):
            so = f"s{sa}"
            if t:
                e(f"s_add_u32 s62, s{sa}, {st_act if isinstance(st_act, str) else t*st_act}"); so = "s62"
            e(f"buffer_load_dwordx4 v[{F(r,t)}:{F(r,t)+3}], v2, s[32:35], {so} offen{sc_act}")
        for i in range(nw):
            so = f"s{sw}"
            if i:
                e(f"s_add_u32 s62, s{sw}, {st_w if isinstance(st_w, str) else i*st_w}"); so = "s62"
            e(f"buffer_load_dwordx4 v[{F(r,nact+i)}:{F(r,nact+i)+3}], v2, s[32:35], {so} offen")
        e(f"s_add_u32 s{s_act}, s{s_act}, 1024")
        e(f"s_add_u32 s{s_w}, s{s_w}, 1024")
    def step(j, first=False):
        r = j % D
        if between and j < D:
            e(f"s_waitcnt vmcnt({nact*(D-1-j) + nf*min(j, max(N-D, 0))})")
        else:
            e(f"s_waitcnt vmcnt({nf*min(D-1, N-1-j)})")
        if hook_step: hook_step(j)
        for i in range(nw):
            for t in range(nact):
                d = acc + 16 * (i * nact + t)
                cc = "0" if first else f"v[{d}:{d+15}]"
                e(f"v_mfma_f32_32x32x16_bf16 v[{d}:{d+15}], v[{F(r,nact+i)}:{F(r,nact+i)+3}], v[{F(r,t)}:{F(r,t)+3}], {cc}")
                if pace: e(pace)
        if j + D < N: issue(r)
    if s_cnt is not None: e(f"s_mov_b32 s59, {BIG}")
    if between:
        for r in range(D): issue(r, 2)
        between()
        for r in range(D): issue(r, 1)
        e(f"s_add_u32 s{s_act}, s{s_act}, {1024*D}")
        e(f"s_add_u32 s{s_w}, s{s_w}, {1024*D}")
        if s_cnt is not None: e(f"s_sub_i32 s{s_cnt}, s{s_cnt}, {D}")
        for j in range(D): step(j, first=(j == 0 and not noinit))
        j0 = D
    else:
        for r in range(D): issue(r)
        if hook: hook(nf * D)
        step(0, not noinit)
        j0 = 1
    m = (N - j0 - D) // D
    j = j0
    if m >= 2:
        e(f"s_mov_b32 s58, {m}")
        e(f"L_{a.name}_{tag}_loop:")
        for jj in range(j0, j0 + D): step(jj)
        e("s_sub_u32 s58, s58, 1")
        e("s_cmp_lg_u32 s58, 0")
        e(f"s_cbranch_scc1 L_{a.name}_{tag}_loop")
        j = j0 + m * D
    while j < N:
        step(j); j += 1


def b_waves(a, T, with_w4):
    e = a.e
    pace = ENV("K2_PACE", "s_nop 7") or None
    st = {"n": 0}
    def sync():
        st["n"] += 1
        e("s_waitcnt lgkmcnt(0)")
        lds_signal(a, 8, 6, 7)
        lds_wait(a, f"sy{st['n']}", 8, 4 * st["n"], 6, 7, 68, 69, setaddr=False)

    e("s_sub_u32 s45, s44, 8")
    a.srd(24, 4, 2048 * 1024)
    a.srd(28, 6, 2048 * 1024)
    e("s_lshl_b32 s46, s40, 16")
    e("s_lshl_b32 s47, s45, 10")
    e("s_add_u32 s46, s46, s47")
    e(f"s_add_u32 s46, s46, {KOFF}")
    def kv(t0, cnt):
        for i in range(cnt):
            off = (t0 + 4 * i) * 1024
            e(f"s_add_u32 m0, s47, {L_K + off}")
            e(f"s_add_u32 s48, s46, {off}")
            e("buffer_load_dwordx4 v2, s[32:35], s48 offen lds")
            e(f"s_add_u32 m0, s47, {L_V + off}")
            e(f"s_add_u32 s48, s46, {off + VOFF - KOFF}")
            e("buffer_load_dwordx4 v2, s[32:35], s48 offen lds")
    OLD = ENV("K2_ORDER", "old") == "old"
    kv(0, 2)
    if OLD:
        kv(8, 6)
        e("s_waitcnt vmcnt(12)")
        lds_signal(a, 9, 6, 7)
    e("s_setprio %s" % ENV("K2_PRIO", "3"))
    T.n = 1
    T.stamp()
    if ENV("K2_NOB") == "1":
        kv(8, 14); e("s_waitcnt vmcnt(0)")
        for i in (9, 10, 11, 12): lds_signal(a, i, 6, 7)
        e("s_endpgm")

    e("s_and_b32 s50, s45, 1")
    e("s_lshr_b32 s51, s45, 1")
    e("s_lshl_b32 s64, s40, 1"); e("s_add_u32 s64, s64, s50")
    e("s_lshl_b32 s65, s41, 1"); e("s_add_u32 s65, s65, s51")
    for j in range(1, 4):
        e(f"s_xor_b32 s60, s45, {j}")
        e("s_mul_i32 s60, s60, 6144")
        e(f"s_add_u32 s60, s60, {L_B + (j-1)*2048}")
        e(f"v_add_u32 v{2+j}, s60, v2")
    e("s_mul_i32 s52, s45, 6144")
    e(f"s_add_u32 s52, s52, {L_B}")

    def signed_stride(sreg, bit_sreg, stride):
        e(f"s_mov_b32 s{sreg}, {stride}")
        e(f"s_cmp_eq_u32 s{bit_sreg}, 1")
        e(f"s_cselect_b32 s{sreg}, {(-stride) & 0xffffffff}, s{sreg}")

    def x_tile(dst, vt):
        e("s_lshl_b32 s60, s64, 15")
        e("s_lshl_b32 s61, s65, 6")
        e("s_add_u32 s60, s60, s61")
        e(f"v_and_b32 v{vt}, 31, v1")
        e(f"v_lshrrev_b32 v{vt+1}, 5, v1")
        e(f"v_lshlrev_b32 v{vt+2}, 10, v{vt}")
        e(f"v_lshl_add_u32 v{vt+2}, v{vt+1}, 3, v{vt+2}")
        for g in range(4):
            e(f"buffer_load_dwordx2 v[{dst+2*g}:{dst+2*g+1}], v{vt+2}, s[24:27], s60 offen offset:{16*g}")

    def reduce22(ACC, TMP):
        e("s_nop 7"); e("s_nop 3")
        e(f"v_add_u32 v{TMP+24}, s52, v2")
        for h in range(2):
            for j in range(1, 4):
                for q in range(2):
                    r = ACC + 16 * j + 8 * h + 4 * q
                    e(f"ds_write_b128 v{2+j}, v[{r}:{r+3}] offset:{q*1024}")
            sync()
            for i in range(6):
                e(f"ds_read_b128 v[{TMP+4*i}:{TMP+4*i+3}], v{TMP+24} offset:{i*1024}")
            if h == 0:
                sync()
            else:
                e("s_waitcnt lgkmcnt(0)")
            for j in range(3):
                for r in range(8):
                    e(f"v_add_f32 v{ACC+8*h+r}, v{ACC+8*h+r}, v{TMP+8*j+r}")

    def xsync(ph, during=None):
        xpub(ph)
        if during: during()
        xwait(ph)

    def xpub(ph):
        e("s_waitcnt vmcnt(0)")
        if ph == 0: lds_signal(a, 12, 6, 7)
        e("s_lshl_b32 s70, s40, 8")
        e(f"s_add_u32 s70, s70, {FLAGS + 128*ph}")
        e("s_lshl_b32 s61, s41, 2")
        e("s_add_u32 s61, s61, s45")
        e("s_lshl_b32 s61, s61, 2")
        e("v_mov_b32 v6, s61")
        e("v_mov_b32 v7, 1")
        e("s_mov_b64 exec, 1")
        e("buffer_store_dword v7, v6, s[32:35], s70 offen sc1")
        e("s_mov_b64 exec, -1")

    def xwait(ph):
        e("v_and_b32 v6, 31, v1")
        e("v_lshlrev_b32 v6, 2, v6")
        e(f"s_mov_b32 s68, {SPIN_MAX}")
        e(f"L_k2_xs{ph}:")
        e("buffer_load_dword v7, v6, s[32:35], s70 offen sc1")
        e("s_waitcnt vmcnt(0)")
        e("v_cmp_eq_u32 vcc, 0, v7")
        e("s_cmp_eq_u64 vcc, 0")
        e(f"s_cbranch_scc1 L_k2_xs{ph}_go")
        e("s_sleep 2")
        e("s_sub_u32 s68, s68, 1")
        e("s_cmp_lg_u32 s68, 0")
        e(f"s_cbranch_scc1 L_k2_xs{ph}")
        e(f"L_k2_xs{ph}_go:")

    ACC, FR, XR = 8, 72, 136
    x_tile(XR, 146)
    e("s_lshl_b32 s61, s64, 8")
    e(f"s_add_u32 s61, s61, {STAT}")
    e("v_lshlrev_b32 v148, 3, v146")
    e("buffer_load_dwordx2 v[144:145], v148, s[32:35], s61 offen")
    e("s_lshl_b32 s60, s45, 3")
    e("s_lshl_b32 s56, s64, 5"); e("s_add_u32 s56, s56, s60"); e("s_lshl_b32 s56, s56, 10"); e(f"s_add_u32 s56, s56, {HOFF}")
    e("s_lshl_b32 s57, s65, 5"); e("s_add_u32 s57, s57, s60"); e("s_lshl_b32 s57, s57, 10"); e(f"s_add_u32 s57, s57, {W2F}")
    signed_stride(53, 50, 32768)
    signed_stride(54, 51, 32768)
    def hook(ny):
        if OLD:
            e(f"s_waitcnt vmcnt({ny + 5})")
            lds_signal(a, 10, 6, 7); lds_signal(a, 11, 6, 7)
            return
        kv(8, 2)
        e(f"s_waitcnt vmcnt({ny + 5 + 4})")
        lds_signal(a, 9, 6, 7)
    def hook_step(j):
        if j == 4 and not OLD: lds_signal(a, 10, 6, 7)
    gemm(a, "w2", 2, 2, 8, 4, ACC, FR, 56, 57, "s53", "s54", pace=pace, hook=hook, hook_step=hook_step)
    if ENV("K2_FINE") == "1": T.stamp()
    if not OLD: kv(16, 4)
    kv(32, 8)
    e("s_mul_i32 s66, s41, 5")
    e("s_min_u32 s60, s41, 3")
    e("s_add_u32 s66, s66, s60")
    e("s_and_b32 s61, s40, 3"); e("s_lshl_b32 s61, s61, 2"); e("s_add_u32 s61, s61, s45")
    e("s_lshl_b32 s62, s66, 5"); e("s_mul_i32 s63, s61, 12"); e("s_add_u32 s62, s62, s63"); e("s_lshl_b32 s62, s62, 10"); e(f"s_add_u32 s62, s62, {W3F}")
    e("v_lshlrev_b32 v6, 7, v1")
    e("buffer_load_dword v149, v6, s[32:35], s62 offen")
    e("s_add_u32 s62, s62, 4096")
    e("buffer_load_dword v149, v6, s[32:35], s62 offen")
    reduce22(ACC, FR)
    if ENV("K2_FINE") == "1": T.stamp()
    if not OLD:
        e("s_waitcnt vmcnt(18)")
        lds_signal(a, 11, 6, 7)
    U = FR
    e("v_mul_f32 v146, v144, v145")
    e("s_mov_b32 s60, 0xffff0000")
    for p in range(8):
        e(f"v_lshlrev_b32 v{U+2*p}, 16, v{XR+p}")
        e(f"v_and_b32 v{U+2*p+1}, s60, v{XR+p}")
    for r in range(16): e(f"v_sub_f32 v{ACC+r}, v{ACC+r}, v146")
    for r in range(16): e(f"v_fmac_f32 v{ACC+r}, v{U+r}, v145")
    for p in range(8): e(f"v_cvt_pk_bf16_f32 v{ACC+16+p}, v{ACC+2*p}, v{ACC+2*p+1}")
    e("s_lshl_b32 s60, s64, 5"); e("s_lshl_b32 s61, s65, 1"); e("s_add_u32 s60, s60, s61"); e("s_lshl_b32 s60, s60, 10"); e(f"s_add_u32 s60, s60, {X1OFF}")
    e(f"buffer_store_dwordx4 v[{ACC+16}:{ACC+19}], v2, s[32:35], s60 offen sc1")
    e(f"buffer_store_dwordx4 v[{ACC+20}:{ACC+23}], v2, s[32:35], s60 offen offset:1024 sc1")
    if ENV("K2_DUP", "0") == "1":
        e(f"buffer_store_dwordx4 v[{ACC+16}:{ACC+19}], v2, s[32:35], s60 offen")
        e(f"buffer_store_dwordx4 v[{ACC+20}:{ACC+23}], v2, s[32:35], s60 offen offset:1024")
    e(f"v_add_f32 v144, v{ACC}, v{ACC+1}")
    e(f"v_mul_f32 v145, v{ACC}, v{ACC}")
    e(f"v_add_f32 v146, v{ACC+2}, v{ACC+3}")
    e(f"v_mul_f32 v147, v{ACC+1}, v{ACC+1}")
    e(f"v_fmac_f32 v145, v{ACC+2}, v{ACC+2}")
    e(f"v_fmac_f32 v147, v{ACC+3}, v{ACC+3}")
    for r in range(4, 16):
        e(f"v_add_f32 v{144 + 2*(r&1)}, v{144 + 2*(r&1)}, v{ACC+r}")
        e(f"v_fmac_f32 v{145 + 2*(r&1)}, v{ACC+r}, v{ACC+r}")
    e("v_add_f32 v144, v144, v146")
    e("v_add_f32 v145, v145, v147")
    e("v_mov_b32 v146, v144")
    e("v_mov_b32 v147, v145")
    e("s_lshl_b32 s60, s64, 4"); e("s_add_u32 s60, s60, s65")
    e("v_permlane32_swap_b32 v144, v146")
    e("v_permlane32_swap_b32 v145, v147")
    e("s_lshl_b32 s60, s60, 8"); e(f"s_add_u32 s60, s60, {X1STAT}")
    e("v_add_f32 v144, v144, v146")
    e("v_add_f32 v145, v145, v147")
    e("s_mov_b32 exec_hi, 0")
    e("buffer_store_dwordx2 v[144:145], v148, s[32:35], s60 offen sc1")
    e("s_mov_b64 exec, -1")
    T.stamp()
    if ENV("K2_STOP") == "1": e("s_endpgm")

    def colsum():
        e("s_mul_i32 s60, s45, 8*1408*4")
        e("s_lshl_b32 s61, s66, 7")
        e("s_add_u32 s60, s60, s61")
        e(f"s_add_u32 s60, s60, {CS3P}")
        e("s_mov_b32 exec_hi, 0xffff")
        for i in range(8):
            e(f"buffer_load_dwordx4 v[{8+4*i}:{11+4*i}], v2, s[32:35], s60 offen")
            if i < 7: e("s_add_u32 s60, s60, 1408*4")
        e(f"v_add_u32 v6, {L_CS}, v2")
        e("s_waitcnt vmcnt(0)")
        for i in range(1, 8):
            for r in range(4): e(f"v_add_f32 v{8+r}, v{8+r}, v{8+4*i+r}")
        for r in range(4): e(f"ds_add_f32 v6, v{8+r} offset:{4*r}")
        e("s_mov_b64 exec, -1")
    xpub(0)
    colsum()

    ACC, FR = 8, 104
    e("s_mul_i32 s61, s51, 3")
    e("s_add_u32 s67, s66, s61")
    e("s_lshl_b32 s60, s50, 4")
    e("s_lshl_b32 s56, s64, 5"); e("s_add_u32 s56, s56, s60"); e("s_lshl_b32 s56, s56, 10"); e(f"s_add_u32 s56, s56, {X1OFF}")
    e("s_lshl_b32 s57, s67, 5"); e("s_add_u32 s57, s57, s60"); e("s_lshl_b32 s57, s57, 10"); e(f"s_add_u32 s57, s57, {W3F}")
    def w0():
        xwait(0); T.stamp()
    BTW = ENV("K2_BTW", "0") == "1"
    if not BTW: w0()
    gemm(a, "w3", 2, 3, 16, 3, ACC, FR, 56, 57, "s53", 32768, sc_act=" sc1", pace=pace, between=w0 if BTW else None)
    if ENV("K2_FINE") == "1": T.stamp()
    if with_w4 and ENV("K2_W4T", "1") == "1":
        e("s_and_b32 s61, s40, 3"); e("s_lshl_b32 s61, s61, 2"); e("s_add_u32 s61, s61, s45")
        e("s_mul_i32 s62, s41, 172"); e("s_mul_i32 s63, s61, 11"); e("s_add_u32 s62, s62, s63"); e("s_lshl_b32 s62, s62, 10"); e(f"s_add_u32 s62, s62, {W4F}")
        e("v_lshlrev_b32 v6, 7, v1")
        e("buffer_load_dword v163, v6, s[32:35], s62 offen")
        e("s_add_u32 s62, s62, 3072")
        e("buffer_load_dword v163, v6, s[32:35], s62 offen")
    e("v_and_b32 v164, 31, v1")
    e("v_lshrrev_b32 v165, 5, v1")
    e("v_lshlrev_b32 v166, 3, v164")
    e("v_lshl_add_u32 v166, v165, 11, v166")
    e("s_lshl_b32 s60, s64, 12")
    e(f"s_add_u32 s60, s60, {X1STAT}")
    SR = FR + 40
    for j in range(8):
        e(f"buffer_load_dwordx2 v[{SR+2*j}:{SR+2*j+1}], v166, s[32:35], s60 offen offset:{256*j} sc1")
    e(f"v_add_u32 v167, s52, v2")
    e("s_nop 3")
    quads = [(i, q) for i in range(3) for q in range(4)]
    for h in range(2):
        for s_, (i, q) in enumerate(quads[6*h:6*h+6]):
            r = ACC + 16 * (2 * i + 1) + 4 * q
            e(f"ds_write_b128 v3, v[{r}:{r+3}] offset:{s_*1024}")
        sync()
        for s_ in range(6):
            e(f"ds_read_b128 v[{FR+4*s_}:{FR+4*s_+3}], v167 offset:{s_*1024}")
        if h == 0: sync()
        else: e("s_waitcnt lgkmcnt(0)")
        for s_, (i, q) in enumerate(quads[6*h:6*h+6]):
            for r in range(4):
                d = ACC + 32 * i + 4 * q + r
                e(f"v_add_f32 v{d}, v{d}, v{FR+4*s_+r}")
    if ENV("K2_FINE") == "1": T.stamp()
    e("s_waitcnt vmcnt(0)")
    for j in range(1, 8):
        e(f"v_add_f32 v{SR}, v{SR}, v{SR+2*j}")
        e(f"v_add_f32 v{SR+1}, v{SR+1}, v{SR+2*j+1}")
    e(f"v_mov_b32 v{SR+2}, v{SR}")
    e(f"v_mov_b32 v{SR+3}, v{SR+1}")
    e("s_mul_i32 s60, s51, 384")
    e(f"s_add_u32 s60, s60, {L_CS}")
    e(f"v_permlane32_swap_b32 v{SR}, v{SR+2}")
    e(f"v_permlane32_swap_b32 v{SR+1}, v{SR+3}")
    e("v_lshl_add_u32 v166, v165, 4, s60")
    e(f"v_add_f32 v{SR}, v{SR}, v{SR+2}")
    e(f"v_add_f32 v{SR+1}, v{SR+1}, v{SR+3}")
    NMU, C1, C2, IA = SR + 4, SR + 5, SR + 6, SR + 7
    e(f"v_mul_f32 v{NMU}, {f32(-1/512)}, v{SR}")
    e(f"v_mul_f32 v{SR+1}, {f32(1/512)}, v{SR+1}")
    e(f"v_fma_f32 v{SR+1}, -v{NMU}, v{NMU}, v{SR+1}")
    e(f"v_max_f32 v{SR+1}, 0, v{SR+1}")
    e(f"v_add_f32 v{SR+1}, {f32(EPS)}, v{SR+1}")
    e(f"v_rsq_f32 v{SR}, v{SR+1}")
    e("s_mul_i32 s62, s64, 86")
    e(f"v_mul_f32 v{IA}, v{SR+1}, v{SR}")
    e(f"v_mul_f32 v{C1}, {f32(GELU_K1)}, v{SR}")
    e(f"v_mul_f32 v{C2}, v{SR}, v{SR}")
    e(f"v_mul_f32 v{C2}, v{C2}, v{SR}")
    e(f"v_mul_f32 v{C2}, {f32(GELU_K2)}, v{C2}")
    e("s_lshl_b32 s63, s67, 1"); e("s_add_u32 s62, s62, s63"); e("s_lshl_b32 s62, s62, 10"); e(f"s_add_u32 s62, s62, {GOFF}")
    e("s_cmp_ge_u32 s41, 3")
    e("s_cselect_b32 s63, s51, 0")
    for i in range(3):
        Z = ACC + 32 * i; Tm = Z + 16
        if i == 2:
            e("s_cmp_eq_u32 s63, 1")
            e("s_cbranch_scc1 L_k2_w3_done")
        for g in range(4):
            e(f"ds_read_b128 v[{FR+4*g}:{FR+4*g+3}], v166 offset:{128*i + 32*g}")
        e("s_waitcnt lgkmcnt(0)")
        R = range(16)
        for r in R: e(f"v_fmac_f32 v{Z+r}, v{NMU}, v{FR+r}")
        for r in R: e(f"v_mul_f32 v{Tm+r}, v{Z+r}, v{Z+r}")
        for r in R: e(f"v_fma_f32 v{Tm+r}, v{Tm+r}, v{C2}, v{C1}")
        for r in R: e(f"v_mul_f32 v{Tm+r}, v{Tm+r}, v{Z+r}")
        for r in R: e(f"v_exp_f32 v{Tm+r}, v{Tm+r}")
        for r in R: e(f"v_fma_f32 v{Tm+r}, v{Tm+r}, v{IA}, v{IA}")
        for r in R: e(f"v_rcp_f32 v{Tm+r}, v{Tm+r}")
        for r in R: e(f"v_mul_f32 v{Z+r}, v{Z+r}, v{Tm+r}")
        for p in range(8): e(f"v_cvt_pk_bf16_f32 v{Tm+p}, v{Z+2*p}, v{Z+2*p+1}")
        sc = " sc1" if with_w4 else ""
        e(f"buffer_store_dwordx4 v[{Tm}:{Tm+3}], v2, s[32:35], s62 offen offset:{(2048*i) % 4096}{sc}")
        e(f"buffer_store_dwordx4 v[{Tm+4}:{Tm+7}], v2, s[32:35], s62 offen offset:{(2048*i) % 4096 + 1024}{sc}")
        if ENV("K2_DUP", "0") == "1":
            e(f"buffer_store_dwordx4 v[{Tm}:{Tm+3}], v2, s[32:35], s62 offen offset:{(2048*i) % 4096}")
            e(f"buffer_store_dwordx4 v[{Tm+4}:{Tm+7}], v2, s[32:35], s62 offen offset:{(2048*i) % 4096 + 1024}")
        if i == 1: e("s_add_u32 s62, s62, 4096")
    e("L_k2_w3_done:")
    T.stamp()
    if not with_w4: return

    xpub(1)
    if not BTW:
        xwait(1); T.stamp()
    ACC, FR, XR, X1R = 8, 72, 136, 144
    x_tile(XR, 152)
    e("s_lshl_b32 s60, s64, 5"); e("s_lshl_b32 s61, s65, 1"); e("s_add_u32 s60, s60, s61"); e("s_lshl_b32 s60, s60, 10"); e(f"s_add_u32 s60, s60, {X1OFF}")
    e(f"buffer_load_dwordx4 v[{X1R}:{X1R+3}], v2, s[32:35], s60 offen sc1")
    e(f"buffer_load_dwordx4 v[{X1R+4}:{X1R+7}], v2, s[32:35], s60 offen offset:1024 sc1")
    e("s_mul_i32 s60, s45, 22")
    e("s_sub_u32 s55, 86, s60")
    e("s_min_u32 s55, s55, 22")
    e("s_mul_i32 s56, s64, 86"); e("s_add_u32 s56, s56, s60"); e("s_lshl_b32 s56, s56, 10"); e(f"s_add_u32 s56, s56, {GOFF}")
    e("s_mul_i32 s57, s65, 86"); e("s_add_u32 s57, s57, s60"); e("s_lshl_b32 s57, s57, 10"); e(f"s_add_u32 s57, s57, {W4F}")
    signed_stride(53, 50, 86 * 1024)
    signed_stride(54, 51, 86 * 1024)
    def w1():
        xwait(1); T.stamp()
    gemm(a, "w4", 2, 2, 22, 4, ACC, FR, 56, 57, "s53", "s54", s_cnt=55, sc_act=" sc1", pace=pace, between=w1 if BTW else None)
    if ENV("K2_FINE") == "1": T.stamp()
    e("s_nop 7"); e("s_nop 3")
    e("s_mov_b32 s60, 0xffff0000")
    for base in (XR, X1R):
        for p in range(8):
            e(f"v_lshlrev_b32 v{FR+2*p}, 16, v{base+p}")
            e(f"v_and_b32 v{FR+2*p+1}, s60, v{base+p}")
        for r in range(16): e(f"v_add_f32 v{ACC+r}, v{ACC+r}, v{FR+r}")
    e("s_lshl_b32 s60, s45, 3")
    e("s_lshl_b32 s56, s64, 5"); e("s_add_u32 s56, s56, s60"); e("s_lshl_b32 s56, s56, 10"); e(f"s_add_u32 s56, s56, {OOFF}")
    e("s_lshl_b32 s57, s65, 5"); e("s_add_u32 s57, s57, s60"); e("s_lshl_b32 s57, s57, 10"); e(f"s_add_u32 s57, s57, {WOF}")
    signed_stride(53, 50, 32768)
    signed_stride(54, 51, 32768)
    e("s_add_u32 s53, s53, s56")
    e("s_add_u32 s54, s54, s57")
    OR_, WR = 72, 136
    def wload(j):
        r = WR + 8 * (j % 4)
        o = 1024 * (j % 4)
        e(f"buffer_load_dwordx4 v[{r}:{r+3}], v2, s[32:35], s57 offen offset:{o}")
        e(f"buffer_load_dwordx4 v[{r+4}:{r+7}], v2, s[32:35], s54 offen offset:{o}")
    for j in range(4): wload(j)
    e("s_add_u32 s57, s57, 4096"); e("s_add_u32 s54, s54, 4096")
    e("s_lshl_b32 s70, s40, 8")
    e("s_lshl_b32 s60, s45, 5")
    e("s_add_u32 s70, s70, s60")
    e(f"s_add_u32 s70, s70, {OFLAG}")
    e("v_and_b32 v6, 7, v1")
    e("v_lshlrev_b32 v6, 2, v6")
    e("v_bfe_u32 v7, v1, 3, 1")
    e("v_lshl_add_u32 v6, v7, 7, v6")
    e(f"s_mov_b32 s68, {SPIN_MAX}")
    e("s_setprio 0")
    e("L_k2_ow:")
    e("buffer_load_dword v7, v6, s[32:35], s70 offen sc1")
    e("s_waitcnt vmcnt(0)")
    e("v_cmp_eq_u32 vcc, 0, v7")
    e("s_cmp_eq_u64 vcc, 0")
    e("s_cbranch_scc1 L_k2_ow_go")
    e("s_sleep 2")
    e("s_sub_u32 s68, s68, 1")
    e("s_cmp_lg_u32 s68, 0")
    e("s_cbranch_scc1 L_k2_ow")
    e("L_k2_ow_go:")
    e("s_setprio 3")
    if ENV("K2_FINE") == "1": T.stamp()
    for j in range(8):
        if j == 4: e("s_add_u32 s56, s56, 4096"); e("s_add_u32 s53, s53, 4096")
        r = OR_ + 8 * j
        e(f"buffer_load_dwordx4 v[{r}:{r+3}], v2, s[32:35], s56 offen offset:{1024*(j%4)} sc1")
        e(f"buffer_load_dwordx4 v[{r+4}:{r+7}], v2, s[32:35], s53 offen offset:{1024*(j%4)} sc1")
    lds_wait(a, "ad", 13, 8, 6, 7, 68, 69)
    for j in range(1, 4):
        e(f"s_xor_b32 s60, s45, {j}")
        e("s_mul_i32 s60, s60, 12288")
        e(f"s_add_u32 s60, s60, {(j-1)*4096}")
        e(f"v_add_u32 v{2+j}, s60, v2")
    for j in range(8):
        if j < 4: e(f"s_waitcnt vmcnt({2*(7-j) + 2*j})")
        else: e(f"s_waitcnt vmcnt({2*(7-j)})")
        w = WR + 8 * (j % 4); o = OR_ + 8 * j
        for i in range(2):
            for t in range(2):
                d = ACC + 16 * (2 * i + t)
                e(f"v_mfma_f32_32x32x16_bf16 v[{d}:{d+15}], v[{w+4*i}:{w+4*i+3}], v[{o+4*t}:{o+4*t+3}], v[{d}:{d+15}]")
        if j < 4: wload(j + 4)
    e("s_mul_i32 s60, s45, 12288")
    e("v_add_u32 v136, s60, v2")
    e("v_and_b32 v152, 31, v1")
    e("v_lshrrev_b32 v153, 5, v1")
    e("v_lshlrev_b32 v154, 10, v152")
    e("v_lshl_add_u32 v154, v153, 4, v154")
    e("s_nop 7")
    for j in range(1, 4):
        for q in range(4):
            r = ACC + 16 * j + 4 * q
            e(f"ds_write_b128 v{2+j}, v[{r}:{r+3}] offset:{q*1024}")
    sync()
    for i in range(12):
        e(f"ds_read_b128 v[{FR+4*i}:{FR+4*i+3}], v136 offset:{i*1024}")
    for j in range(3):
        e(f"s_waitcnt lgkmcnt({8-4*j})")
        for r in range(16): e(f"v_add_f32 v{ACC+r}, v{ACC+r}, v{FR+16*j+r}")
    for p in range(8): e(f"v_cvt_pk_bf16_f32 v{FR+p}, v{ACC+2*p}, v{ACC+2*p+1}")
    e("s_lshl_b32 s60, s64, 15")
    e("s_lshl_b32 s61, s65, 6")
    e(f"v_permlane32_swap_b32 v{FR}, v{FR+2}")
    e(f"v_permlane32_swap_b32 v{FR+1}, v{FR+3}")
    e(f"v_permlane32_swap_b32 v{FR+4}, v{FR+6}")
    e(f"v_permlane32_swap_b32 v{FR+5}, v{FR+7}")
    e("s_add_u32 s60, s60, s61")
    e(f"buffer_store_dwordx4 v[{FR}:{FR+3}], v154, s[28:31], s60 offen")
    e(f"buffer_store_dwordx4 v[{FR+4}:{FR+7}], v154, s[28:31], s60 offen offset:32")
    T.stamp()


def gen_k2(with_w4=True):
    a = Asm("k2"); e = a.e
    T = Stamper(a, 72, 1)
    T.stamp()
    e("s_cmp_ge_u32 s2, 256")
    e("s_cbranch_scc1 L_k2_exit")
    e("s_load_dwordx2 s[4:5], s[0:1], 0")
    e("s_load_dwordx2 s[6:7], s[0:1], 64")
    e("s_load_dwordx2 s[20:21], s[0:1], 80")
    e("v_lshrrev_b32 v1, 6, v0")
    e("s_and_b32 s54, s2, 7")
    e("v_readfirstlane_b32 s44, v1")
    e("v_and_b32 v1, 63, v0")
    e("v_lshlrev_b32 v2, 4, v1")
    e("s_lshl_b32 s40, s54, 2")
    e("s_bfe_u32 s54, s2, 0x20003")
    e("s_add_u32 s40, s40, s54")
    e("s_lshr_b32 s41, s2, 5")
    e("s_mov_b32 s45, s44")
    for r in range(4, 8): e(f"v_mov_b32 v{r}, 0")
    e(f"v_add_u32 v3, {L_CS}, v2")
    e("ds_write_b128 v3, v[4:7]")
    e("s_waitcnt lgkmcnt(0)")
    e("s_barrier")
    a.srd(32, 20, WS_USED)
    e("s_cmp_ge_u32 s44, 8")
    e("s_cbranch_scc1 L_k2_b")
    if ENV("K2_NOA") == "1":
        e("s_endpgm")
    attn_wave(a, T)
    T.stamp()
    T.dump(32, 44, 12, 4, 5)
    e("s_endpgm")
    e("L_k2_b:")
    b_waves(a, T, with_w4)
    T.dump(32, 44, 12, 4, 5)
    e("L_k2_exit:")
    e("s_endpgm")
    return a.kernel(vgpr=168, sgpr=96)
```

```python
from common import *

L_CS = 131072
L_ST = L_CS + 512
L_PR = L_ST + 2048
PR_PITCH = 1088
K1_LDS = L_PR + 16 * PR_PITCH


ST = os.environ.get('K1_ST', '')


def gen_k1():
    a = Asm("k1")
    e = a.e
    L_exit = "L_k1_exit"
    T = Stamper(a, 78, 0)
    T.stamp()
    e("s_cmp_ge_u32 s2, 256")
    e(f"s_cbranch_scc1 {L_exit}")
    e("s_load_dwordx4 s[4:7], s[0:1], 0")
    e("s_load_dwordx4 s[8:11], s[0:1], 16")
    e("s_load_dwordx4 s[12:15], s[0:1], 32")
    e("s_load_dwordx4 s[16:19], s[0:1], 48")
    e("s_load_dwordx2 s[20:21], s[0:1], 80")
    e("v_lshrrev_b32 v1, 6, v0")
    e("s_and_b32 s54, s2, 7")
    e("v_readfirstlane_b32 s42, v1")
    e("v_and_b32 v1, 63, v0")
    e("s_lshr_b32 s55, s2, 3")
    e("s_lshr_b32 s40, s54, 1")
    e("s_lshl_b32 s40, s40, 2")
    e("s_and_b32 s56, s55, 3")
    e("s_add_u32 s40, s40, s56")
    e("s_and_b32 s41, s54, 1")
    e("s_lshl_b32 s41, s41, 3")
    e("s_lshr_b32 s56, s55, 2")
    e("s_add_u32 s41, s41, s56")
    e("s_and_b32 s45, s42, 3")
    e("s_cmp_lt_u32 s42, 4")
    e("s_cbranch_scc1 L_k1_compute")
    e("s_cmp_ge_u32 s42, 8")
    e("s_cbranch_scc1 L_k1_stat")

    def prep_decode(tag):
        Lp = {k: f"L_k1_{tag}{k}" for k in ("w2", "wo", "w4", "w3", "go")}
        e("s_mov_b32 s62, 0"); e("s_mov_b32 s61, 32"); e("s_mov_b32 s63, 1024"); e("s_mov_b32 s59, 16"); e("s_mov_b32 s73, 0")
        e(f"s_mov_b32 s38, {512*1024}")
        e("s_mov_b32 s56, s2")
        e("s_cmp_lt_u32 s2, 32");  e(f"s_cbranch_scc1 {Lp['w2']}")
        e("s_cmp_lt_u32 s2, 64");  e(f"s_cbranch_scc1 {Lp['wo']}")
        e("s_cmp_lt_u32 s2, 150"); e(f"s_cbranch_scc1 {Lp['w4']}")
        e("s_cmp_lt_u32 s2, 246"); e(f"s_cbranch_scc1 {Lp['w3']}")
        e("s_mov_b32 s38, 0"); e("s_mov_b32 s59, 0"); e("s_mov_b32 s56, 0")
        e(f"{Lp['w2']}:")
        e("s_mov_b32 s36, s14"); e("s_mov_b32 s37, s15"); e(f"s_mov_b32 s60, {W2F}")
        e(f"s_branch {Lp['go']}")
        e(f"{Lp['wo']}:")
        e("s_mov_b32 s36, s8"); e("s_mov_b32 s37, s9"); e(f"s_mov_b32 s60, {WOF}")
        e("s_sub_u32 s56, s2, 32"); e("s_mov_b32 s73, 1")
        e(f"s_branch {Lp['go']}")
        e(f"{Lp['w4']}:")
        e("s_mov_b32 s36, s18"); e("s_mov_b32 s37, s19"); e(f"s_mov_b32 s38, {1376*1024}")
        e("s_sub_u32 s56, s2, 64"); e(f"s_mov_b32 s60, {W4F}"); e("s_mov_b32 s61, 86")
        e(f"s_branch {Lp['go']}")
        e(f"{Lp['w3']}:")
        e("s_mov_b32 s36, s16"); e("s_mov_b32 s37, s17"); e(f"s_mov_b32 s38, {512*2752}")
        e("s_sub_u32 s56, s2, 150")
        e("s_lshr_b32 s62, s56, 5")
        e("s_and_b32 s56, s56, 31")
        e(f"s_mov_b32 s60, {W3F}"); e("s_mov_b32 s63, 2752")
        e("s_cmp_eq_u32 s62, 2")
        e("s_cselect_b32 s59, 11, 16")
        e(f"{Lp['go']}:")

    e("s_lshl_b32 s54, s40, 7")
    e("s_lshl_b32 s55, s45, 5")
    e("s_add_u32 s54, s54, s55")
    e("v_lshrrev_b32 v56, 3, v1")
    e("v_add_u32 v56, s54, v56")
    e("v_lshlrev_b32 v56, 10, v56")
    e("v_lshrrev_b32 v57, 4, v1")
    e("v_and_b32 v58, 7, v1")
    e("v_xor_b32 v59, v58, v57")
    e("v_xor_b32 v60, 4, v59")
    e("v_lshl_add_u32 v2, v59, 4, v56")
    e("v_lshl_add_u32 v3, v60, 4, v56")
    e(f"v_add_u32 v4, {2*8192 - 2048}, v2")
    e(f"v_add_u32 v5, {3*8192 - 3072}, v3")
    e(f"v_add_u32 v3, {8192 - 1024}, v3")
    e("s_lshr_b32 s46, s45, 1")
    e("s_lshl_b32 s44, s41, 1")
    e("s_sub_u32 s44, s44, 8")
    e("s_add_u32 s44, s44, s46")
    e("s_cmp_lt_u32 s41, 8")
    e("s_cselect_b32 s44, s41, s44")
    e("s_cselect_b32 s54, s46, 0")
    e(f"s_mov_b32 s30, {512*3072}")
    e("s_mov_b32 s43, 3072")
    e("s_cmp_eq_u32 s54, 1")
    e(f"s_cselect_b32 s30, {512*1024}, s30")
    e("s_cselect_b32 s43, 1024, s43")
    e("s_waitcnt lgkmcnt(0)")
    e("s_cselect_b32 s28, s12, s6")
    e("s_cselect_b32 s29, s13, s7")
    e("s_and_b32 s29, s29, 0xffff")
    e("s_mov_b32 s31, 0x00020000")
    a.srd(24, 4, 2048 * 1024)
    e("s_lshl_b32 s44, s44, 7")
    e("s_lshl_b32 s53, s43, 6")
    e("v_lshrrev_b32 v58, 3, v1")
    e("v_mul_lo_u32 v58, v58, s43")
    e("v_and_b32 v59, 7, v1")
    e("v_bfe_u32 v60, v1, 4, 1")
    e("v_lshlrev_b32 v60, 2, v60")
    e("v_xor_b32 v59, v59, v60")
    e("v_lshl_add_u32 v58, v59, 4, v58")
    e("v_add_u32 v6, s44, v58")
    e("s_and_b32 s54, s45, 1")
    e("s_lshl_b32 s54, s54, 5")
    e("s_mul_i32 s48, s54, s43")
    e("s_lshl_b32 s54, s43, 3")
    e("s_sub_u32 s54, s54, 1024")
    e("s_add_u32 s49, s48, s54")
    e("s_add_u32 s50, s49, s54")
    e("s_add_u32 s51, s50, s54")
    e("s_mov_b32 s52, 0")
    e("s_lshl_b32 s47, s45, 12")

    def issue_stage(st):
        b = st % 4
        if os.environ.get("K1_NOLOAD") == "1": return
        e(f"s_add_u32 m0, s47, {b*16384}")
        e("s_nop 0")
        for u in range(4):
            e(f"buffer_load_dwordx4 v{2+u}, s[24:27], s52 offen offset:{1024*u} lds")
        e(f"s_add_u32 m0, s47, {65536 + b*16384}")
        e("s_add_u32 s52, s52, 128")
        for u in range(4):
            e(f"buffer_load_dwordx4 v6, s[28:31], s{48+u} offen offset:{1024*u} lds")
        for u in range(4):
            e(f"s_add_u32 s{48+u}, s{48+u}, s53")

    def prep_loads():
        prep_decode("l")
        e("s_and_b32 s37, s37, 0xffff")
        e("s_mov_b32 s39, 0x00020000")
        e("s_lshl_b32 s54, s56, 4")
        e("s_lshl_b32 s55, s45, 2")
        e("s_add_u32 s54, s54, s55")
        e("s_mul_i32 s54, s54, s63")
        e("s_lshl_b32 s55, s62, 10")
        e("s_add_u32 s54, s54, s55")
        e(f"s_mul_i32 s55, s45, {4*PR_PITCH}")
        e(f"s_add_u32 s55, s55, {L_PR}")
        e("v_lshlrev_b32 v56, 4, v1")
        for u in range(4):
            e(f"s_add_u32 m0, s55, {u*PR_PITCH}")
            e("s_nop 0")
            e(f"buffer_load_dwordx4 v56, s[36:39], s54 offen lds")
            e("s_add_u32 s54, s54, s63")

    def wb(n):
        e(f"s_waitcnt vmcnt({n})")
        e("s_barrier")

    issue_stage(0); issue_stage(1)
    T.stamp()
    wb(8)
    T.stamp()
    issue_stage(2); issue_stage(3)
    wb(16)
    issue_stage(4); prep_loads()
    wb(20)
    issue_stage(5)
    wb(20)
    issue_stage(6)
    wb(20)
    T.stamp()
    issue_stage(7)
    wb(16)
    wb(8)
    wb(0)
    T.stamp()
    if STAMP:
        a.srd(32, 20, WS_USED)
        T.dump(32, 42, 8, 60, 61)
    e("s_endpgm")

    e("L_k1_stat:")
    e("v_and_b32 v56, 31, v1")
    e("v_lshrrev_b32 v57, 5, v1")
    e("s_lshl_b32 s54, s45, 5")
    e("v_add_u32 v56, s54, v56")
    e("v_lshlrev_b32 v56, 7, v56")
    e("v_bfe_u32 v58, v1, 1, 3")
    e("v_xor_b32 v58, v57, v58")
    for ks in range(4):
        e(f"v_xor_b32 v59, {2*ks}, v58")
        e(f"v_lshl_add_u32 v{8+ks}, v59, 4, v56")
    for r in range(12, 16): e(f"v_mov_b32 v{r}, 0")
    e("s_mov_b32 s72, 0xffff0000")
    e("s_mov_b32 s71, 0xffff")
    e("s_waitcnt lgkmcnt(0)")
    a.srd(32, 20, WS_USED)
    if os.environ.get("CODE_WARM", "1") == "1":
        e("s_getpc_b64 s[66:67]")
        e("L_k1_pc:")
        e("s_sub_u32 s66, s66, L_k1_pc-k1_kernel")
        e("s_subb_u32 s67, s67, 0")
        e("s_lshl_b32 s54, s45, 13")
        e("v_lshlrev_b32 v58, 7, v1")
        e("v_add_u32 v58, s54, v58")
        e("v_mov_b32 v59, L_code_end-k1_kernel-4")
        e("v_min_u32 v58, v58, v59")
        e("v_mov_b32 v59, s67")
        e("v_add_co_u32 v58, vcc, s66, v58")
        e("v_addc_co_u32 v59, vcc, 0, v59, vcc")
        e("global_load_dword v92, v[58:59], off")
    e("s_cmp_ge_u32 s2, 64")
    e("s_cbranch_scc1 L_k1_noflag")
    e("s_cmp_lg_u32 s45, 0")
    e("s_cbranch_scc1 L_k1_noflag")
    e("s_lshl_b32 s54, s2, 8")
    e(f"s_add_u32 s54, s54, {FLAGS}")
    e("v_lshlrev_b32 v58, 2, v1")
    e("buffer_store_dword v12, v58, s[32:35], s54 offen")
    e("L_k1_noflag:")
    prep_decode("s")
    e("s_add_u32 s54, s73, 2")
    e("v_lshlrev_b32 v56, s54, v57")
    e("v_bfe_u32 v58, v1, 2, 2")
    e("v_add_u32 v56, v56, v58")
    e(f"v_mul_u32_u24 v56, {PR_PITCH}, v56")
    e("v_and_b32 v58, 3, v1")
    e("v_lshl_add_u32 v56, v58, 3, v56")
    e("v_bfe_u32 v58, v1, 4, 1")
    e("v_lshl_add_u32 v56, v58, 5, v56")
    e("s_lshl_b32 s54, s45, 8")
    e(f"s_add_u32 s54, s54, {L_PR}")
    e("v_add_u32 v2, s54, v56")
    e(f"s_mov_b32 s54, {8*PR_PITCH}")
    e("s_cmp_eq_u32 s73, 1")
    e(f"s_cselect_b32 s54, {4*PR_PITCH}, s54")
    e("v_add_u32 v3, s54, v2")
    e("v_lshlrev_b32 v4, 4, v1")
    e("s_lshl_b32 s54, s62, 4")
    e("s_lshl_b32 s55, s45, 2")
    e("s_add_u32 s54, s54, s55")
    e("s_mul_i32 s54, s54, s61")
    e("s_add_u32 s54, s54, s56")
    e("s_lshl_b32 s54, s54, 10")
    e("s_add_u32 s60, s60, s54")
    e("s_lshl_b32 s61, s61, 10")
    e("s_sub_i32 s59, s59, s55")
    e("v_bfe_u32 v58, v1, 4, 1")
    e("v_xor_b32 v59, v58, v1")
    e("v_and_b32 v59, 1, v59")
    e("v_cmp_eq_u32 vcc, 0, v59")
    e("v_mov_b32 v59, 0x3f803f80")
    e("v_cmp_eq_u32 s[76:77], 1, v58")
    e("v_cndmask_b32 v72, 0, v59, vcc")
    e("v_mov_b32 v73, v72"); e("v_mov_b32 v74, v72"); e("v_mov_b32 v75, v72")
    e("v_and_b32 v5, 31, v1")
    e("v_lshlrev_b32 v5, 2, v5")
    e("s_mul_i32 s64, s56, 1408*4")
    e("s_lshl_b32 s54, s62, 11")
    e("s_add_u32 s64, s64, s54")
    e("s_lshl_b32 s54, s45, 9")
    e("s_add_u32 s64, s64, s54")
    e(f"s_add_u32 s64, s64, {CS3P}")
    e("s_mov_b32 s70, 0")
    for r in range(40, 56): e(f"v_mov_b32 v{r}, 0")
    def process(b):
        if os.environ.get("K1_NOSTAT") == "1": return
        for d in range(16):
            t = 32 + 2 * (d & 3)
            e(f"v_lshlrev_b32 v{t}, 16, v{b+d}")
            e(f"v_and_b32 v{t+1}, s72, v{b+d}")
            if d >= 1:
                t2 = 32 + 2 * ((d - 1) & 3)
                e(f"v_fmac_f32 v{12 + 2*(d&1)}, v{t2}, v{t2}")
                e(f"v_fmac_f32 v{13 + 2*(d&1)}, v{t2+1}, v{t2+1}")
        e("v_fmac_f32 v12, v38, v38")
        e("v_fmac_f32 v13, v39, v39")
    e("L_k1_sloop:")
    for half, (cur, prev) in enumerate(((16, 40), (40, 16))):
        e("s_barrier")
        for ks in range(4):
            e(f"ds_read_b128 v[{cur+4*ks}:{cur+3+4*ks}], v{8+ks} offset:{16384*half}")
        if half == 1:
            e("s_cmp_lg_u32 s70, 2")
            e("s_cbranch_scc1 L_k1_snoprep")
            for i in range(4):
                e(f"ds_read_b64_tr_b16 v[{56+4*i}:{57+4*i}], v2 offset:{64*i}")
                e(f"ds_read_b64_tr_b16 v[{58+4*i}:{59+4*i}], v3 offset:{64*i}")
            e("s_waitcnt lgkmcnt(0)")
            e("s_cmp_lg_u32 s63, 2752")
            e("s_cbranch_scc1 L_k1_snocs")
            for i in range(4):
                e(f"v_mfma_f32_16x16x32_bf16 v[{76+4*i}:{79+4*i}], v[72:75], v[{56+4*i}:{59+4*i}], 0")
            e("s_nop 7")
            for i in range(4):
                e(f"v_cndmask_b32 v{76+4*i}, v{76+4*i}, v{77+4*i}, s[76:77]")
            for i in range(4):
                e(f"s_cmp_le_i32 s59, {i}")
                e("s_cbranch_scc1 L_k1_snocs")
                e(f"buffer_store_dword v{76+4*i}, v5, s[32:35], s64 offen offset:{128*i} sc1")
            e("L_k1_snocs:")
            for i in range(4):
                e(f"s_cmp_le_i32 s59, {i}")
                e("s_cbranch_scc1 L_k1_snoprep")
                e(f"buffer_store_dwordx4 v[{56+4*i}:{59+4*i}], v4, s[32:35], s60 offen sc1")
                e("s_add_u32 s60, s60, s61")
            e("L_k1_snoprep:")
            for r in range(8, 12):
                e(f"v_xor_b32 v{r}, 0x8000, v{r}")
        process(prev)
        e("s_waitcnt lgkmcnt(0)")
    e("s_add_u32 s70, s70, 1")
    e("s_cmp_lt_u32 s70, 4")
    e("s_cbranch_scc1 L_k1_sloop")
    process(40)
    e("v_add_f32 v12, v12, v13")
    e("v_add_f32 v14, v14, v15")
    e("s_lshl_b32 s54, s45, 9")
    e(f"s_add_u32 s54, s54, {L_ST}")
    e("v_lshl_add_u32 v56, v1, 2, s54")
    e("v_add_f32 v12, v12, v14")
    e("ds_write_b32 v56, v12 offset:256")
    e("s_waitcnt lgkmcnt(0)")
    e("s_barrier")
    e("s_endpgm")

    e("L_k1_compute:")
    e("v_and_b32 v8, 31, v1")
    e("v_lshrrev_b32 v9, 5, v1")
    e("s_lshl_b32 s54, s45, 5")
    e("v_add_u32 v10, s54, v8")
    e("v_lshlrev_b32 v10, 7, v10")
    e("v_bfe_u32 v11, v1, 1, 3")
    e("v_xor_b32 v11, v9, v11")
    for ks in range(4):
        e(f"v_xor_b32 v12, {2*ks}, v11")
        e(f"v_lshl_add_u32 v{2+ks}, v12, 4, v10")
    e("v_bfe_u32 v10, v1, 2, 2")
    e("v_lshl_add_u32 v10, v9, 3, v10")
    e("v_lshlrev_b32 v10, 7, v10")
    e("v_and_b32 v11, 3, v1")
    e("v_lshl_add_u32 v10, v11, 3, v10")
    e("v_bfe_u32 v11, v1, 3, 1")
    e("v_lshl_add_u32 v10, v11, 6, v10")
    e("v_bfe_u32 v11, v1, 4, 1")
    e("v_lshl_add_u32 v10, v11, 5, v10")
    e("v_add_u32 v6, 65536, v10")
    e("v_xor_b32 v16, 64, v6")
    e("v_xor_b32 v10, v11, v1")
    e("v_and_b32 v10, 1, v10")
    e("v_cmp_eq_u32 vcc, 0, v10")
    e("v_mov_b32 v10, 0x3f803f80")
    e("v_cmp_eq_u32 s[76:77], 1, v11")
    e("v_cndmask_b32 v12, 0, v10, vcc")
    e("v_mov_b32 v13, v12")
    e("v_mov_b32 v14, v12")
    e("v_mov_b32 v15, v12")
    e("s_lshr_b32 s54, s45, 1")
    e("s_lshl_b32 s54, s54, 13")
    e("s_and_b32 s55, s45, 1")
    e("s_lshl_b32 s55, s55, 6")
    e("v_xor_b32 v7, s55, v6")
    e("v_add_u32 v7, s54, v7")
    e("s_mov_b32 s73, 0xffff")
    e("s_mov_b32 s74, 0x10000")
    e("s_waitcnt lgkmcnt(0)")
    a.srd(32, 20, WS_USED)

    def X(s): return 32 + 24 * s
    def W(s, j): return 36 + 24 * s + 4 * j
    def ACC(j): return 96 + 16 * j

    def reads(ks, s):
        R = [f"ds_read_b128 v[{X(s)}:{X(s)+3}], v{2+ks}"]
        for j in range(4):
            for t in range(2):
                R.append(f"ds_read_b64_tr_b16 v[{W(s,j)+2*t}:{W(s,j)+2*t+1}], v{16 if j&1 else 6} offset:{(j>>1)*8192 + (16*ks+4*t)*128}")
        for t in range(2):
            R.append(f"ds_read_b64_tr_b16 v[{W(s,4)+2*t}:{W(s,4)+2*t+1}], v7 offset:{(16*ks+4*t)*128}")
        return R

    def updx(r):
        return [f"v_add_u32 v{r}, 16384, v{r}", f"v_and_b32 v{r}, s73, v{r}"]
    def updw(r):
        return [f"v_add_u32 v{r}, 16384, v{r}", f"v_and_b32 v{r}, s73, v{r}", f"v_or_b32 v{r}, s74, v{r}"]

    for r in list(range(24, 32)) + list(range(96, 160)):
        e(f"v_mov_b32 v{r}, 0")
    T.n = 1
    T.stamp()
    e("s_barrier")
    T.stamp()
    for r in reads(0, 0): e(r)
    for v in updx(2): e(v)
    e("s_mov_b32 s70, 8")
    e("L_k1_loop:")
    s = 0
    for ks in range(4):
        R = reads((ks + 1) % 4, 1 - s)
        M = [f"v_mfma_f32_32x32x16_bf16 v[{ACC(j)}:{ACC(j)+15}], v[{W(s,j)}:{W(s,j)+3}], v[{X(s)}:{X(s)+3}], v[{ACC(j)}:{ACC(j)+15}]" for j in range(4)]
        M.append(f"v_mfma_f32_16x16x32_bf16 v[28:31], v[12:15], v[{X(s)}:{X(s)+3}], v[28:31]")
        M.append(f"v_mfma_f32_16x16x32_bf16 v[24:27], v[12:15], v[{W(s,4)}:{W(s,4)+3}], v[24:27]")
        if os.environ.get("K1_NOMFMA") == "1": M[:4] = ["s_nop 0"]*4
        if os.environ.get("K1_NOREAD") == "1": R = [""]*11
        if os.environ.get("K1_NOM16") == "1": M[4:] = ["", ""]
        if ks < 3:
            e("s_waitcnt lgkmcnt(8)")
            e(M[0])
            for r in R[0:4]: e(r)
            e("s_waitcnt lgkmcnt(10)")
            e(M[1])
            for r in R[4:8]: e(r)
            e("s_waitcnt lgkmcnt(12)")
            e(M[2])
            for r in R[8:11]: e(r)
            e("s_waitcnt lgkmcnt(13)")
            e(M[3])
            for v in updx(2 + ks + 1): e(v)
            if ks == 2:
                for v in updw(6): e(v)
            e(M[4])
            e("s_waitcnt lgkmcnt(11)")
            if ks == 2:
                for v in updw(16): e(v)
            e(M[5])
            if ks == 2:
                for v in updw(7): e(v)
        else:
            e("s_waitcnt lgkmcnt(8)")
            e(M[0])
            e("s_sub_u32 s70, s70, 1")
            e("s_waitcnt lgkmcnt(6)")
            e(M[1])
            e("s_waitcnt lgkmcnt(0)")
            e("s_cmp_eq_u32 s70, 0")
            e("s_cbranch_scc1 L_k1_nobar")
            e("s_barrier")
            e("L_k1_nobar:")
            for r in R[0:3]: e(r)
            e(M[2])
            for r in R[3:7]: e(r)
            e(M[3])
            for r in R[7:11]: e(r)
            e(M[4])
            for v in updx(2): e(v)
            e(M[5])
        s = 1 - s
    e("s_cmp_lg_u32 s70, 0")
    e("s_cbranch_scc1 L_k1_loop")
    T.stamp()

    e("s_lshl_b32 s54, s45, 7")
    e(f"s_add_u32 s54, s54, {L_CS}")
    e("v_lshl_add_u32 v7, v8, 2, s54")
    e("s_lshl_b32 s54, s45, 9")
    e(f"s_add_u32 s54, s54, {L_ST}")
    e("v_lshl_add_u32 v6, v8, 2, s54")
    e("s_lshl_b32 s58, s40, 2")
    e("s_add_u32 s58, s58, s45")
    e("s_nop 2")
    e("v_cndmask_b32 v24, v24, v25, s[76:77]")
    e("ds_write_b32 v7, v24")
    e("v_cndmask_b32 v24, v28, v29, s[76:77]")
    e("v_lshlrev_b32 v20, 4, v1")
    e("v_lshlrev_b32 v21, 5, v8")
    e("v_lshl_add_u32 v21, v9, 4, v21")
    e("s_lshr_b32 s57, s41, 1")
    e("s_lshr_b32 s54, s57, 1")
    e("s_add_u32 s54, s54, 1")
    e("s_sub_u32 s55, 0, s54")
    e("s_bitcmp1_b32 s57, 0")
    e("s_cselect_b32 s54, s55, s54")
    e("s_lshl_b32 s55, s58, 5")
    e("s_add_u32 s55, s55, s54")
    e("v_add_u32 v22, s55, v8")
    e("v_cmp_gt_u32 vcc, 2048, v22")
    e("v_and_b32 v22, 2047, v22")
    e("v_lshrrev_b32 v23, 5, v22")
    e("v_lshlrev_b32 v23, 15, v23")
    e("v_and_b32 v22, 31, v22")
    e("v_lshl_add_u32 v23, v22, 4, v23")
    e("v_lshl_add_u32 v23, v9, 9, v23")
    e("v_cndmask_b32 v22, 0, 1.0, vcc")
    e(f"v_lshlrev_b32 v7, 4, v9")
    e(f"v_add_u32 v7, {L_CS}, v7")
    e("s_waitcnt lgkmcnt(0)")
    T.stamp()
    e("s_barrier")
    T.stamp()
    e("ds_read_b32 v16, v6 offset:256")
    e("ds_read_b32 v17, v6 offset:384")
    for j in range(4):
        for g in range(4):
            if j == 3 and g == 1: e("s_waitcnt lgkmcnt(13)")
            e(f"ds_read_b128 v[{32+16*j+4*g}:{35+16*j+4*g}], v7 offset:{128*j+32*g}")
    e("v_add_f32 v16, v16, v17")
    e(f"v_mul_f32 v24, {f32(1.0/512)}, v24")
    e(f"v_mul_f32 v16, {f32(1.0/512)}, v16")
    e("v_fma_f32 v16, -v24, v24, v16")
    e("v_max_f32 v16, 0, v16")
    e(f"v_add_f32 v17, {f32(EPS)}, v16")
    e("v_rsq_f32 v25, v17")
    e(f"v_mov_b32 v19, {f32(EPS)}")
    e("v_mul_f32 v18, v25, v25")
    e("v_fma_f32 v18, v18, v16, v19")
    e("v_rsq_f32 v18, v18")
    e("v_mul_f32 v26, v24, v25")
    e("v_sub_f32 v26, 0, v26")
    e("v_mul_f32 v18, v18, v22")
    e("s_cmp_lg_u32 s41, 0")
    e("s_cbranch_scc1 L_k1_nostat")
    e("s_lshl_b32 s54, s58, 8")
    e(f"s_add_u32 s54, s54, {STAT}")
    e("v_lshlrev_b32 v19, 3, v8")
    e("buffer_store_dwordx2 v[24:25], v19, s[32:35], s54 offen")
    e("L_k1_nostat:")
    e("s_lshl_b32 s56, s41, 2")
    e("s_sub_u32 s56, s56, 16")
    e("s_lshl_b32 s54, s41, 1")
    e("s_cmp_lt_u32 s41, 8")
    e("s_cselect_b32 s56, s54, s56")
    e(f"s_mov_b32 s60, {f32(QSCALE)}")
    e(f"s_mov_b32 s62, {f32(GELU_K2)}")
    e(f"s_mov_b32 s63, {f32(GELU_K2)}")
    e(f"v_mov_b32 v16, {f32(GELU_K1)}")
    e("s_waitcnt lgkmcnt(0)")
    OUT = [160, 32, 48, 64]
    def tile(j, ish):
        c = ACC(j)
        if not ish:
            e(f"s_add_u32 s55, s56, {j}")
            e("s_cmp_lt_u32 s55, 16")
            e("s_cselect_b32 s54, s60, 1.0")
            e("v_mul_f32 v28, s54, v25")
            e("v_mul_f32 v30, s54, v26")
            e("s_cmp_ge_u32 s55, 32")
            e("s_cselect_b64 vcc, -1, 0")
            e("s_lshl_b32 s55, s55, 7")
            e("s_add_u32 s55, s55, s58")
            e("s_lshl_b32 s55, s55, 10")
            e("s_add_u32 s59, s55, 65536")
            e("v_cndmask_b32 v27, v20, v21, vcc")
        else:
            e("v_mul_f32 v28, v18, v25")
            e("v_mul_f32 v30, v18, v26")
            e("s_lshl_b32 s55, s41, 12")
            e(f"s_add_u32 s55, s55, {HOFF + (j-2)*2048}")
        cs = 32 + 16 * j
        for r in range(0, 16, 2):
            e(f"v_pk_mul_f32 v[{cs+r}:{cs+r+1}], v[{cs+r}:{cs+r+1}], v[30:31] op_sel_hi:[1,0]")
        for r in range(0, 16, 2):
            e(f"v_pk_fma_f32 v[{c+r}:{c+r+1}], v[{c+r}:{c+r+1}], v[28:29], v[{cs+r}:{cs+r+1}] op_sel_hi:[1,0,1]")
        if ish:
            emit_gelu_pk(a, c, 16, cs, 16, 62)
        o = OUT[j]
        for p in range(8):
            e(f"v_cvt_pk_bf16_f32 v{o+p}, v{c+2*p}, v{c+2*p+1}")
        if not ish:
            e(f"buffer_store_dwordx4 v[{o}:{o+3}], v27, s[32:35], s55 offen{ST}")
            e(f"buffer_store_dwordx4 v[{o+4}:{o+7}], v27, s[32:35], s59 offen{ST}")
        else:
            e(f"buffer_store_dwordx4 v[{o}:{o+3}], v23, s[32:35], s55 offen{ST}")
            e(f"buffer_store_dwordx4 v[{o+4}:{o+7}], v23, s[32:35], s55 offen offset:1024{ST}")
    tile(0, False)
    T.stamp()
    tile(1, False)
    e("s_cmp_lt_u32 s41, 8")
    e("s_cbranch_scc1 L_k1_htiles")
    tile(2, False)
    tile(3, False)
    e("s_branch L_k1_fin")
    e("L_k1_htiles:")
    tile(2, True)
    tile(3, True)
    e("L_k1_fin:")
    T.stamp()
    T.dump(32, 42, 8, 60, 61)
    e(f"{L_exit}:")
    e("s_endpgm")
    return a.kernel(vgpr=168, sgpr=96)
```

```python
from common import *

L_K = 0
L_V = 65536
L_ONES = 131072
L_B = L_ONES + 5632
L_CS = L_B + 24576
L_FLG = L_CS + 768
K2_LDS = L_FLG + 256
SPIN_MAX = 20000
BIG = 0x7ff00000
ENV = os.environ.get
FUSE = ENV("K2_FUSE", "1") == "1"
Q64 = ENV("K2_Q64", "1") == "1"


def lds_signal(a, idx, va, vb):
    e = a.e
    e(f"v_mov_b32 v{va}, {L_FLG + 4*idx}")
    e(f"v_mov_b32 v{vb}, 1")
    e("s_mov_b64 exec, 1")
    e(f"ds_add_u32 v{va}, v{vb}")
    e("s_mov_b64 exec, -1")


def lds_wait(a, tag, idx, target, va, vb, s0, s1, sleep=1, setaddr=True):
    e = a.e
    if setaddr: e(f"v_mov_b32 v{va}, {L_FLG + 4*idx}")
    e(f"s_mov_b32 s{s0}, {SPIN_MAX}")
    e(f"L_{a.name}_lw{tag}:")
    e(f"ds_read_b32 v{vb}, v{va}")
    e("s_waitcnt lgkmcnt(0)")
    e(f"v_readfirstlane_b32 s{s1}, v{vb}")
    e(f"s_cmp_ge_u32 s{s1}, {target}")
    e(f"s_cbranch_scc1 L_{a.name}_lw{tag}_go")
    e(f"s_sleep {sleep}")
    e(f"s_sub_u32 s{s0}, s{s0}, 1")
    e(f"s_cmp_lg_u32 s{s0}, 0")
    e(f"s_cbranch_scc1 L_{a.name}_lw{tag}")
    e(f"L_{a.name}_lw{tag}_go:")


def attn_wave(a, T):
    e = a.e; n = a.name
    e("s_lshl_b32 s48, s41, 3")
    e("s_add_u32 s48, s48, s45")
    e("s_lshl_b32 s49, s40, 6")
    e("s_add_u32 s49, s49, s48")
    e("s_lshl_b32 s49, s49, 10")
    e("buffer_load_dwordx4 v[8:11], v2, s[32:35], s49 offen")
    e("v_and_b32 v5, 1, v1")
    e("v_cmp_eq_u32 vcc, 0, v5")
    e("v_mov_b32 v5, 0x3f80")
    e("v_mov_b32 v33, 0"); e("v_mov_b32 v35, 0")
    e("v_cndmask_b32 v32, 0, v5, vcc")
    e("v_mov_b32 v34, v32")
    e("v_lshlrev_b32 v3, 4, v0")
    e(f"v_cmp_gt_u32 vcc, 5632, v3")
    e(f"v_add_u32 v3, {L_ONES}, v3")
    e("s_and_saveexec_b64 s[50:51], vcc")
    e("ds_write_b128 v3, v[32:35]")
    e("s_mov_b64 exec, -1")
    e("v_lshrrev_b32 v5, 5, v1")
    e("v_bfe_u32 v6, v1, 4, 1")
    e("v_xor_b32 v7, v5, v6")
    e("v_and_b32 v3, 15, v1")
    e("v_lshlrev_b32 v3, 3, v3")
    e("v_lshl_add_u32 v3, v7, 7, v3")
    e("v_lshl_add_u32 v3, v6, 16, v3")
    e(f"v_add_u32 v112, {L_V}, v3")
    e("v_xor_b32 v4, 1, v6")
    e("v_lshlrev_b32 v4, 12, v4")
    e("s_mov_b32 s56, 0")
    e("s_lshl_b32 s51, s45, 2")
    e(f"s_add_u32 s51, s51, {L_FLG + 64}")
    e("v_mov_b32 v113, s51")
    e("v_xor_b32 v114, 16, v113")
    e("v_mov_b32 v115, 0")
    e("v_mov_b32 v116, 0")
    e("s_waitcnt lgkmcnt(0)")
    lds_signal(a, 9, 5, 6)
    lds_wait(a, "c0", 9, 12, 5, 6, 51, 52)
    T.stamp()
    e("ds_read_b128 v[88:91], v2")
    e("s_waitcnt vmcnt(0) lgkmcnt(0)")
    e("v_mfma_f32_32x32x16_bf16 v[32:47], v[88:91], v[8:11], 0")
    e("s_nop 7"); e("s_nop 3")
    e("v_max3_f32 v16, v32, v33, v34")
    e("v_max3_f32 v17, v35, v36, v37")
    e("v_max3_f32 v16, v16, v38, v39")
    e("v_max3_f32 v17, v17, v40, v41")
    e("v_max3_f32 v16, v16, v42, v43")
    e("v_max3_f32 v17, v17, v44, v45")
    e("v_max3_f32 v16, v16, v46, v47")
    e(f"L_{n}_setmax:")
    e("v_max_f32 v16, v16, v17")
    e("v_mov_b32 v12, v2")
    e("v_mov_b32 v17, v16")
    e("v_mov_b32 v3, v112")
    e("ds_read_b128 v[88:91], v12")
    e("ds_read_b128 v[92:95], v12 offset:1024")
    e("v_permlane32_swap_b32 v16, v17")
    for u in range(2):
        for t in range(2):
            e(f"ds_read_b64_tr_b16 v[{96+4*u+2*t}:{97+4*u+2*t}], v3 offset:{512*u+256*t}")
    e("v_max_f32 v16, v16, v17")
    e("v_sub_f32 v16, 0, v16")
    for r in range(17, 32): e(f"v_mov_b32 v{r}, v16")
    for r in list(range(68, 88)) + list(range(104, 112)): e(f"v_mov_b32 v{r}, 0")
    e("s_waitcnt lgkmcnt(5)")
    e("v_mfma_f32_32x32x16_bf16 v[32:47], v[88:91], v[8:11], v[16:31]")
    e("s_nop 7")
    e("s_mov_b32 s55, 0")
    e(f"L_{n}_loop:")
    e("s_add_u32 s51, s55, 1")
    e("s_and_b32 s52, s51, s55")
    e("s_cmp_lg_u32 s52, 0")
    e(f"s_cbranch_scc1 L_{n}_nobar")
    e("s_cmp_eq_u32 s55, 0")
    e(f"s_cbranch_scc1 L_{n}_nobar")
    e("s_cmp_eq_u32 s55, 15")
    e(f"s_cbranch_scc1 L_{n}_nobar")
    e("s_bcnt1_i32_b32 s51, s55")
    e("s_lshl_b32 s51, s51, 2")
    e(f"s_add_u32 s51, s51, {L_FLG + 36}")
    e("v_mov_b32 v5, s51")
    lds_wait(a, "c1", 0, 4, 5, 6, 51, 52, setaddr=False)
    e(f"L_{n}_nobar:")
    X = lambda r: e(f"v_exp_f32 v{r}, v{r}")
    fair = ENV("K2_FAIR", "1") == "1"
    for tl in range(4):
        S = 32 + 16 * (tl % 2); Sn = 32 + 16 * ((tl + 1) % 2)
        Kn = 88 + 4 * ((tl + 1) % 2); Knn = 88 + 4 * (tl % 2)
        V = 96 + 8 * (tl % 2); Vp = 96 + 8 * ((tl + 1) % 2)
        e("s_waitcnt lgkmcnt(4)")
        e(f"v_mfma_f32_32x32x16_bf16 v[{Sn}:{Sn+15}], v[{Kn}:{Kn+3}], v[8:11], v[16:31]")
        if fair and tl == 0:
            e("ds_write_b32 v113, v115")
            e("ds_read_b32 v116, v114")
        e(f"ds_read_b128 v[{Knn}:{Knn+3}], v12 offset:{1024*(tl+2)}")
        X(S); X(S + 1); X(S + 2)
        e(f"v_mfma_f32_32x32x16_bf16 v[72:87], v[{Vp+4}:{Vp+7}], v[68:71], v[72:87]")
        for u in range(2):
            for t in range(2):
                e(f"ds_read_b64_tr_b16 v[{Vp+4*u+2*t}:{Vp+4*u+2*t+1}], v3 offset:{1024*(tl+1)+512*u+256*t}")
        if fair and tl == 1:
            e("v_readfirstlane_b32 s51, v116")
            e("v_add_u32 v115, 1, v115")
            e("s_cmp_gt_u32 s55, s51")
            e(f"s_cbranch_scc1 L_{n}_lo")
            e("s_setprio 1")
            e(f"s_branch L_{n}_pd")
            e(f"L_{n}_lo:")
            e("s_setprio 0")
            e(f"L_{n}_pd:")
        for i in range(3, 9): X(S + i)
        for i in range(4): e(f"v_cvt_pk_bf16_f32 v{64+i}, v{S+2*i}, v{S+2*i+1}")
        X(S + 9); X(S + 10)
        e("s_waitcnt lgkmcnt(5)")
        e(f"v_mfma_f32_32x32x16_bf16 v[72:87], v[{V}:{V+3}], v[64:67], v[72:87]")
        for i in range(11, 16): X(S + i)
        if tl == 3:
            e("v_add_u32 v12, 4096, v12")
            e("v_add_u32 v3, v4, v3")
        else:
            e("s_nop 0")
        for i in range(4, 8): e(f"v_cvt_pk_bf16_f32 v{64+i}, v{S+2*i}, v{S+2*i+1}")
    e("s_add_u32 s55, s55, 1")
    e("s_cmp_lt_u32 s55, 16")
    e(f"s_cbranch_scc1 L_{n}_loop")
    e("v_mfma_f32_32x32x16_bf16 v[72:87], v[108:111], v[68:71], v[72:87]")
    T.stamp()
    e("s_lshl_b32 s49, s48, 5")
    e("s_add_u32 s49, s49, s40")
    e("s_lshl_b32 s49, s49, 10")
    e(f"s_add_u32 s49, s49, {OOFF}")
    e("s_waitcnt lgkmcnt(0)")
    e("s_nop 7")
    e("v_mul_f32 v32, 0, v72")
    for r in range(73, 80): e(f"v_fma_f32 v32, v{r}, 0, v32")
    e(f"v_mov_b32 v33, {f32(2.0**60)}")
    e("v_add_f32 v32, v32, v80")
    e("v_cmp_nlt_f32 vcc, v32, v33")
    e("s_cmp_lg_u32 s56, 0")
    e(f"s_cbranch_scc1 L_{n}_store")
    e("s_cmp_eq_u64 vcc, 0")
    e(f"s_cbranch_scc1 L_{n}_store")
    e("s_mov_b32 s56, 1")
    e("s_mov_b32 s55, 0")
    e("v_mov_b32 v12, v2")
    e("v_mov_b32 v16, 0xff800000")
    e("v_mov_b32 v17, 0xff800000")
    e(f"L_{n}_mloop:")
    e("ds_read_b128 v[88:91], v12")
    e("s_waitcnt lgkmcnt(0)")
    e("v_mfma_f32_32x32x16_bf16 v[32:47], v[88:91], v[8:11], 0")
    e("v_add_u32 v12, 1024, v12")
    e("s_nop 7"); e("s_nop 3")
    for i in range(4):
        e(f"v_max3_f32 v16, v16, v{32+4*i}, v{33+4*i}")
        e(f"v_max3_f32 v17, v17, v{34+4*i}, v{35+4*i}")
    e("s_add_u32 s55, s55, 1")
    e("s_cmp_lt_u32 s55, 64")
    e(f"s_cbranch_scc1 L_{n}_mloop")
    e(f"s_branch L_{n}_setmax")
    e(f"L_{n}_store:")
    lds_signal(a, 13, 5, 6)
    e("v_rcp_f32 v80, v80")
    e("s_nop 0")
    for r in range(72, 80): e(f"v_mul_f32 v{r}, v{r}, v80")
    for p in range(4): e(f"v_cvt_pk_bf16_f32 v{64+p}, v{72+2*p}, v{73+2*p}")
    if FUSE:
        e("buffer_store_dwordx4 v[64:67], v2, s[32:35], s49 offen sc1")
        e("s_lshl_b32 s49, s48, 5")
        e("s_add_u32 s49, s49, s40")
        e("s_lshl_b32 s49, s49, 2")
        e(f"s_add_u32 s49, s49, {OFLAG}")
        e("v_mov_b32 v5, 0")
        e("v_mov_b32 v6, 1")
        e("s_waitcnt vmcnt(0)")
        e("s_mov_b64 exec, 1")
        e("buffer_store_dword v6, v5, s[32:35], s49 offen sc1")
        e("s_mov_b64 exec, -1")
    else:
        e("buffer_store_dwordx4 v[64:67], v2, s[32:35], s49 offen")


def attn_wave64(a, T):
    e = a.e; n = a.name
    e("s_and_b32 s46, s45, 3")
    e("s_lshr_b32 s47, s45, 2")
    e("s_lshl_b32 s48, s41, 3")
    e("s_lshl_b32 s49, s46, 1")
    e("s_add_u32 s48, s48, s49")
    e("s_add_u32 s48, s48, s47")
    e("s_xor_b32 s49, s48, 1")
    e("s_lshl_b32 s50, s40, 6")
    e("s_add_u32 s51, s50, s48"); e("s_lshl_b32 s51, s51, 10")
    e("s_add_u32 s52, s50, s49"); e("s_lshl_b32 s52, s52, 10")
    e("buffer_load_dwordx4 v[8:11], v2, s[32:35], s51 offen")
    e("buffer_load_dwordx4 v[12:15], v2, s[32:35], s52 offen")
    e("v_and_b32 v5, 1, v1")
    e("v_cmp_eq_u32 vcc, 0, v5")
    e("v_mov_b32 v5, 0x3f80")
    e("v_mov_b32 v33, 0"); e("v_mov_b32 v35, 0")
    e("v_cndmask_b32 v32, 0, v5, vcc")
    e("v_mov_b32 v34, v32")
    e("v_lshlrev_b32 v3, 4, v0")
    e(f"v_cmp_gt_u32 vcc, 5632, v3")
    e(f"v_add_u32 v3, {L_ONES}, v3")
    e("s_and_saveexec_b64 s[50:51], vcc")
    e("ds_write_b128 v3, v[32:35]")
    e("s_mov_b64 exec, -1")
    e("v_lshrrev_b32 v5, 5, v1")
    e("v_bfe_u32 v6, v1, 4, 1")
    e("v_xor_b32 v7, v5, v6")
    e("v_and_b32 v3, 15, v1")
    e("v_lshlrev_b32 v3, 3, v3")
    e("v_lshl_add_u32 v3, v7, 7, v3")
    e("s_lshl_b32 s53, s47, 15")
    e(f"s_add_u32 s51, s53, {L_V}")
    e("v_mov_b32 v7, s51")
    e(f"v_mov_b32 v160, {L_ONES}")
    e("v_cmp_eq_u32 vcc, 1, v6")
    e("v_xor_b32 v4, 1, v6")
    e("v_lshlrev_b32 v4, 12, v4")
    e("v_cndmask_b32 v7, v7, v160, vcc")
    e("v_add_u32 v160, v7, v3")
    e("v_add_u32 v165, s53, v2")
    e("s_mov_b32 s56, 0")
    e("s_lshl_b32 s51, s45, 2")
    e(f"s_add_u32 s51, s51, {L_FLG + 64}")
    e("v_mov_b32 v161, s51")
    e("v_xor_b32 v162, 16, v161")
    e("v_mov_b32 v163, 0")
    e("v_mov_b32 v164, 0")
    e("s_waitcnt lgkmcnt(0)")
    lds_signal(a, 9, 5, 6)
    lds_wait(a, "c0", 9, 12, 5, 6, 51, 52)
    T.stamp()
    e("ds_read_b128 v[112:115], v165")
    e("s_waitcnt vmcnt(0) lgkmcnt(0)")
    e("v_mfma_f32_32x32x16_bf16 v[32:47], v[112:115], v[8:11], 0")
    e("v_mfma_f32_32x32x16_bf16 v[48:63], v[112:115], v[12:15], 0")
    e("s_nop 7"); e("s_nop 3")
    for (m, S) in ((16, 32), (144, 48)):
        e(f"v_max3_f32 v{m}, v{S}, v{S+1}, v{S+2}")
        e(f"v_max3_f32 v{m+1}, v{S+3}, v{S+4}, v{S+5}")
        e(f"v_max3_f32 v{m}, v{m}, v{S+6}, v{S+7}")
        e(f"v_max3_f32 v{m+1}, v{m+1}, v{S+8}, v{S+9}")
        e(f"v_max3_f32 v{m}, v{m}, v{S+10}, v{S+11}")
        e(f"v_max3_f32 v{m+1}, v{m+1}, v{S+12}, v{S+13}")
        e(f"v_max3_f32 v{m}, v{m}, v{S+14}, v{S+15}")
    e(f"L_{n}_setmax:")
    e("v_max_f32 v16, v16, v17")
    e("v_max_f32 v144, v144, v145")
    e("v_mov_b32 v17, v16")
    e("v_mov_b32 v145, v144")
    e("v_mov_b32 v120, v165")
    e("v_mov_b32 v3, v160")
    e("v_permlane32_swap_b32 v16, v17")
    e("v_permlane32_swap_b32 v144, v145")
    e("ds_read_b128 v[112:115], v120")
    e("ds_read_b128 v[116:119], v120 offset:1024")
    for u in range(2):
        for t in range(2):
            e(f"ds_read_b64_tr_b16 v[{128+4*u+2*t}:{129+4*u+2*t}], v3 offset:{512*u+256*t}")
    e("v_max_f32 v16, v16, v17")
    e("v_max_f32 v144, v144, v145")
    e("v_sub_f32 v16, 0, v16")
    e("v_sub_f32 v144, 0, v144")
    for r in range(17, 32): e(f"v_mov_b32 v{r}, v16")
    for r in range(145, 160): e(f"v_mov_b32 v{r}, v144")
    for r in list(range(76, 112)) + list(range(136, 144)): e(f"v_mov_b32 v{r}, 0")
    e("s_waitcnt lgkmcnt(5)")
    e("v_mfma_f32_32x32x16_bf16 v[32:47], v[112:115], v[8:11], v[16:31]")
    e("s_nop 7")
    e("s_mov_b32 s55, 0")
    e(f"L_{n}_loop:")
    e("s_cmp_eq_u32 s55, 1")
    e(f"s_cbranch_scc1 L_{n}_g")
    e("s_cmp_lg_u32 s55, 3")
    e(f"s_cbranch_scc1 L_{n}_nobar")
    e(f"L_{n}_g:")
    e("s_lshl_b32 s51, s55, 2")
    e(f"s_add_u32 s51, s51, {L_FLG + 36}")
    e("v_mov_b32 v5, s51")
    lds_wait(a, "c1", 0, 4, 5, 6, 51, 52, setaddr=False)
    e(f"L_{n}_nobar:")
    X = lambda r: e(f"v_exp_f32 v{r}, v{r}")
    def CV(d, s): e(f"v_cvt_pk_bf16_f32 v{d}, v{s}, v{s+1}")
    for tl in range(4):
        K = 112 + 4 * (tl % 2); Kn = 112 + 4 * ((tl + 1) % 2)
        V = 128 + 8 * (tl % 2); Vp = 128 + 8 * ((tl + 1) % 2)
        e(f"v_mfma_f32_32x32x16_bf16 v[48:63], v[{K}:{K+3}], v[12:15], v[144:159]")
        if tl in (0, 2):
            e("ds_write_b32 v161, v163")
            e("ds_read_b32 v164, v162")
        e(f"ds_read_b128 v[{K}:{K+3}], v120 offset:{1024*(tl+2)}")
        X(32); X(33); X(34)
        e(f"v_mfma_f32_32x32x16_bf16 v[96:111], v[{Vp+4}:{Vp+7}], v[76:79], v[96:111]")
        for u in range(2):
            for t in range(2):
                e(f"ds_read_b64_tr_b16 v[{Vp+4*u+2*t}:{Vp+4*u+2*t+1}], v3 offset:{1024*(tl+1)+512*u+256*t}")
        if tl in (1, 3):
            e("v_readfirstlane_b32 s51, v164")
            e("v_add_u32 v163, 1, v163")
            e("s_lshl_b32 s52, s55, 1")
            e(f"s_add_u32 s52, s52, {tl >> 1}")
            e("s_cmp_gt_u32 s52, s51")
            e(f"s_cbranch_scc1 L_{n}_lo{tl}")
            e("s_setprio 1")
            e(f"s_branch L_{n}_pd{tl}")
            e(f"L_{n}_lo{tl}:")
            e("s_setprio 0")
            e(f"L_{n}_pd{tl}:")
        for i in range(3, 9): X(32 + i)
        for i in range(4): CV(64 + i, 32 + 2 * i)
        X(41); X(42)
        e("s_waitcnt lgkmcnt(5)")
        e(f"v_mfma_f32_32x32x16_bf16 v[80:95], v[{V}:{V+3}], v[64:67], v[80:95]")
        for i in range(11, 16): X(32 + i)
        X(48)
        for i in range(4, 8): CV(64 + i, 32 + 2 * i)
        X(49); X(50)
        e(f"v_mfma_f32_32x32x16_bf16 v[80:95], v[{V+4}:{V+7}], v[68:71], v[80:95]")
        X(51); X(52); X(53)
        e(f"v_mfma_f32_32x32x16_bf16 v[32:47], v[{Kn}:{Kn+3}], v[8:11], v[16:31]")
        for i in range(6, 9): X(48 + i)
        for i in range(4): CV(72 + i, 48 + 2 * i)
        X(57); X(58)
        e(f"v_mfma_f32_32x32x16_bf16 v[96:111], v[{V}:{V+3}], v[72:75], v[96:111]")
        for i in range(11, 16): X(48 + i)
        if tl == 3:
            e("v_add_u32 v3, v4, v3")
            e("v_add_u32 v120, 4096, v120")
        else:
            e("s_nop 0")
        for i in range(4, 8): CV(72 + i, 48 + 2 * i)
    e("s_add_u32 s55, s55, 1")
    e("s_cmp_lt_u32 s55, 8")
    e(f"s_cbranch_scc1 L_{n}_loop")
    e("v_mfma_f32_32x32x16_bf16 v[96:111], v[140:143], v[76:79], v[96:111]")
    T.stamp()
    e("s_waitcnt lgkmcnt(0)")
    e("s_nop 7"); e("s_nop 3")
    e("v_mul_f32 v32, 0, v80")
    for r in list(range(81, 88)) + list(range(96, 104)): e(f"v_fma_f32 v32, v{r}, 0, v32")
    e(f"v_mov_b32 v33, {f32(2.0**60)}")
    e("v_add_f32 v32, v32, v88")
    e("v_add_f32 v32, v32, v104")
    e("v_cmp_nlt_f32 vcc, v32, v33")
    e("s_cmp_lg_u32 s56, 0")
    e(f"s_cbranch_scc1 L_{n}_comb")
    e("s_cmp_eq_u64 vcc, 0")
    e(f"s_cbranch_scc1 L_{n}_comb")
    e("s_mov_b32 s56, 1")
    e("s_mov_b32 s55, 0")
    e("v_mov_b32 v120, v165")
    for r in (16, 17, 144, 145): e(f"v_mov_b32 v{r}, 0xff800000")
    e(f"L_{n}_mloop:")
    e("ds_read_b128 v[112:115], v120")
    e("s_waitcnt lgkmcnt(0)")
    e("v_mfma_f32_32x32x16_bf16 v[32:47], v[112:115], v[8:11], 0")
    e("v_mfma_f32_32x32x16_bf16 v[48:63], v[112:115], v[12:15], 0")
    e("v_add_u32 v120, 1024, v120")
    e("s_nop 7"); e("s_nop 3")
    for (m, S) in ((16, 32), (144, 48)):
        for i in range(4):
            e(f"v_max3_f32 v{m}, v{m}, v{S+4*i}, v{S+1+4*i}")
            e(f"v_max3_f32 v{m+1}, v{m+1}, v{S+2+4*i}, v{S+3+4*i}")
    e("s_add_u32 s55, s55, 1")
    e("s_cmp_lt_u32 s55, 32")
    e(f"s_cbranch_scc1 L_{n}_mloop")
    e(f"s_branch L_{n}_setmax")
    e(f"L_{n}_comb:")
    e("s_lshl_b32 s51, s47, 2")
    e(f"s_add_u32 s51, s51, {L_FLG + 56}")
    e("v_mov_b32 v5, s51")
    e("v_mov_b32 v6, 1")
    e("s_mov_b64 exec, 1")
    e("ds_add_u32 v5, v6")
    e("s_mov_b64 exec, -1")
    e("v_mov_b32 v105, v144")
    e("s_mul_i32 s51, s46, 3072")
    e(f"s_add_u32 s54, s51, {L_V + 8192}")
    e("s_add_u32 s51, s54, s53")
    e("v_add_u32 v3, s51, v2")
    lds_wait(a, "hd", 0, 4, 5, 6, 51, 52, setaddr=False)
    e("ds_write_b128 v3, v[96:99]")
    e("ds_write_b128 v3, v[100:103] offset:1024")
    e("ds_write_b128 v3, v[104:107] offset:2048")
    e("s_lshl_b32 s51, s45, 2")
    e(f"s_add_u32 s51, s51, {L_FLG}")
    e("v_mov_b32 v5, s51")
    e("v_mov_b32 v6, 1")
    e("s_waitcnt lgkmcnt(0)")
    e("ds_write_b32 v5, v6")
    e("v_xor_b32 v5, 16, v5")
    e("v_xor_b32 v3, 0x8000, v3")
    lds_wait(a, "pr", 0, 1, 5, 6, 51, 52, setaddr=False)
    e("ds_read_b128 v[96:99], v3")
    e("ds_read_b128 v[100:103], v3 offset:1024")
    e("ds_read_b128 v[104:107], v3 offset:2048")
    e("s_lshl_b32 s49, s48, 5")
    e("s_add_u32 s49, s49, s40")
    e("s_lshl_b32 s50, s49, 2")
    e(f"s_add_u32 s50, s50, {OFLAG}")
    e("s_lshl_b32 s49, s49, 10")
    e(f"s_add_u32 s49, s49, {OOFF}")
    e("s_waitcnt lgkmcnt(0)")
    lds_signal(a, 13, 5, 6)
    e("v_min_f32 v32, v16, v105")
    e("v_sub_f32 v33, v32, v16")
    e("v_sub_f32 v34, v32, v105")
    e("v_exp_f32 v33, v33")
    e("v_exp_f32 v34, v34")
    e("s_nop 0")
    e("v_mul_f32 v88, v88, v33")
    e("v_fmac_f32 v88, v104, v34")
    e("v_rcp_f32 v88, v88")
    e("s_nop 0")
    e("v_mul_f32 v33, v33, v88")
    e("v_mul_f32 v34, v34, v88")
    for i in range(8): e(f"v_mul_f32 v{80+i}, v{80+i}, v33")
    for i in range(8): e(f"v_fmac_f32 v{80+i}, v{96+i}, v34")
    for p in range(4): e(f"v_cvt_pk_bf16_f32 v{64+p}, v{80+2*p}, v{81+2*p}")
    e("buffer_store_dwordx4 v[64:67], v2, s[32:35], s49 offen sc1")
    e("v_mov_b32 v5, 0")
    e("v_mov_b32 v6, 1")
    e("s_waitcnt vmcnt(0)")
    e("s_mov_b64 exec, 1")
    e("buffer_store_dword v6, v5, s[32:35], s50 offen sc1")
    e("s_mov_b64 exec, -1")


def gemm(a, tag, nact, nw, N, D, acc, fr, s_act, s_w, st_act, st_w, s_cnt=None, sc_act="", pace=None, hook=None, hook_step=None, noinit=False, between=None):
    e = a.e
    nf = nact + nw
    def F(r, i): return fr + 4 * (nf * r + i)
    def issue(r, part=3):
        if part != 3:
            for t in range(nact if part == 1 else 0):
                e(f"s_add_u32 s62, s{s_act}, {1024*r}")
                if t: e(f"s_add_u32 s62, s62, {st_act}")
                e(f"buffer_load_dwordx4 v[{F(r,t)}:{F(r,t)+3}], v2, s[32:35], s62 offen{sc_act}")
            for i in range(nw if part == 2 else 0):
                e(f"s_add_u32 s62, s{s_w}, {1024*r}")
                if i: e(f"s_add_u32 s62, s62, {st_w if isinstance(st_w, str) else i*st_w}")
                e(f"buffer_load_dwordx4 v[{F(r,nact+i)}:{F(r,nact+i)+3}], v2, s[32:35], s62 offen")
            return
        if s_cnt is not None:
            e(f"s_cmp_gt_i32 s{s_cnt}, 0")
            e(f"s_cselect_b32 s60, s{s_act}, s59")
            e(f"s_cselect_b32 s61, s{s_w}, s59")
            e(f"s_sub_i32 s{s_cnt}, s{s_cnt}, 1")
            sa, sw = 60, 61
        else:
            sa, sw = s_act, s_w
        for t in range(nact):
            so = f"s{sa}"
            if t:
                e(f"s_add_u32 s62, s{sa}, {st_act if isinstance(st_act, str) else t*st_act}"); so = "s62"
            e(f"buffer_load_dwordx4 v[{F(r,t)}:{F(r,t)+3}], v2, s[32:35], {so} offen{sc_act}")
        for i in range(nw):
            so = f"s{sw}"
            if i:
                e(f"s_add_u32 s62, s{sw}, {st_w if isinstance(st_w, str) else i*st_w}"); so = "s62"
            e(f"buffer_load_dwordx4 v[{F(r,nact+i)}:{F(r,nact+i)+3}], v2, s[32:35], {so} offen")
        e(f"s_add_u32 s{s_act}, s{s_act}, 1024")
        e(f"s_add_u32 s{s_w}, s{s_w}, 1024")
    def step(j, first=False):
        r = j % D
        if between and j < D:
            e(f"s_waitcnt vmcnt({nact*(D-1-j) + nf*min(j, max(N-D, 0))})")
        else:
            e(f"s_waitcnt vmcnt({nf*min(D-1, N-1-j)})")
        if hook_step: hook_step(j)
        for i in range(nw):
            for t in range(nact):
                d = acc + 16 * (i * nact + t)
                cc = "0" if first else f"v[{d}:{d+15}]"
                e(f"v_mfma_f32_32x32x16_bf16 v[{d}:{d+15}], v[{F(r,nact+i)}:{F(r,nact+i)+3}], v[{F(r,t)}:{F(r,t)+3}], {cc}")
                if pace: e(pace)
        if j + D < N: issue(r)
    if s_cnt is not None: e(f"s_mov_b32 s59, {BIG}")
    if between:
        for r in range(D): issue(r, 2)
        between()
        for r in range(D): issue(r, 1)
        e(f"s_add_u32 s{s_act}, s{s_act}, {1024*D}")
        e(f"s_add_u32 s{s_w}, s{s_w}, {1024*D}")
        if s_cnt is not None: e(f"s_sub_i32 s{s_cnt}, s{s_cnt}, {D}")
        for j in range(D): step(j, first=(j == 0 and not noinit))
        j0 = D
    else:
        for r in range(D): issue(r)
        if hook: hook(nf * D)
        step(0, not noinit)
        j0 = 1
    m = (N - j0 - D) // D
    j = j0
    if m >= 2:
        e(f"s_mov_b32 s58, {m}")
        e(f"L_{a.name}_{tag}_loop:")
        for jj in range(j0, j0 + D): step(jj)
        e("s_sub_u32 s58, s58, 1")
        e("s_cmp_lg_u32 s58, 0")
        e(f"s_cbranch_scc1 L_{a.name}_{tag}_loop")
        j = j0 + m * D
    while j < N:
        step(j); j += 1


def b_waves(a, T, with_w4):
    e = a.e
    pace = ENV("K2_PACE", "s_nop 7") or None
    st = {"n": 0}
    def sync():
        st["n"] += 1
        e("s_waitcnt lgkmcnt(0)")
        lds_signal(a, 8, 6, 7)
        lds_wait(a, f"sy{st['n']}", 8, 4 * st["n"], 6, 7, 68, 69, setaddr=False)

    e("s_sub_u32 s45, s44, 8")
    a.srd(24, 4, 2048 * 1024)
    a.srd(28, 6, 2048 * 1024)
    e("s_lshl_b32 s46, s40, 16")
    e("s_lshl_b32 s47, s45, 10")
    e("s_add_u32 s46, s46, s47")
    e(f"s_add_u32 s46, s46, {KOFF}")
    def kv(t0, cnt):
        for i in range(cnt):
            off = (t0 + 4 * i) * 1024
            e(f"s_add_u32 m0, s47, {L_K + off}")
            e(f"s_add_u32 s48, s46, {off}")
            e("buffer_load_dwordx4 v2, s[32:35], s48 offen lds")
            e(f"s_add_u32 m0, s47, {L_V + off}")
            e(f"s_add_u32 s48, s46, {off + VOFF - KOFF}")
            e("buffer_load_dwordx4 v2, s[32:35], s48 offen lds")
    OLD = ENV("K2_ORDER", "old") == "old"
    kv(0, 2)
    if Q64:
        kv(32, 2); kv(8, 2); kv(40, 2)
        e("s_waitcnt vmcnt(8)")
        lds_signal(a, 9, 6, 7)
    elif OLD:
        kv(8, 6)
        e("s_waitcnt vmcnt(12)")
        lds_signal(a, 9, 6, 7)
    e("s_setprio %s" % ENV("K2_PRIO", "3"))
    T.n = 1
    T.stamp()
    if ENV("K2_NOB") == "1":
        kv(16, 4); kv(48, 4); e("s_waitcnt vmcnt(0)")
        for i in (10, 11, 12): lds_signal(a, i, 6, 7)
        e("s_endpgm")

    e("s_and_b32 s50, s45, 1")
    e("s_lshr_b32 s51, s45, 1")
    e("s_lshl_b32 s64, s40, 1"); e("s_add_u32 s64, s64, s50")
    e("s_lshl_b32 s65, s41, 1"); e("s_add_u32 s65, s65, s51")
    for j in range(1, 4):
        e(f"s_xor_b32 s60, s45, {j}")
        e("s_mul_i32 s60, s60, 6144")
        e(f"s_add_u32 s60, s60, {L_B + (j-1)*2048}")
        e(f"v_add_u32 v{2+j}, s60, v2")
    e("s_mul_i32 s52, s45, 6144")
    e(f"s_add_u32 s52, s52, {L_B}")

    def signed_stride(sreg, bit_sreg, stride):
        e(f"s_mov_b32 s{sreg}, {stride}")
        e(f"s_cmp_eq_u32 s{bit_sreg}, 1")
        e(f"s_cselect_b32 s{sreg}, {(-stride) & 0xffffffff}, s{sreg}")

    def x_tile(dst, vt):
        e("s_lshl_b32 s60, s64, 15")
        e("s_lshl_b32 s61, s65, 6")
        e("s_add_u32 s60, s60, s61")
        e(f"v_and_b32 v{vt}, 31, v1")
        e(f"v_lshrrev_b32 v{vt+1}, 5, v1")
        e(f"v_lshlrev_b32 v{vt+2}, 10, v{vt}")
        e(f"v_lshl_add_u32 v{vt+2}, v{vt+1}, 3, v{vt+2}")
        for g in range(4):
            e(f"buffer_load_dwordx2 v[{dst+2*g}:{dst+2*g+1}], v{vt+2}, s[24:27], s60 offen offset:{16*g}")

    def reduce22(ACC, TMP):
        e("s_nop 7"); e("s_nop 3")
        e(f"v_add_u32 v{TMP+24}, s52, v2")
        for h in range(2):
            for j in range(1, 4):
                for q in range(2):
                    r = ACC + 16 * j + 8 * h + 4 * q
                    e(f"ds_write_b128 v{2+j}, v[{r}:{r+3}] offset:{q*1024}")
            sync()
            for i in range(6):
                e(f"ds_read_b128 v[{TMP+4*i}:{TMP+4*i+3}], v{TMP+24} offset:{i*1024}")
            if h == 0:
                sync()
            else:
                e("s_waitcnt lgkmcnt(0)")
            for j in range(3):
                for r in range(8):
                    e(f"v_add_f32 v{ACC+8*h+r}, v{ACC+8*h+r}, v{TMP+8*j+r}")

    def xsync(ph, during=None):
        xpub(ph)
        if during: during()
        xwait(ph)

    def xpub(ph):
        e("s_waitcnt vmcnt(0)")
        e("s_lshl_b32 s70, s40, 8")
        e(f"s_add_u32 s70, s70, {FLAGS + 128*ph}")
        e("s_lshl_b32 s61, s41, 2")
        e("s_add_u32 s61, s61, s45")
        e("s_lshl_b32 s61, s61, 2")
        e("v_mov_b32 v6, s61")
        e("v_mov_b32 v7, 1")
        e("s_mov_b64 exec, 1")
        e("buffer_store_dword v7, v6, s[32:35], s70 offen sc1")
        e("s_mov_b64 exec, -1")

    def xwait(ph):
        e("v_and_b32 v6, 31, v1")
        e("v_lshlrev_b32 v6, 2, v6")
        e(f"s_mov_b32 s68, {SPIN_MAX}")
        e(f"L_k2_xs{ph}:")
        e("buffer_load_dword v7, v6, s[32:35], s70 offen sc1")
        e("s_waitcnt vmcnt(0)")
        e("v_cmp_eq_u32 vcc, 0, v7")
        e("s_cmp_eq_u64 vcc, 0")
        e(f"s_cbranch_scc1 L_k2_xs{ph}_go")
        e("s_sleep 2")
        e("s_sub_u32 s68, s68, 1")
        e("s_cmp_lg_u32 s68, 0")
        e(f"s_cbranch_scc1 L_k2_xs{ph}")
        e(f"L_k2_xs{ph}_go:")

    ACC, FR, XR = 8, 72, 136
    x_tile(XR, 146)
    e("s_lshl_b32 s61, s64, 8")
    e(f"s_add_u32 s61, s61, {STAT}")
    e("v_lshlrev_b32 v148, 3, v146")
    e("buffer_load_dwordx2 v[144:145], v148, s[32:35], s61 offen")
    e("s_lshl_b32 s60, s45, 3")
    e("s_lshl_b32 s56, s64, 5"); e("s_add_u32 s56, s56, s60"); e("s_lshl_b32 s56, s56, 10"); e(f"s_add_u32 s56, s56, {HOFF}")
    e("s_lshl_b32 s57, s65, 5"); e("s_add_u32 s57, s57, s60"); e("s_lshl_b32 s57, s57, 10"); e(f"s_add_u32 s57, s57, {W2F}")
    signed_stride(53, 50, 32768)
    signed_stride(54, 51, 32768)
    def hook(ny):
        if OLD:
            e(f"s_waitcnt vmcnt({ny + 5})")
            lds_signal(a, 10, 6, 7); lds_signal(a, 11, 6, 7)
            return
        kv(8, 2)
        e(f"s_waitcnt vmcnt({ny + 5 + 4})")
        lds_signal(a, 9, 6, 7)
    def hook_step(j):
        if j == 4 and not OLD: lds_signal(a, 10, 6, 7)
    gemm(a, "w2", 2, 2, 8, 4, ACC, FR, 56, 57, "s53", "s54", pace=pace, hook=hook, hook_step=hook_step)
    if ENV("K2_FINE") == "1": T.stamp()
    if Q64:
        kv(16, 4); kv(48, 4)
    else:
        if not OLD: kv(16, 4)
        kv(32, 8)
    e("s_mul_i32 s66, s41, 5")
    e("s_min_u32 s60, s41, 3")
    e("s_add_u32 s66, s66, s60")
    e("s_and_b32 s61, s40, 3"); e("s_lshl_b32 s61, s61, 2"); e("s_add_u32 s61, s61, s45")
    e("s_lshl_b32 s62, s66, 5"); e("s_mul_i32 s63, s61, 12"); e("s_add_u32 s62, s62, s63"); e("s_lshl_b32 s62, s62, 10"); e(f"s_add_u32 s62, s62, {W3F}")
    e("v_lshlrev_b32 v6, 7, v1")
    e("buffer_load_dword v149, v6, s[32:35], s62 offen")
    e("s_add_u32 s62, s62, 4096")
    e("buffer_load_dword v149, v6, s[32:35], s62 offen")
    reduce22(ACC, FR)
    if ENV("K2_FINE") == "1": T.stamp()
    if not OLD:
        e("s_waitcnt vmcnt(18)")
        lds_signal(a, 11, 6, 7)
    e("s_waitcnt vmcnt(2)")
    lds_signal(a, 12, 6, 7)
    U = FR
    e("v_mul_f32 v146, v144, v145")
    e("s_mov_b32 s60, 0xffff0000")
    for p in range(8):
        e(f"v_lshlrev_b32 v{U+2*p}, 16, v{XR+p}")
        e(f"v_and_b32 v{U+2*p+1}, s60, v{XR+p}")
    for r in range(16): e(f"v_sub_f32 v{ACC+r}, v{ACC+r}, v146")
    for r in range(16): e(f"v_fmac_f32 v{ACC+r}, v{U+r}, v145")
    for p in range(8): e(f"v_cvt_pk_bf16_f32 v{ACC+16+p}, v{ACC+2*p}, v{ACC+2*p+1}")
    e("s_lshl_b32 s60, s64, 5"); e("s_lshl_b32 s61, s65, 1"); e("s_add_u32 s60, s60, s61"); e("s_lshl_b32 s60, s60, 10"); e(f"s_add_u32 s60, s60, {X1OFF}")
    e(f"buffer_store_dwordx4 v[{ACC+16}:{ACC+19}], v2, s[32:35], s60 offen sc1")
    e(f"buffer_store_dwordx4 v[{ACC+20}:{ACC+23}], v2, s[32:35], s60 offen offset:1024 sc1")
    if ENV("K2_DUP", "0") == "1":
        e(f"buffer_store_dwordx4 v[{ACC+16}:{ACC+19}], v2, s[32:35], s60 offen")
        e(f"buffer_store_dwordx4 v[{ACC+20}:{ACC+23}], v2, s[32:35], s60 offen offset:1024")
    e(f"v_add_f32 v144, v{ACC}, v{ACC+1}")
    e(f"v_mul_f32 v145, v{ACC}, v{ACC}")
    e(f"v_add_f32 v146, v{ACC+2}, v{ACC+3}")
    e(f"v_mul_f32 v147, v{ACC+1}, v{ACC+1}")
    e(f"v_fmac_f32 v145, v{ACC+2}, v{ACC+2}")
    e(f"v_fmac_f32 v147, v{ACC+3}, v{ACC+3}")
    for r in range(4, 16):
        e(f"v_add_f32 v{144 + 2*(r&1)}, v{144 + 2*(r&1)}, v{ACC+r}")
        e(f"v_fmac_f32 v{145 + 2*(r&1)}, v{ACC+r}, v{ACC+r}")
    e("v_add_f32 v144, v144, v146")
    e("v_add_f32 v145, v145, v147")
    e("v_mov_b32 v146, v144")
    e("v_mov_b32 v147, v145")
    e("s_lshl_b32 s60, s64, 4"); e("s_add_u32 s60, s60, s65")
    e("v_permlane32_swap_b32 v144, v146")
    e("v_permlane32_swap_b32 v145, v147")
    e("s_lshl_b32 s60, s60, 8"); e(f"s_add_u32 s60, s60, {X1STAT}")
    e("v_add_f32 v144, v144, v146")
    e("v_add_f32 v145, v145, v147")
    e("s_mov_b32 exec_hi, 0")
    e("buffer_store_dwordx2 v[144:145], v148, s[32:35], s60 offen sc1")
    e("s_mov_b64 exec, -1")
    T.stamp()
    if ENV("K2_STOP") == "1": e("s_endpgm")

    def colsum():
        e("s_mul_i32 s60, s45, 8*1408*4")
        e("s_lshl_b32 s61, s66, 7")
        e("s_add_u32 s60, s60, s61")
        e(f"s_add_u32 s60, s60, {CS3P}")
        e("s_mov_b32 exec_hi, 0xffff")
        for i in range(8):
            e(f"buffer_load_dwordx4 v[{8+4*i}:{11+4*i}], v2, s[32:35], s60 offen")
            if i < 7: e("s_add_u32 s60, s60, 1408*4")
        e(f"v_add_u32 v6, {L_CS}, v2")
        e("s_waitcnt vmcnt(0)")
        for i in range(1, 8):
            for r in range(4): e(f"v_add_f32 v{8+r}, v{8+r}, v{8+4*i+r}")
        for r in range(4): e(f"ds_add_f32 v6, v{8+r} offset:{4*r}")
        e("s_mov_b64 exec, -1")
    xpub(0)
    colsum()

    ACC, FR = 8, 104
    e("s_mul_i32 s61, s51, 3")
    e("s_add_u32 s67, s66, s61")
    e("s_lshl_b32 s60, s50, 4")
    e("s_lshl_b32 s56, s64, 5"); e("s_add_u32 s56, s56, s60"); e("s_lshl_b32 s56, s56, 10"); e(f"s_add_u32 s56, s56, {X1OFF}")
    e("s_lshl_b32 s57, s67, 5"); e("s_add_u32 s57, s57, s60"); e("s_lshl_b32 s57, s57, 10"); e(f"s_add_u32 s57, s57, {W3F}")
    def w0():
        xwait(0); T.stamp()
    BTW = ENV("K2_BTW", "0") == "1"
    if not BTW: w0()
    gemm(a, "w3", 2, 3, 16, 3, ACC, FR, 56, 57, "s53", 32768, sc_act=" sc1", pace=pace, between=w0 if BTW else None)
    if ENV("K2_FINE") == "1": T.stamp()
    if with_w4 and ENV("K2_W4T", "1") == "1":
        e("s_and_b32 s61, s40, 3"); e("s_lshl_b32 s61, s61, 2"); e("s_add_u32 s61, s61, s45")
        e("s_mul_i32 s62, s41, 172"); e("s_mul_i32 s63, s61, 11"); e("s_add_u32 s62, s62, s63"); e("s_lshl_b32 s62, s62, 10"); e(f"s_add_u32 s62, s62, {W4F}")
        e("v_lshlrev_b32 v6, 7, v1")
        e("buffer_load_dword v163, v6, s[32:35], s62 offen")
        e("s_add_u32 s62, s62, 3072")
        e("buffer_load_dword v163, v6, s[32:35], s62 offen")
    e("v_and_b32 v164, 31, v1")
    e("v_lshrrev_b32 v165, 5, v1")
    e("v_lshlrev_b32 v166, 3, v164")
    e("v_lshl_add_u32 v166, v165, 11, v166")
    e("s_lshl_b32 s60, s64, 12")
    e(f"s_add_u32 s60, s60, {X1STAT}")
    SR = FR + 40
    for j in range(8):
        e(f"buffer_load_dwordx2 v[{SR+2*j}:{SR+2*j+1}], v166, s[32:35], s60 offen offset:{256*j} sc1")
    e(f"v_add_u32 v167, s52, v2")
    e("s_nop 3")
    quads = [(i, q) for i in range(3) for q in range(4)]
    for h in range(2):
        for s_, (i, q) in enumerate(quads[6*h:6*h+6]):
            r = ACC + 16 * (2 * i + 1) + 4 * q
            e(f"ds_write_b128 v3, v[{r}:{r+3}] offset:{s_*1024}")
        sync()
        for s_ in range(6):
            e(f"ds_read_b128 v[{FR+4*s_}:{FR+4*s_+3}], v167 offset:{s_*1024}")
        if h == 0: sync()
        else: e("s_waitcnt lgkmcnt(0)")
        for s_, (i, q) in enumerate(quads[6*h:6*h+6]):
            for r in range(4):
                d = ACC + 32 * i + 4 * q + r
                e(f"v_add_f32 v{d}, v{d}, v{FR+4*s_+r}")
    if ENV("K2_FINE") == "1": T.stamp()
    e("s_waitcnt vmcnt(0)")
    for j in range(1, 8):
        e(f"v_add_f32 v{SR}, v{SR}, v{SR+2*j}")
        e(f"v_add_f32 v{SR+1}, v{SR+1}, v{SR+2*j+1}")
    e(f"v_mov_b32 v{SR+2}, v{SR}")
    e(f"v_mov_b32 v{SR+3}, v{SR+1}")
    e("s_mul_i32 s60, s51, 384")
    e(f"s_add_u32 s60, s60, {L_CS}")
    e(f"v_permlane32_swap_b32 v{SR}, v{SR+2}")
    e(f"v_permlane32_swap_b32 v{SR+1}, v{SR+3}")
    e("v_lshl_add_u32 v166, v165, 4, s60")
    e(f"v_add_f32 v{SR}, v{SR}, v{SR+2}")
    e(f"v_add_f32 v{SR+1}, v{SR+1}, v{SR+3}")
    NMU, C1, C2, IA = SR + 4, SR + 5, SR + 6, SR + 7
    e(f"v_mul_f32 v{NMU}, {f32(-1/512)}, v{SR}")
    e(f"v_mul_f32 v{SR+1}, {f32(1/512)}, v{SR+1}")
    e(f"v_fma_f32 v{SR+1}, -v{NMU}, v{NMU}, v{SR+1}")
    e(f"v_max_f32 v{SR+1}, 0, v{SR+1}")
    e(f"v_add_f32 v{SR+1}, {f32(EPS)}, v{SR+1}")
    e(f"v_rsq_f32 v{SR}, v{SR+1}")
    e("s_mul_i32 s62, s64, 86")
    e(f"v_mul_f32 v{IA}, v{SR+1}, v{SR}")
    e(f"v_mul_f32 v{C1}, {f32(GELU_K1)}, v{SR}")
    e(f"v_mul_f32 v{C2}, v{SR}, v{SR}")
    e(f"v_mul_f32 v{C2}, v{C2}, v{SR}")
    e(f"v_mul_f32 v{C2}, {f32(GELU_K2)}, v{C2}")
    e("s_lshl_b32 s63, s67, 1"); e("s_add_u32 s62, s62, s63"); e("s_lshl_b32 s62, s62, 10"); e(f"s_add_u32 s62, s62, {GOFF}")
    e("s_cmp_ge_u32 s41, 3")
    e("s_cselect_b32 s63, s51, 0")
    for i in range(3):
        Z = ACC + 32 * i; Tm = Z + 16
        if i == 2:
            e("s_cmp_eq_u32 s63, 1")
            e("s_cbranch_scc1 L_k2_w3_done")
        for g in range(4):
            e(f"ds_read_b128 v[{FR+4*g}:{FR+4*g+3}], v166 offset:{128*i + 32*g}")
        e("s_waitcnt lgkmcnt(0)")
        R = range(16)
        for r in R: e(f"v_fmac_f32 v{Z+r}, v{NMU}, v{FR+r}")
        for r in R: e(f"v_mul_f32 v{Tm+r}, v{Z+r}, v{Z+r}")
        for r in R: e(f"v_fma_f32 v{Tm+r}, v{Tm+r}, v{C2}, v{C1}")
        for r in R: e(f"v_mul_f32 v{Tm+r}, v{Tm+r}, v{Z+r}")
        for r in R: e(f"v_exp_f32 v{Tm+r}, v{Tm+r}")
        for r in R: e(f"v_fma_f32 v{Tm+r}, v{Tm+r}, v{IA}, v{IA}")
        for r in R: e(f"v_rcp_f32 v{Tm+r}, v{Tm+r}")
        for r in R: e(f"v_mul_f32 v{Z+r}, v{Z+r}, v{Tm+r}")
        for p in range(8): e(f"v_cvt_pk_bf16_f32 v{Tm+p}, v{Z+2*p}, v{Z+2*p+1}")
        sc = " sc1" if with_w4 else ""
        e(f"buffer_store_dwordx4 v[{Tm}:{Tm+3}], v2, s[32:35], s62 offen offset:{(2048*i) % 4096}{sc}")
        e(f"buffer_store_dwordx4 v[{Tm+4}:{Tm+7}], v2, s[32:35], s62 offen offset:{(2048*i) % 4096 + 1024}{sc}")
        if ENV("K2_DUP", "0") == "1":
            e(f"buffer_store_dwordx4 v[{Tm}:{Tm+3}], v2, s[32:35], s62 offen offset:{(2048*i) % 4096}")
            e(f"buffer_store_dwordx4 v[{Tm+4}:{Tm+7}], v2, s[32:35], s62 offen offset:{(2048*i) % 4096 + 1024}")
        if i == 1: e("s_add_u32 s62, s62, 4096")
    e("L_k2_w3_done:")
    T.stamp()
    if not with_w4: return

    xpub(1)
    if not BTW:
        xwait(1); T.stamp()
    ACC, FR, XR, X1R = 8, 72, 136, 144
    x_tile(XR, 152)
    e("s_lshl_b32 s60, s64, 5"); e("s_lshl_b32 s61, s65, 1"); e("s_add_u32 s60, s60, s61"); e("s_lshl_b32 s60, s60, 10"); e(f"s_add_u32 s60, s60, {X1OFF}")
    e(f"buffer_load_dwordx4 v[{X1R}:{X1R+3}], v2, s[32:35], s60 offen sc1")
    e(f"buffer_load_dwordx4 v[{X1R+4}:{X1R+7}], v2, s[32:35], s60 offen offset:1024 sc1")
    e("s_mul_i32 s60, s45, 22")
    e("s_sub_u32 s55, 86, s60")
    e("s_min_u32 s55, s55, 22")
    e("s_mul_i32 s56, s64, 86"); e("s_add_u32 s56, s56, s60"); e("s_lshl_b32 s56, s56, 10"); e(f"s_add_u32 s56, s56, {GOFF}")
    e("s_mul_i32 s57, s65, 86"); e("s_add_u32 s57, s57, s60"); e("s_lshl_b32 s57, s57, 10"); e(f"s_add_u32 s57, s57, {W4F}")
    signed_stride(53, 50, 86 * 1024)
    signed_stride(54, 51, 86 * 1024)
    def w1():
        xwait(1); T.stamp()
    gemm(a, "w4", 2, 2, 22, 4, ACC, FR, 56, 57, "s53", "s54", s_cnt=55, sc_act=" sc1", pace=pace, between=w1 if BTW else None)
    if ENV("K2_FINE") == "1": T.stamp()
    e("s_nop 7"); e("s_nop 3")
    e("s_mov_b32 s60, 0xffff0000")
    for base in (XR, X1R):
        for p in range(8):
            e(f"v_lshlrev_b32 v{FR+2*p}, 16, v{base+p}")
            e(f"v_and_b32 v{FR+2*p+1}, s60, v{base+p}")
        for r in range(16): e(f"v_add_f32 v{ACC+r}, v{ACC+r}, v{FR+r}")
    e("s_lshl_b32 s60, s45, 3")
    e("s_lshl_b32 s56, s64, 5"); e("s_add_u32 s56, s56, s60"); e("s_lshl_b32 s56, s56, 10"); e(f"s_add_u32 s56, s56, {OOFF}")
    e("s_lshl_b32 s57, s65, 5"); e("s_add_u32 s57, s57, s60"); e("s_lshl_b32 s57, s57, 10"); e(f"s_add_u32 s57, s57, {WOF}")
    signed_stride(53, 50, 32768)
    signed_stride(54, 51, 32768)
    e("s_add_u32 s53, s53, s56")
    e("s_add_u32 s54, s54, s57")
    OR_, WR = 72, 136
    def wload(j):
        r = WR + 8 * (j % 4)
        o = 1024 * (j % 4)
        e(f"buffer_load_dwordx4 v[{r}:{r+3}], v2, s[32:35], s57 offen offset:{o}")
        e(f"buffer_load_dwordx4 v[{r+4}:{r+7}], v2, s[32:35], s54 offen offset:{o}")
    for j in range(4): wload(j)
    e("s_add_u32 s57, s57, 4096"); e("s_add_u32 s54, s54, 4096")
    e("s_lshl_b32 s70, s40, 8")
    e("s_lshl_b32 s60, s45, 5")
    e("s_add_u32 s70, s70, s60")
    e(f"s_add_u32 s70, s70, {OFLAG}")
    e("v_and_b32 v6, 7, v1")
    e("v_lshlrev_b32 v6, 2, v6")
    e("v_bfe_u32 v7, v1, 3, 1")
    e("v_lshl_add_u32 v6, v7, 7, v6")
    e(f"s_mov_b32 s68, {SPIN_MAX}")
    e("s_setprio 0")
    e("L_k2_ow:")
    e("buffer_load_dword v7, v6, s[32:35], s70 offen sc1")
    e("s_waitcnt vmcnt(0)")
    e("v_cmp_eq_u32 vcc, 0, v7")
    e("s_cmp_eq_u64 vcc, 0")
    e("s_cbranch_scc1 L_k2_ow_go")
    e("s_sleep 2")
    e("s_sub_u32 s68, s68, 1")
    e("s_cmp_lg_u32 s68, 0")
    e("s_cbranch_scc1 L_k2_ow")
    e("L_k2_ow_go:")
    e("s_setprio 3")
    if ENV("K2_FINE") == "1": T.stamp()
    for j in range(8):
        if j == 4: e("s_add_u32 s56, s56, 4096"); e("s_add_u32 s53, s53, 4096")
        r = OR_ + 8 * j
        e(f"buffer_load_dwordx4 v[{r}:{r+3}], v2, s[32:35], s56 offen offset:{1024*(j%4)} sc1")
        e(f"buffer_load_dwordx4 v[{r+4}:{r+7}], v2, s[32:35], s53 offen offset:{1024*(j%4)} sc1")
    lds_wait(a, "ad", 13, 8, 6, 7, 68, 69)
    for j in range(1, 4):
        e(f"s_xor_b32 s60, s45, {j}")
        e("s_mul_i32 s60, s60, 12288")
        e(f"s_add_u32 s60, s60, {(j-1)*4096}")
        e(f"v_add_u32 v{2+j}, s60, v2")
    for j in range(8):
        if j < 4: e(f"s_waitcnt vmcnt({2*(7-j) + 2*j})")
        else: e(f"s_waitcnt vmcnt({2*(7-j)})")
        w = WR + 8 * (j % 4); o = OR_ + 8 * j
        for i in range(2):
            for t in range(2):
                d = ACC + 16 * (2 * i + t)
                e(f"v_mfma_f32_32x32x16_bf16 v[{d}:{d+15}], v[{w+4*i}:{w+4*i+3}], v[{o+4*t}:{o+4*t+3}], v[{d}:{d+15}]")
        if j < 4: wload(j + 4)
    e("s_mul_i32 s60, s45, 12288")
    e("v_add_u32 v136, s60, v2")
    e("v_and_b32 v152, 31, v1")
    e("v_lshrrev_b32 v153, 5, v1")
    e("v_lshlrev_b32 v154, 10, v152")
    e("v_lshl_add_u32 v154, v153, 4, v154")
    e("s_nop 7")
    for j in range(1, 4):
        for q in range(4):
            r = ACC + 16 * j + 4 * q
            e(f"ds_write_b128 v{2+j}, v[{r}:{r+3}] offset:{q*1024}")
    sync()
    for i in range(12):
        e(f"ds_read_b128 v[{FR+4*i}:{FR+4*i+3}], v136 offset:{i*1024}")
    for j in range(3):
        e(f"s_waitcnt lgkmcnt({8-4*j})")
        for r in range(16): e(f"v_add_f32 v{ACC+r}, v{ACC+r}, v{FR+16*j+r}")
    for p in range(8): e(f"v_cvt_pk_bf16_f32 v{FR+p}, v{ACC+2*p}, v{ACC+2*p+1}")
    e("s_lshl_b32 s60, s64, 15")
    e("s_lshl_b32 s61, s65, 6")
    e(f"v_permlane32_swap_b32 v{FR}, v{FR+2}")
    e(f"v_permlane32_swap_b32 v{FR+1}, v{FR+3}")
    e(f"v_permlane32_swap_b32 v{FR+4}, v{FR+6}")
    e(f"v_permlane32_swap_b32 v{FR+5}, v{FR+7}")
    e("s_add_u32 s60, s60, s61")
    OST = ENV("K2_OST", "")
    e(f"buffer_store_dwordx4 v[{FR}:{FR+3}], v154, s[28:31], s60 offen{OST}")
    e(f"buffer_store_dwordx4 v[{FR+4}:{FR+7}], v154, s[28:31], s60 offen offset:32{OST}")
    T.stamp()


def gen_k2(with_w4=True):
    a = Asm("k2"); e = a.e
    T = Stamper(a, 72, 1)
    T.stamp()
    e("s_cmp_ge_u32 s2, 256")
    e("s_cbranch_scc1 L_k2_exit")
    e("s_load_dwordx2 s[4:5], s[0:1], 0")
    e("s_load_dwordx2 s[6:7], s[0:1], 64")
    e("s_load_dwordx2 s[20:21], s[0:1], 80")
    e("v_lshrrev_b32 v1, 6, v0")
    e("s_and_b32 s54, s2, 7")
    e("v_readfirstlane_b32 s44, v1")
    e("v_and_b32 v1, 63, v0")
    e("v_lshlrev_b32 v2, 4, v1")
    e("s_lshl_b32 s40, s54, 2")
    e("s_bfe_u32 s54, s2, 0x20003")
    e("s_add_u32 s40, s40, s54")
    e("s_lshr_b32 s41, s2, 5")
    e("s_mov_b32 s45, s44")
    for r in range(4, 8): e(f"v_mov_b32 v{r}, 0")
    e(f"v_add_u32 v3, {L_CS}, v2")
    e("ds_write_b128 v3, v[4:7]")
    e("s_waitcnt lgkmcnt(0)")
    e("s_barrier")
    a.srd(32, 20, WS_USED)
    e("s_cmp_ge_u32 s44, 8")
    e("s_cbranch_scc1 L_k2_b")
    if ENV("K2_NOA") == "1":
        e("s_endpgm")
    (attn_wave64 if Q64 else attn_wave)(a, T)
    T.stamp()
    T.dump(32, 44, 12, 4, 5)
    e("s_endpgm")
    e("L_k2_b:")
    b_waves(a, T, with_w4)
    T.dump(32, 44, 12, 4, 5)
    e("L_k2_exit:")
    e("s_endpgm")
    return a.kernel(vgpr=168, sgpr=96)
```

```python
from common import *

L_K = 0
L_V = 65536
L_ONES = 131072
L_B = L_ONES + 5632
L_CS = L_B + 24576
L_FLG = L_CS + 768
K2_LDS = L_FLG + 256
SPIN_MAX = 20000
BIG = 0x7ff00000
ENV = os.environ.get
FUSE = ENV("K2_FUSE", "1") == "1"
Q64 = ENV("K2_Q64", "1") == "1"


def lds_signal(a, idx, va, vb):
    e = a.e
    e(f"v_mov_b32 v{va}, {L_FLG + 4*idx}")
    e(f"v_mov_b32 v{vb}, 1")
    e("s_mov_b64 exec, 1")
    e(f"ds_add_u32 v{va}, v{vb}")
    e("s_mov_b64 exec, -1")


def lds_wait(a, tag, idx, target, va, vb, s0, s1, sleep=1, setaddr=True):
    e = a.e
    if setaddr: e(f"v_mov_b32 v{va}, {L_FLG + 4*idx}")
    e(f"s_mov_b32 s{s0}, {SPIN_MAX}")
    e(f"L_{a.name}_lw{tag}:")
    e(f"ds_read_b32 v{vb}, v{va}")
    e("s_waitcnt lgkmcnt(0)")
    e(f"v_readfirstlane_b32 s{s1}, v{vb}")
    e(f"s_cmp_ge_u32 s{s1}, {target}")
    e(f"s_cbranch_scc1 L_{a.name}_lw{tag}_go")
    e(f"s_sleep {sleep}")
    e(f"s_sub_u32 s{s0}, s{s0}, 1")
    e(f"s_cmp_lg_u32 s{s0}, 0")
    e(f"s_cbranch_scc1 L_{a.name}_lw{tag}")
    e(f"L_{a.name}_lw{tag}_go:")


def attn_wave(a, T):
    e = a.e; n = a.name
    e("s_lshl_b32 s48, s41, 3")
    e("s_add_u32 s48, s48, s45")
    e("s_lshl_b32 s49, s40, 6")
    e("s_add_u32 s49, s49, s48")
    e("s_lshl_b32 s49, s49, 10")
    e("buffer_load_dwordx4 v[8:11], v2, s[32:35], s49 offen")
    e("v_and_b32 v5, 1, v1")
    e("v_cmp_eq_u32 vcc, 0, v5")
    e("v_mov_b32 v5, 0x3f80")
    e("v_mov_b32 v33, 0"); e("v_mov_b32 v35, 0")
    e("v_cndmask_b32 v32, 0, v5, vcc")
    e("v_mov_b32 v34, v32")
    e("v_lshlrev_b32 v3, 4, v0")
    e(f"v_cmp_gt_u32 vcc, 5632, v3")
    e(f"v_add_u32 v3, {L_ONES}, v3")
    e("s_and_saveexec_b64 s[50:51], vcc")
    e("ds_write_b128 v3, v[32:35]")
    e("s_mov_b64 exec, -1")
    e("v_lshrrev_b32 v5, 5, v1")
    e("v_bfe_u32 v6, v1, 4, 1")
    e("v_xor_b32 v7, v5, v6")
    e("v_and_b32 v3, 15, v1")
    e("v_lshlrev_b32 v3, 3, v3")
    e("v_lshl_add_u32 v3, v7, 7, v3")
    e("v_lshl_add_u32 v3, v6, 16, v3")
    e(f"v_add_u32 v112, {L_V}, v3")
    e("v_xor_b32 v4, 1, v6")
    e("v_lshlrev_b32 v4, 12, v4")
    e("s_mov_b32 s56, 0")
    e("s_lshl_b32 s51, s45, 2")
    e(f"s_add_u32 s51, s51, {L_FLG + 64}")
    e("v_mov_b32 v113, s51")
    e("v_xor_b32 v114, 16, v113")
    e("v_mov_b32 v115, 0")
    e("v_mov_b32 v116, 0")
    e("s_waitcnt lgkmcnt(0)")
    lds_signal(a, 9, 5, 6)
    lds_wait(a, "c0", 9, 12, 5, 6, 51, 52)
    T.stamp()
    e("ds_read_b128 v[88:91], v2")
    e("s_waitcnt vmcnt(0) lgkmcnt(0)")
    e("v_mfma_f32_32x32x16_bf16 v[32:47], v[88:91], v[8:11], 0")
    e("s_nop 7"); e("s_nop 3")
    e("v_max3_f32 v16, v32, v33, v34")
    e("v_max3_f32 v17, v35, v36, v37")
    e("v_max3_f32 v16, v16, v38, v39")
    e("v_max3_f32 v17, v17, v40, v41")
    e("v_max3_f32 v16, v16, v42, v43")
    e("v_max3_f32 v17, v17, v44, v45")
    e("v_max3_f32 v16, v16, v46, v47")
    e(f"L_{n}_setmax:")
    e("v_max_f32 v16, v16, v17")
    e("v_mov_b32 v12, v2")
    e("v_mov_b32 v17, v16")
    e("v_mov_b32 v3, v112")
    e("ds_read_b128 v[88:91], v12")
    e("ds_read_b128 v[92:95], v12 offset:1024")
    e("v_permlane32_swap_b32 v16, v17")
    for u in range(2):
        for t in range(2):
            e(f"ds_read_b64_tr_b16 v[{96+4*u+2*t}:{97+4*u+2*t}], v3 offset:{512*u+256*t}")
    e("v_max_f32 v16, v16, v17")
    e("v_sub_f32 v16, 0, v16")
    for r in range(17, 32): e(f"v_mov_b32 v{r}, v16")
    for r in list(range(68, 88)) + list(range(104, 112)): e(f"v_mov_b32 v{r}, 0")
    e("s_waitcnt lgkmcnt(5)")
    e("v_mfma_f32_32x32x16_bf16 v[32:47], v[88:91], v[8:11], v[16:31]")
    e("s_nop 7")
    e("s_mov_b32 s55, 0")
    e(f"L_{n}_loop:")
    e("s_add_u32 s51, s55, 1")
    e("s_and_b32 s52, s51, s55")
    e("s_cmp_lg_u32 s52, 0")
    e(f"s_cbranch_scc1 L_{n}_nobar")
    e("s_cmp_eq_u32 s55, 0")
    e(f"s_cbranch_scc1 L_{n}_nobar")
    e("s_cmp_eq_u32 s55, 15")
    e(f"s_cbranch_scc1 L_{n}_nobar")
    e("s_bcnt1_i32_b32 s51, s55")
    e("s_lshl_b32 s51, s51, 2")
    e(f"s_add_u32 s51, s51, {L_FLG + 36}")
    e("v_mov_b32 v5, s51")
    lds_wait(a, "c1", 0, 4, 5, 6, 51, 52, setaddr=False)
    e(f"L_{n}_nobar:")
    X = lambda r: e(f"v_exp_f32 v{r}, v{r}")
    fair = ENV("K2_FAIR", "1") == "1"
    for tl in range(4):
        S = 32 + 16 * (tl % 2); Sn = 32 + 16 * ((tl + 1) % 2)
        Kn = 88 + 4 * ((tl + 1) % 2); Knn = 88 + 4 * (tl % 2)
        V = 96 + 8 * (tl % 2); Vp = 96 + 8 * ((tl + 1) % 2)
        e("s_waitcnt lgkmcnt(4)")
        e(f"v_mfma_f32_32x32x16_bf16 v[{Sn}:{Sn+15}], v[{Kn}:{Kn+3}], v[8:11], v[16:31]")
        if fair and tl == 0:
            e("ds_write_b32 v113, v115")
            e("ds_read_b32 v116, v114")
        e(f"ds_read_b128 v[{Knn}:{Knn+3}], v12 offset:{1024*(tl+2)}")
        X(S); X(S + 1); X(S + 2)
        e(f"v_mfma_f32_32x32x16_bf16 v[72:87], v[{Vp+4}:{Vp+7}], v[68:71], v[72:87]")
        for u in range(2):
            for t in range(2):
                e(f"ds_read_b64_tr_b16 v[{Vp+4*u+2*t}:{Vp+4*u+2*t+1}], v3 offset:{1024*(tl+1)+512*u+256*t}")
        if fair and tl == 1:
            e("v_readfirstlane_b32 s51, v116")
            e("v_add_u32 v115, 1, v115")
            e("s_cmp_gt_u32 s55, s51")
            e(f"s_cbranch_scc1 L_{n}_lo")
            e("s_setprio 1")
            e(f"s_branch L_{n}_pd")
            e(f"L_{n}_lo:")
            e("s_setprio 0")
            e(f"L_{n}_pd:")
        for i in range(3, 9): X(S + i)
        for i in range(4): e(f"v_cvt_pk_bf16_f32 v{64+i}, v{S+2*i}, v{S+2*i+1}")
        X(S + 9); X(S + 10)
        e("s_waitcnt lgkmcnt(5)")
        e(f"v_mfma_f32_32x32x16_bf16 v[72:87], v[{V}:{V+3}], v[64:67], v[72:87]")
        for i in range(11, 16): X(S + i)
        if tl == 3:
            e("v_add_u32 v12, 4096, v12")
            e("v_add_u32 v3, v4, v3")
        else:
            e("s_nop 0")
        for i in range(4, 8): e(f"v_cvt_pk_bf16_f32 v{64+i}, v{S+2*i}, v{S+2*i+1}")
    e("s_add_u32 s55, s55, 1")
    e("s_cmp_lt_u32 s55, 16")
    e(f"s_cbranch_scc1 L_{n}_loop")
    e("v_mfma_f32_32x32x16_bf16 v[72:87], v[108:111], v[68:71], v[72:87]")
    T.stamp()
    e("s_lshl_b32 s49, s48, 5")
    e("s_add_u32 s49, s49, s40")
    e("s_lshl_b32 s49, s49, 10")
    e(f"s_add_u32 s49, s49, {OOFF}")
    e("s_waitcnt lgkmcnt(0)")
    e("s_nop 7")
    e("v_mul_f32 v32, 0, v72")
    for r in range(73, 80): e(f"v_fma_f32 v32, v{r}, 0, v32")
    e(f"v_mov_b32 v33, {f32(2.0**60)}")
    e("v_add_f32 v32, v32, v80")
    e("v_cmp_nlt_f32 vcc, v32, v33")
    e("s_cmp_lg_u32 s56, 0")
    e(f"s_cbranch_scc1 L_{n}_store")
    e("s_cmp_eq_u64 vcc, 0")
    e(f"s_cbranch_scc1 L_{n}_store")
    e("s_mov_b32 s56, 1")
    e("s_mov_b32 s55, 0")
    e("v_mov_b32 v12, v2")
    e("v_mov_b32 v16, 0xff800000")
    e("v_mov_b32 v17, 0xff800000")
    e(f"L_{n}_mloop:")
    e("ds_read_b128 v[88:91], v12")
    e("s_waitcnt lgkmcnt(0)")
    e("v_mfma_f32_32x32x16_bf16 v[32:47], v[88:91], v[8:11], 0")
    e("v_add_u32 v12, 1024, v12")
    e("s_nop 7"); e("s_nop 3")
    for i in range(4):
        e(f"v_max3_f32 v16, v16, v{32+4*i}, v{33+4*i}")
        e(f"v_max3_f32 v17, v17, v{34+4*i}, v{35+4*i}")
    e("s_add_u32 s55, s55, 1")
    e("s_cmp_lt_u32 s55, 64")
    e(f"s_cbranch_scc1 L_{n}_mloop")
    e(f"s_branch L_{n}_setmax")
    e(f"L_{n}_store:")
    lds_signal(a, 13, 5, 6)
    e("v_rcp_f32 v80, v80")
    e("s_nop 0")
    for r in range(72, 80): e(f"v_mul_f32 v{r}, v{r}, v80")
    for p in range(4): e(f"v_cvt_pk_bf16_f32 v{64+p}, v{72+2*p}, v{73+2*p}")
    if FUSE:
        e("buffer_store_dwordx4 v[64:67], v2, s[32:35], s49 offen sc1")
        e("s_lshl_b32 s49, s48, 5")
        e("s_add_u32 s49, s49, s40")
        e("s_lshl_b32 s49, s49, 2")
        e(f"s_add_u32 s49, s49, {OFLAG}")
        e("v_mov_b32 v5, 0")
        e("v_mov_b32 v6, 1")
        e("s_waitcnt vmcnt(0)")
        e("s_mov_b64 exec, 1")
        e("buffer_store_dword v6, v5, s[32:35], s49 offen sc1")
        e("s_mov_b64 exec, -1")
    else:
        e("buffer_store_dwordx4 v[64:67], v2, s[32:35], s49 offen")


def attn_wave64(a, T):
    e = a.e; n = a.name
    e("s_and_b32 s46, s45, 3")
    e("s_lshr_b32 s47, s45, 2")
    e("s_lshl_b32 s48, s41, 3")
    e("s_lshl_b32 s49, s46, 1")
    e("s_add_u32 s48, s48, s49")
    e("s_add_u32 s48, s48, s47")
    e("s_xor_b32 s49, s48, 1")
    e("s_lshl_b32 s50, s40, 6")
    e("s_add_u32 s51, s50, s48"); e("s_lshl_b32 s51, s51, 10")
    e("s_add_u32 s52, s50, s49"); e("s_lshl_b32 s52, s52, 10")
    e("buffer_load_dwordx4 v[8:11], v2, s[32:35], s51 offen")
    e("buffer_load_dwordx4 v[12:15], v2, s[32:35], s52 offen")
    e("v_and_b32 v5, 1, v1")
    e("v_cmp_eq_u32 vcc, 0, v5")
    e("v_mov_b32 v5, 0x3f80")
    e("v_mov_b32 v33, 0"); e("v_mov_b32 v35, 0")
    e("v_cndmask_b32 v32, 0, v5, vcc")
    e("v_mov_b32 v34, v32")
    e("v_lshlrev_b32 v3, 4, v0")
    e(f"v_cmp_gt_u32 vcc, 5632, v3")
    e(f"v_add_u32 v3, {L_ONES}, v3")
    e("s_and_saveexec_b64 s[50:51], vcc")
    e("ds_write_b128 v3, v[32:35]")
    e("s_mov_b64 exec, -1")
    e("v_lshrrev_b32 v5, 5, v1")
    e("v_bfe_u32 v6, v1, 4, 1")
    e("v_xor_b32 v7, v5, v6")
    e("v_and_b32 v3, 15, v1")
    e("v_lshlrev_b32 v3, 3, v3")
    e("v_lshl_add_u32 v3, v7, 7, v3")
    e("s_lshl_b32 s53, s47, 15")
    e(f"s_add_u32 s51, s53, {L_V}")
    e("v_mov_b32 v7, s51")
    e(f"v_mov_b32 v160, {L_ONES}")
    e("v_cmp_eq_u32 vcc, 1, v6")
    e("v_xor_b32 v4, 1, v6")
    e("v_lshlrev_b32 v4, 12, v4")
    e("v_cndmask_b32 v7, v7, v160, vcc")
    e("v_add_u32 v160, v7, v3")
    e("v_add_u32 v165, s53, v2")
    e("s_mov_b32 s56, 0")
    e("s_lshl_b32 s51, s45, 2")
    e(f"s_add_u32 s51, s51, {L_FLG + 64}")
    e("v_mov_b32 v161, s51")
    e("v_xor_b32 v162, 16, v161")
    e("v_mov_b32 v163, 0")
    e("v_mov_b32 v164, 0")
    e("s_waitcnt lgkmcnt(0)")
    lds_signal(a, 9, 5, 6)
    lds_wait(a, "c0", 9, 12, 5, 6, 51, 52)
    T.stamp()
    e("ds_read_b128 v[112:115], v165")
    e("s_waitcnt vmcnt(0) lgkmcnt(0)")
    e("v_mfma_f32_32x32x16_bf16 v[32:47], v[112:115], v[8:11], 0")
    e("v_mfma_f32_32x32x16_bf16 v[48:63], v[112:115], v[12:15], 0")
    e("s_nop 7"); e("s_nop 3")
    for (m, S) in ((16, 32), (144, 48)):
        e(f"v_max3_f32 v{m}, v{S}, v{S+1}, v{S+2}")
        e(f"v_max3_f32 v{m+1}, v{S+3}, v{S+4}, v{S+5}")
        e(f"v_max3_f32 v{m}, v{m}, v{S+6}, v{S+7}")
        e(f"v_max3_f32 v{m+1}, v{m+1}, v{S+8}, v{S+9}")
        e(f"v_max3_f32 v{m}, v{m}, v{S+10}, v{S+11}")
        e(f"v_max3_f32 v{m+1}, v{m+1}, v{S+12}, v{S+13}")
        e(f"v_max3_f32 v{m}, v{m}, v{S+14}, v{S+15}")
    e(f"L_{n}_setmax:")
    e("v_max_f32 v16, v16, v17")
    e("v_max_f32 v144, v144, v145")
    e("v_mov_b32 v17, v16")
    e("v_mov_b32 v145, v144")
    e("v_mov_b32 v120, v165")
    e("v_mov_b32 v3, v160")
    e("v_permlane32_swap_b32 v16, v17")
    e("v_permlane32_swap_b32 v144, v145")
    e("ds_read_b128 v[112:115], v120")
    e("ds_read_b128 v[116:119], v120 offset:1024")
    for u in range(2):
        for t in range(2):
            e(f"ds_read_b64_tr_b16 v[{128+4*u+2*t}:{129+4*u+2*t}], v3 offset:{512*u+256*t}")
    e("v_max_f32 v16, v16, v17")
    e("v_max_f32 v144, v144, v145")
    e("v_sub_f32 v16, 0, v16")
    e("v_sub_f32 v144, 0, v144")
    for r in range(17, 32): e(f"v_mov_b32 v{r}, v16")
    for r in range(145, 160): e(f"v_mov_b32 v{r}, v144")
    for r in list(range(76, 112)) + list(range(136, 144)): e(f"v_mov_b32 v{r}, 0")
    e("s_waitcnt lgkmcnt(5)")
    e("v_mfma_f32_32x32x16_bf16 v[32:47], v[112:115], v[8:11], v[16:31]")
    e("s_nop 7")
    e("s_mov_b32 s55, 0")
    e(f"L_{n}_loop:")
    e("s_cmp_eq_u32 s55, 1")
    e(f"s_cbranch_scc1 L_{n}_g")
    e("s_cmp_lg_u32 s55, 3")
    e(f"s_cbranch_scc1 L_{n}_nobar")
    e(f"L_{n}_g:")
    e("s_lshl_b32 s51, s55, 2")
    e(f"s_add_u32 s51, s51, {L_FLG + 36}")
    e("v_mov_b32 v5, s51")
    lds_wait(a, "c1", 0, 4, 5, 6, 51, 52, setaddr=False)
    e(f"L_{n}_nobar:")
    X = lambda r: e(f"v_exp_f32 v{r}, v{r}")
    def CV(d, s): e(f"v_cvt_pk_bf16_f32 v{d}, v{s}, v{s+1}")
    for tl in range(4):
        K = 112 + 4 * (tl % 2); Kn = 112 + 4 * ((tl + 1) % 2)
        V = 128 + 8 * (tl % 2); Vp = 128 + 8 * ((tl + 1) % 2)
        e(f"v_mfma_f32_32x32x16_bf16 v[48:63], v[{K}:{K+3}], v[12:15], v[144:159]")
        if tl in (0, 2):
            e("ds_write_b32 v161, v163")
            e("ds_read_b32 v164, v162")
        e(f"ds_read_b128 v[{K}:{K+3}], v120 offset:{1024*(tl+2)}")
        X(32); X(33); X(34)
        e(f"v_mfma_f32_32x32x16_bf16 v[96:111], v[{Vp+4}:{Vp+7}], v[76:79], v[96:111]")
        for u in range(2):
            for t in range(2):
                e(f"ds_read_b64_tr_b16 v[{Vp+4*u+2*t}:{Vp+4*u+2*t+1}], v3 offset:{1024*(tl+1)+512*u+256*t}")
        if tl in (1, 3):
            e("v_readfirstlane_b32 s51, v164")
            e("v_add_u32 v163, 1, v163")
            e("s_lshl_b32 s52, s55, 1")
            e(f"s_add_u32 s52, s52, {tl >> 1}")
            e("s_cmp_gt_u32 s52, s51")
            e(f"s_cbranch_scc1 L_{n}_lo{tl}")
            e("s_setprio 1")
            e(f"s_branch L_{n}_pd{tl}")
            e(f"L_{n}_lo{tl}:")
            e("s_setprio 0")
            e(f"L_{n}_pd{tl}:")
        for i in range(3, 9): X(32 + i)
        for i in range(4): CV(64 + i, 32 + 2 * i)
        X(41); X(42)
        e("s_waitcnt lgkmcnt(5)")
        e(f"v_mfma_f32_32x32x16_bf16 v[80:95], v[{V}:{V+3}], v[64:67], v[80:95]")
        for i in range(11, 16): X(32 + i)
        X(48)
        for i in range(4, 8): CV(64 + i, 32 + 2 * i)
        X(49); X(50)
        e(f"v_mfma_f32_32x32x16_bf16 v[80:95], v[{V+4}:{V+7}], v[68:71], v[80:95]")
        X(51); X(52); X(53)
        e(f"v_mfma_f32_32x32x16_bf16 v[32:47], v[{Kn}:{Kn+3}], v[8:11], v[16:31]")
        for i in range(6, 9): X(48 + i)
        for i in range(4): CV(72 + i, 48 + 2 * i)
        X(57); X(58)
        e(f"v_mfma_f32_32x32x16_bf16 v[96:111], v[{V}:{V+3}], v[72:75], v[96:111]")
        for i in range(11, 16): X(48 + i)
        if tl == 3:
            e("v_add_u32 v3, v4, v3")
            e("v_add_u32 v120, 4096, v120")
        else:
            e("s_nop 0")
        for i in range(4, 8): CV(72 + i, 48 + 2 * i)
    e("s_add_u32 s55, s55, 1")
    e("s_cmp_lt_u32 s55, 8")
    e(f"s_cbranch_scc1 L_{n}_loop")
    e("v_mfma_f32_32x32x16_bf16 v[96:111], v[140:143], v[76:79], v[96:111]")
    T.stamp()
    e("s_waitcnt lgkmcnt(0)")
    e("s_nop 7"); e("s_nop 3")
    e("v_mul_f32 v32, 0, v80")
    for r in list(range(81, 88)) + list(range(96, 104)): e(f"v_fma_f32 v32, v{r}, 0, v32")
    e(f"v_mov_b32 v33, {f32(2.0**60)}")
    e("v_add_f32 v32, v32, v88")
    e("v_add_f32 v32, v32, v104")
    e("v_cmp_nlt_f32 vcc, v32, v33")
    e("s_cmp_lg_u32 s56, 0")
    e(f"s_cbranch_scc1 L_{n}_comb")
    e("s_cmp_eq_u64 vcc, 0")
    e(f"s_cbranch_scc1 L_{n}_comb")
    e("s_mov_b32 s56, 1")
    e("s_mov_b32 s55, 0")
    e("v_mov_b32 v120, v165")
    for r in (16, 17, 144, 145): e(f"v_mov_b32 v{r}, 0xff800000")
    e(f"L_{n}_mloop:")
    e("ds_read_b128 v[112:115], v120")
    e("s_waitcnt lgkmcnt(0)")
    e("v_mfma_f32_32x32x16_bf16 v[32:47], v[112:115], v[8:11], 0")
    e("v_mfma_f32_32x32x16_bf16 v[48:63], v[112:115], v[12:15], 0")
    e("v_add_u32 v120, 1024, v120")
    e("s_nop 7"); e("s_nop 3")
    for (m, S) in ((16, 32), (144, 48)):
        for i in range(4):
            e(f"v_max3_f32 v{m}, v{m}, v{S+4*i}, v{S+1+4*i}")
            e(f"v_max3_f32 v{m+1}, v{m+1}, v{S+2+4*i}, v{S+3+4*i}")
    e("s_add_u32 s55, s55, 1")
    e("s_cmp_lt_u32 s55, 32")
    e(f"s_cbranch_scc1 L_{n}_mloop")
    e(f"s_branch L_{n}_setmax")
    e(f"L_{n}_comb:")
    e("s_lshl_b32 s51, s47, 2")
    e(f"s_add_u32 s51, s51, {L_FLG + 56}")
    e("v_mov_b32 v5, s51")
    e("v_mov_b32 v6, 1")
    e("s_mov_b64 exec, 1")
    e("ds_add_u32 v5, v6")
    e("s_mov_b64 exec, -1")
    e("v_mov_b32 v105, v144")
    e("s_mul_i32 s51, s46, 3072")
    e(f"s_add_u32 s54, s51, {L_V + 8192}")
    e("s_add_u32 s51, s54, s53")
    e("v_add_u32 v3, s51, v2")
    lds_wait(a, "hd", 0, 4, 5, 6, 51, 52, setaddr=False)
    e("ds_write_b128 v3, v[96:99]")
    e("ds_write_b128 v3, v[100:103] offset:1024")
    e("ds_write_b128 v3, v[104:107] offset:2048")
    e("s_lshl_b32 s51, s45, 2")
    e(f"s_add_u32 s51, s51, {L_FLG}")
    e("v_mov_b32 v5, s51")
    e("v_mov_b32 v6, 1")
    e("s_waitcnt lgkmcnt(0)")
    e("ds_write_b32 v5, v6")
    e("v_xor_b32 v5, 16, v5")
    e("v_xor_b32 v3, 0x8000, v3")
    lds_wait(a, "pr", 0, 1, 5, 6, 51, 52, setaddr=False)
    e("ds_read_b128 v[96:99], v3")
    e("ds_read_b128 v[100:103], v3 offset:1024")
    e("ds_read_b128 v[104:107], v3 offset:2048")
    e("s_lshl_b32 s49, s48, 5")
    e("s_add_u32 s49, s49, s40")
    e("s_lshl_b32 s50, s49, 2")
    e(f"s_add_u32 s50, s50, {OFLAG}")
    e("s_lshl_b32 s49, s49, 10")
    e(f"s_add_u32 s49, s49, {OOFF}")
    e("s_waitcnt lgkmcnt(0)")
    lds_signal(a, 13, 5, 6)
    e("v_min_f32 v32, v16, v105")
    e("v_sub_f32 v33, v32, v16")
    e("v_sub_f32 v34, v32, v105")
    e("v_exp_f32 v33, v33")
    e("v_exp_f32 v34, v34")
    e("s_nop 0")
    e("v_mul_f32 v88, v88, v33")
    e("v_fmac_f32 v88, v104, v34")
    e("v_rcp_f32 v88, v88")
    e("s_nop 0")
    e("v_mul_f32 v33, v33, v88")
    e("v_mul_f32 v34, v34, v88")
    for i in range(8): e(f"v_mul_f32 v{80+i}, v{80+i}, v33")
    for i in range(8): e(f"v_fmac_f32 v{80+i}, v{96+i}, v34")
    for p in range(4): e(f"v_cvt_pk_bf16_f32 v{64+p}, v{80+2*p}, v{81+2*p}")
    e("buffer_store_dwordx4 v[64:67], v2, s[32:35], s49 offen sc1")
    e("v_mov_b32 v5, 0")
    e("v_mov_b32 v6, 1")
    e("s_waitcnt vmcnt(0)")
    e("s_mov_b64 exec, 1")
    e("buffer_store_dword v6, v5, s[32:35], s50 offen sc1")
    e("s_mov_b64 exec, -1")


def gemm(a, tag, nact, nw, N, D, acc, fr, s_act, s_w, st_act, st_w, s_cnt=None, sc_act="", pace=None, hook=None, hook_step=None, noinit=False, between=None):
    e = a.e
    nf = nact + nw
    def F(r, i): return fr + 4 * (nf * r + i)
    def issue(r, part=3):
        if part != 3:
            for t in range(nact if part == 1 else 0):
                e(f"s_add_u32 s62, s{s_act}, {1024*r}")
                if t: e(f"s_add_u32 s62, s62, {st_act}")
                e(f"buffer_load_dwordx4 v[{F(r,t)}:{F(r,t)+3}], v2, s[32:35], s62 offen{sc_act}")
            for i in range(nw if part == 2 else 0):
                e(f"s_add_u32 s62, s{s_w}, {1024*r}")
                if i: e(f"s_add_u32 s62, s62, {st_w if isinstance(st_w, str) else i*st_w}")
                e(f"buffer_load_dwordx4 v[{F(r,nact+i)}:{F(r,nact+i)+3}], v2, s[32:35], s62 offen")
            return
        if s_cnt is not None:
            e(f"s_cmp_gt_i32 s{s_cnt}, 0")
            e(f"s_cselect_b32 s60, s{s_act}, s59")
            e(f"s_cselect_b32 s61, s{s_w}, s59")
            e(f"s_sub_i32 s{s_cnt}, s{s_cnt}, 1")
            sa, sw = 60, 61
        else:
            sa, sw = s_act, s_w
        for t in range(nact):
            so = f"s{sa}"
            if t:
                e(f"s_add_u32 s62, s{sa}, {st_act if isinstance(st_act, str) else t*st_act}"); so = "s62"
            e(f"buffer_load_dwordx4 v[{F(r,t)}:{F(r,t)+3}], v2, s[32:35], {so} offen{sc_act}")
        for i in range(nw):
            so = f"s{sw}"
            if i:
                e(f"s_add_u32 s62, s{sw}, {st_w if isinstance(st_w, str) else i*st_w}"); so = "s62"
            e(f"buffer_load_dwordx4 v[{F(r,nact+i)}:{F(r,nact+i)+3}], v2, s[32:35], {so} offen")
        e(f"s_add_u32 s{s_act}, s{s_act}, 1024")
        e(f"s_add_u32 s{s_w}, s{s_w}, 1024")
    def step(j, first=False):
        r = j % D
        if between and j < D:
            e(f"s_waitcnt vmcnt({nact*(D-1-j) + nf*min(j, max(N-D, 0))})")
        else:
            e(f"s_waitcnt vmcnt({nf*min(D-1, N-1-j)})")
        if hook_step: hook_step(j)
        more = j + D < N
        il = ENV("K2_IL", "1") == "1" and more
        if il:
            if s_cnt is not None:
                e(f"s_cmp_gt_i32 s{s_cnt}, 0")
                e(f"s_cselect_b32 s60, s{s_act}, s59")
                e(f"s_cselect_b32 s61, s{s_w}, s59")
                e(f"s_sub_i32 s{s_cnt}, s{s_cnt}, 1")
                sa, sw = 60, 61
            else:
                sa, sw = s_act, s_w
        def ld_w(i):
            so = f"s{sw}"
            if i:
                e(f"s_add_u32 s62, s{sw}, {st_w if isinstance(st_w, str) else i*st_w}"); so = "s62"
            e(f"buffer_load_dwordx4 v[{F(r,nact+i)}:{F(r,nact+i)+3}], v2, s[32:35], {so} offen")
        def ld_a(t):
            so = f"s{sa}"
            if t:
                e(f"s_add_u32 s62, s{sa}, {st_act if isinstance(st_act, str) else t*st_act}"); so = "s62"
            e(f"buffer_load_dwordx4 v[{F(r,t)}:{F(r,t)+3}], v2, s[32:35], {so} offen{sc_act}")
        mp = ENV("K2_MPRIO", "0")
        if mp: e(f"s_setprio {mp}")
        for i in range(nw):
            for t in range(nact):
                d = acc + 16 * (i * nact + t)
                cc = "0" if first else f"v[{d}:{d+15}]"
                e(f"v_mfma_f32_32x32x16_bf16 v[{d}:{d+15}], v[{F(r,nact+i)}:{F(r,nact+i)+3}], v[{F(r,t)}:{F(r,t)+3}], {cc}")
                did = False
                if il:
                    if t == nact - 1: ld_w(i); did = True
                    if i == nw - 1: ld_a(t); did = True
                if pace and not did: e(pace)
        if mp: e("s_setprio 3")
        if il:
            e(f"s_add_u32 s{s_act}, s{s_act}, 1024")
            e(f"s_add_u32 s{s_w}, s{s_w}, 1024")
        elif more: issue(r)
    if s_cnt is not None: e(f"s_mov_b32 s59, {BIG}")
    if between:
        for r in range(D): issue(r, 2)
        between()
        for r in range(D): issue(r, 1)
        e(f"s_add_u32 s{s_act}, s{s_act}, {1024*D}")
        e(f"s_add_u32 s{s_w}, s{s_w}, {1024*D}")
        if s_cnt is not None: e(f"s_sub_i32 s{s_cnt}, s{s_cnt}, {D}")
        for j in range(D): step(j, first=(j == 0 and not noinit))
        j0 = D
    else:
        for r in range(D): issue(r)
        if hook: hook(nf * D)
        step(0, not noinit)
        j0 = 1
    m = (N - j0 - D) // D
    j = j0
    if m >= 2:
        e(f"s_mov_b32 s58, {m}")
        e(f"L_{a.name}_{tag}_loop:")
        for jj in range(j0, j0 + D): step(jj)
        e("s_sub_u32 s58, s58, 1")
        e("s_cmp_lg_u32 s58, 0")
        e(f"s_cbranch_scc1 L_{a.name}_{tag}_loop")
        j = j0 + m * D
    while j < N:
        step(j); j += 1


def b_waves(a, T, with_w4):
    e = a.e
    pace = ENV("K2_PACE", "") or None
    st = {"n": 0}
    def sync():
        st["n"] += 1
        e("s_waitcnt lgkmcnt(0)")
        lds_signal(a, 8, 6, 7)
        lds_wait(a, f"sy{st['n']}", 8, 4 * st["n"], 6, 7, 68, 69, setaddr=False)

    e("s_sub_u32 s45, s44, 8")
    a.srd(24, 4, 2048 * 1024)
    a.srd(28, 6, 2048 * 1024)
    e("s_lshl_b32 s46, s40, 16")
    e("s_lshl_b32 s47, s45, 10")
    e("s_add_u32 s46, s46, s47")
    e(f"s_add_u32 s46, s46, {KOFF}")
    def kv(t0, cnt):
        for i in range(cnt):
            off = (t0 + 4 * i) * 1024
            e(f"s_add_u32 m0, s47, {L_K + off}")
            e(f"s_add_u32 s48, s46, {off}")
            e("buffer_load_dwordx4 v2, s[32:35], s48 offen lds")
            e(f"s_add_u32 m0, s47, {L_V + off}")
            e(f"s_add_u32 s48, s46, {off + VOFF - KOFF}")
            e("buffer_load_dwordx4 v2, s[32:35], s48 offen lds")
    OLD = ENV("K2_ORDER", "old") == "old"
    kv(0, 2)
    if Q64:
        kv(32, 2); kv(8, 2); kv(40, 2)
        e("s_waitcnt vmcnt(8)")
        lds_signal(a, 9, 6, 7)
    elif OLD:
        kv(8, 6)
        e("s_waitcnt vmcnt(12)")
        lds_signal(a, 9, 6, 7)
    e("s_setprio %s" % ENV("K2_PRIO", "3"))
    T.n = 1
    T.stamp()
    if ENV("K2_NOB") == "1":
        kv(16, 4); kv(48, 4); e("s_waitcnt vmcnt(0)")
        for i in (10, 11, 12): lds_signal(a, i, 6, 7)
        e("s_endpgm")

    e("s_and_b32 s50, s45, 1")
    e("s_lshr_b32 s51, s45, 1")
    e("s_lshl_b32 s64, s40, 1"); e("s_add_u32 s64, s64, s50")
    e("s_lshl_b32 s65, s41, 1"); e("s_add_u32 s65, s65, s51")
    for j in range(1, 4):
        e(f"s_xor_b32 s60, s45, {j}")
        e("s_mul_i32 s60, s60, 6144")
        e(f"s_add_u32 s60, s60, {L_B + (j-1)*2048}")
        e(f"v_add_u32 v{2+j}, s60, v2")
    e("s_mul_i32 s52, s45, 6144")
    e(f"s_add_u32 s52, s52, {L_B}")

    def signed_stride(sreg, bit_sreg, stride):
        e(f"s_mov_b32 s{sreg}, {stride}")
        e(f"s_cmp_eq_u32 s{bit_sreg}, 1")
        e(f"s_cselect_b32 s{sreg}, {(-stride) & 0xffffffff}, s{sreg}")

    def x_tile(dst, vt):
        e("s_lshl_b32 s60, s64, 15")
        e("s_lshl_b32 s61, s65, 6")
        e("s_add_u32 s60, s60, s61")
        e(f"v_and_b32 v{vt}, 31, v1")
        e(f"v_lshrrev_b32 v{vt+1}, 5, v1")
        e(f"v_lshlrev_b32 v{vt+2}, 10, v{vt}")
        e(f"v_lshl_add_u32 v{vt+2}, v{vt+1}, 3, v{vt+2}")
        for g in range(4):
            e(f"buffer_load_dwordx2 v[{dst+2*g}:{dst+2*g+1}], v{vt+2}, s[24:27], s60 offen offset:{16*g}")

    def reduce22(ACC, TMP):
        e("s_nop 7"); e("s_nop 3")
        e(f"v_add_u32 v{TMP+24}, s52, v2")
        for h in range(2):
            for j in range(1, 4):
                for q in range(2):
                    r = ACC + 16 * j + 8 * h + 4 * q
                    e(f"ds_write_b128 v{2+j}, v[{r}:{r+3}] offset:{q*1024}")
            sync()
            for i in range(6):
                e(f"ds_read_b128 v[{TMP+4*i}:{TMP+4*i+3}], v{TMP+24} offset:{i*1024}")
            if h == 0:
                sync()
            else:
                e("s_waitcnt lgkmcnt(0)")
            for j in range(3):
                for r in range(8):
                    e(f"v_add_f32 v{ACC+8*h+r}, v{ACC+8*h+r}, v{TMP+8*j+r}")

    def xsync(ph, during=None):
        xpub(ph)
        if during: during()
        xwait(ph)

    def xpub(ph):
        e("s_waitcnt vmcnt(0)")
        e("s_lshl_b32 s70, s40, 8")
        e(f"s_add_u32 s70, s70, {FLAGS + 128*ph}")
        e("s_lshl_b32 s61, s41, 2")
        e("s_add_u32 s61, s61, s45")
        e("s_lshl_b32 s61, s61, 2")
        e("v_mov_b32 v6, s61")
        e("v_mov_b32 v7, 1")
        e("s_mov_b64 exec, 1")
        e("buffer_store_dword v7, v6, s[32:35], s70 offen sc1")
        e("s_mov_b64 exec, -1")

    def xwait(ph):
        e("v_and_b32 v6, 31, v1")
        e("v_lshlrev_b32 v6, 2, v6")
        e(f"s_mov_b32 s68, {SPIN_MAX}")
        e(f"L_k2_xs{ph}:")
        e("buffer_load_dword v7, v6, s[32:35], s70 offen sc1")
        e("s_waitcnt vmcnt(0)")
        e("v_cmp_eq_u32 vcc, 0, v7")
        e("s_cmp_eq_u64 vcc, 0")
        e(f"s_cbranch_scc1 L_k2_xs{ph}_go")
        e("s_sleep 2")
        e("s_sub_u32 s68, s68, 1")
        e("s_cmp_lg_u32 s68, 0")
        e(f"s_cbranch_scc1 L_k2_xs{ph}")
        e(f"L_k2_xs{ph}_go:")

    ACC, FR, XR = 8, 72, 136
    x_tile(XR, 146)
    e("s_lshl_b32 s61, s64, 8")
    e(f"s_add_u32 s61, s61, {STAT}")
    e("v_lshlrev_b32 v148, 3, v146")
    e("buffer_load_dwordx2 v[144:145], v148, s[32:35], s61 offen")
    e("s_lshl_b32 s60, s45, 3")
    e("s_lshl_b32 s56, s64, 5"); e("s_add_u32 s56, s56, s60"); e("s_lshl_b32 s56, s56, 10"); e(f"s_add_u32 s56, s56, {HOFF}")
    e("s_lshl_b32 s57, s65, 5"); e("s_add_u32 s57, s57, s60"); e("s_lshl_b32 s57, s57, 10"); e(f"s_add_u32 s57, s57, {W2F}")
    signed_stride(53, 50, 32768)
    signed_stride(54, 51, 32768)
    def hook(ny):
        if OLD:
            e(f"s_waitcnt vmcnt({ny + 5})")
            lds_signal(a, 10, 6, 7); lds_signal(a, 11, 6, 7)
            return
        kv(8, 2)
        e(f"s_waitcnt vmcnt({ny + 5 + 4})")
        lds_signal(a, 9, 6, 7)
    def hook_step(j):
        if j == 4 and not OLD: lds_signal(a, 10, 6, 7)
    gemm(a, "w2", 2, 2, 8, 4, ACC, FR, 56, 57, "s53", "s54", pace=pace, hook=hook, hook_step=hook_step)
    if ENV("K2_FINE") == "1": T.stamp()
    if Q64:
        kv(16, 4); kv(48, 4)
    else:
        if not OLD: kv(16, 4)
        kv(32, 8)
    e("s_mul_i32 s66, s41, 5")
    e("s_min_u32 s60, s41, 3")
    e("s_add_u32 s66, s66, s60")
    e("s_and_b32 s61, s40, 3"); e("s_lshl_b32 s61, s61, 2"); e("s_add_u32 s61, s61, s45")
    e("s_lshl_b32 s62, s66, 5"); e("s_mul_i32 s63, s61, 12"); e("s_add_u32 s62, s62, s63"); e("s_lshl_b32 s62, s62, 10"); e(f"s_add_u32 s62, s62, {W3F}")
    e("v_lshlrev_b32 v6, 7, v1")
    e("buffer_load_dword v149, v6, s[32:35], s62 offen")
    e("s_add_u32 s62, s62, 4096")
    e("buffer_load_dword v149, v6, s[32:35], s62 offen")
    reduce22(ACC, FR)
    if ENV("K2_FINE") == "1": T.stamp()
    if not OLD:
        e("s_waitcnt vmcnt(18)")
        lds_signal(a, 11, 6, 7)
    e("s_waitcnt vmcnt(2)")
    lds_signal(a, 12, 6, 7)
    U = FR
    e("v_mul_f32 v146, v144, v145")
    e("s_mov_b32 s60, 0xffff0000")
    for p in range(8):
        e(f"v_lshlrev_b32 v{U+2*p}, 16, v{XR+p}")
        e(f"v_and_b32 v{U+2*p+1}, s60, v{XR+p}")
    for r in range(16): e(f"v_sub_f32 v{ACC+r}, v{ACC+r}, v146")
    for r in range(16): e(f"v_fmac_f32 v{ACC+r}, v{U+r}, v145")
    for p in range(8): e(f"v_cvt_pk_bf16_f32 v{ACC+16+p}, v{ACC+2*p}, v{ACC+2*p+1}")
    e("s_lshl_b32 s60, s64, 5"); e("s_lshl_b32 s61, s65, 1"); e("s_add_u32 s60, s60, s61"); e("s_lshl_b32 s60, s60, 10"); e(f"s_add_u32 s60, s60, {X1OFF}")
    e(f"buffer_store_dwordx4 v[{ACC+16}:{ACC+19}], v2, s[32:35], s60 offen sc1")
    e(f"buffer_store_dwordx4 v[{ACC+20}:{ACC+23}], v2, s[32:35], s60 offen offset:1024 sc1")
    if ENV("K2_DUP", "0") == "1":
        e(f"buffer_store_dwordx4 v[{ACC+16}:{ACC+19}], v2, s[32:35], s60 offen")
        e(f"buffer_store_dwordx4 v[{ACC+20}:{ACC+23}], v2, s[32:35], s60 offen offset:1024")
    e(f"v_add_f32 v144, v{ACC}, v{ACC+1}")
    e(f"v_mul_f32 v145, v{ACC}, v{ACC}")
    e(f"v_add_f32 v146, v{ACC+2}, v{ACC+3}")
    e(f"v_mul_f32 v147, v{ACC+1}, v{ACC+1}")
    e(f"v_fmac_f32 v145, v{ACC+2}, v{ACC+2}")
    e(f"v_fmac_f32 v147, v{ACC+3}, v{ACC+3}")
    for r in range(4, 16):
        e(f"v_add_f32 v{144 + 2*(r&1)}, v{144 + 2*(r&1)}, v{ACC+r}")
        e(f"v_fmac_f32 v{145 + 2*(r&1)}, v{ACC+r}, v{ACC+r}")
    e("v_add_f32 v144, v144, v146")
    e("v_add_f32 v145, v145, v147")
    e("v_mov_b32 v146, v144")
    e("v_mov_b32 v147, v145")
    e("s_lshl_b32 s60, s64, 4"); e("s_add_u32 s60, s60, s65")
    e("v_permlane32_swap_b32 v144, v146")
    e("v_permlane32_swap_b32 v145, v147")
    e("s_lshl_b32 s60, s60, 8"); e(f"s_add_u32 s60, s60, {X1STAT}")
    e("v_add_f32 v144, v144, v146")
    e("v_add_f32 v145, v145, v147")
    e("s_mov_b32 exec_hi, 0")
    e("buffer_store_dwordx2 v[144:145], v148, s[32:35], s60 offen sc1")
    e("s_mov_b64 exec, -1")
    T.stamp()
    if ENV("K2_STOP") == "1": e("s_endpgm")

    def colsum():
        e("s_mul_i32 s60, s45, 8*1408*4")
        e("s_lshl_b32 s61, s66, 7")
        e("s_add_u32 s60, s60, s61")
        e(f"s_add_u32 s60, s60, {CS3P}")
        e("s_mov_b32 exec_hi, 0xffff")
        for i in range(8):
            e(f"buffer_load_dwordx4 v[{8+4*i}:{11+4*i}], v2, s[32:35], s60 offen")
            if i < 7: e("s_add_u32 s60, s60, 1408*4")
        e(f"v_add_u32 v6, {L_CS}, v2")
        e("s_waitcnt vmcnt(0)")
        for i in range(1, 8):
            for r in range(4): e(f"v_add_f32 v{8+r}, v{8+r}, v{8+4*i+r}")
        for r in range(4): e(f"ds_add_f32 v6, v{8+r} offset:{4*r}")
        e("s_mov_b64 exec, -1")
    xpub(0)
    colsum()

    ACC, FR = 8, 104
    e("s_mul_i32 s61, s51, 3")
    e("s_add_u32 s67, s66, s61")
    e("s_lshl_b32 s60, s50, 4")
    e("s_lshl_b32 s56, s64, 5"); e("s_add_u32 s56, s56, s60"); e("s_lshl_b32 s56, s56, 10"); e(f"s_add_u32 s56, s56, {X1OFF}")
    e("s_lshl_b32 s57, s67, 5"); e("s_add_u32 s57, s57, s60"); e("s_lshl_b32 s57, s57, 10"); e(f"s_add_u32 s57, s57, {W3F}")
    def w0():
        xwait(0); T.stamp()
    BTW = ENV("K2_BTW", "0") == "1"
    if not BTW: w0()
    gemm(a, "w3", 2, 3, 16, 3, ACC, FR, 56, 57, "s53", 32768, sc_act=" sc1", pace=pace, between=w0 if BTW else None)
    if ENV("K2_FINE") == "1": T.stamp()
    if with_w4 and ENV("K2_W4T", "0") == "1":
        e("s_and_b32 s61, s40, 3"); e("s_lshl_b32 s61, s61, 2"); e("s_add_u32 s61, s61, s45")
        e("s_mul_i32 s62, s41, 172"); e("s_mul_i32 s63, s61, 11"); e("s_add_u32 s62, s62, s63"); e("s_lshl_b32 s62, s62, 10"); e(f"s_add_u32 s62, s62, {W4F}")
        e("v_lshlrev_b32 v6, 7, v1")
        e("buffer_load_dword v163, v6, s[32:35], s62 offen")
        e("s_add_u32 s62, s62, 3072")
        e("buffer_load_dword v163, v6, s[32:35], s62 offen")
    e("v_and_b32 v164, 31, v1")
    e("v_lshrrev_b32 v165, 5, v1")
    e("v_lshlrev_b32 v166, 3, v164")
    e("v_lshl_add_u32 v166, v165, 11, v166")
    e("s_lshl_b32 s60, s64, 12")
    e(f"s_add_u32 s60, s60, {X1STAT}")
    SR = FR + 40
    for j in range(8):
        e(f"buffer_load_dwordx2 v[{SR+2*j}:{SR+2*j+1}], v166, s[32:35], s60 offen offset:{256*j} sc1")
    e(f"v_add_u32 v167, s52, v2")
    e("s_nop 3")
    quads = [(i, q) for i in range(3) for q in range(4)]
    for h in range(2):
        for s_, (i, q) in enumerate(quads[6*h:6*h+6]):
            r = ACC + 16 * (2 * i + 1) + 4 * q
            e(f"ds_write_b128 v3, v[{r}:{r+3}] offset:{s_*1024}")
        sync()
        for s_ in range(6):
            e(f"ds_read_b128 v[{FR+4*s_}:{FR+4*s_+3}], v167 offset:{s_*1024}")
        if h == 0: sync()
        else: e("s_waitcnt lgkmcnt(0)")
        for s_, (i, q) in enumerate(quads[6*h:6*h+6]):
            for r in range(4):
                d = ACC + 32 * i + 4 * q + r
                e(f"v_add_f32 v{d}, v{d}, v{FR+4*s_+r}")
    if ENV("K2_FINE") == "1": T.stamp()
    e("s_waitcnt vmcnt(0)")
    for j in range(1, 8):
        e(f"v_add_f32 v{SR}, v{SR}, v{SR+2*j}")
        e(f"v_add_f32 v{SR+1}, v{SR+1}, v{SR+2*j+1}")
    e(f"v_mov_b32 v{SR+2}, v{SR}")
    e(f"v_mov_b32 v{SR+3}, v{SR+1}")
    e("s_mul_i32 s60, s51, 384")
    e(f"s_add_u32 s60, s60, {L_CS}")
    e(f"v_permlane32_swap_b32 v{SR}, v{SR+2}")
    e(f"v_permlane32_swap_b32 v{SR+1}, v{SR+3}")
    e("v_lshl_add_u32 v166, v165, 4, s60")
    e(f"v_add_f32 v{SR}, v{SR}, v{SR+2}")
    e(f"v_add_f32 v{SR+1}, v{SR+1}, v{SR+3}")
    NMU, C1, C2, IA = SR + 4, SR + 5, SR + 6, SR + 7
    e(f"v_mul_f32 v{NMU}, {f32(-1/512)}, v{SR}")
    e(f"v_mul_f32 v{SR+1}, {f32(1/512)}, v{SR+1}")
    e(f"v_fma_f32 v{SR+1}, -v{NMU}, v{NMU}, v{SR+1}")
    e(f"v_max_f32 v{SR+1}, 0, v{SR+1}")
    e(f"v_add_f32 v{SR+1}, {f32(EPS)}, v{SR+1}")
    e(f"v_rsq_f32 v{SR}, v{SR+1}")
    e("s_mul_i32 s62, s64, 86")
    e(f"v_mul_f32 v{IA}, v{SR+1}, v{SR}")
    e(f"v_mul_f32 v{C1}, {f32(GELU_K1)}, v{SR}")
    e(f"v_mul_f32 v{C2}, v{SR}, v{SR}")
    e(f"v_mul_f32 v{C2}, v{C2}, v{SR}")
    e(f"v_mul_f32 v{C2}, {f32(GELU_K2)}, v{C2}")
    e("s_lshl_b32 s63, s67, 1"); e("s_add_u32 s62, s62, s63"); e("s_lshl_b32 s62, s62, 10"); e(f"s_add_u32 s62, s62, {GOFF}")
    e("s_cmp_ge_u32 s41, 3")
    e("s_cselect_b32 s63, s51, 0")
    for i in range(3):
        Z = ACC + 32 * i; Tm = Z + 16
        if i == 2:
            e("s_cmp_eq_u32 s63, 1")
            e("s_cbranch_scc1 L_k2_w3_done")
        for g in range(4):
            e(f"ds_read_b128 v[{FR+4*g}:{FR+4*g+3}], v166 offset:{128*i + 32*g}")
        e("s_waitcnt lgkmcnt(0)")
        R = range(16)
        for r in R: e(f"v_fmac_f32 v{Z+r}, v{NMU}, v{FR+r}")
        for r in R: e(f"v_mul_f32 v{Tm+r}, v{Z+r}, v{Z+r}")
        for r in R: e(f"v_fma_f32 v{Tm+r}, v{Tm+r}, v{C2}, v{C1}")
        for r in R: e(f"v_mul_f32 v{Tm+r}, v{Tm+r}, v{Z+r}")
        for r in R: e(f"v_exp_f32 v{Tm+r}, v{Tm+r}")
        for r in R: e(f"v_fma_f32 v{Tm+r}, v{Tm+r}, v{IA}, v{IA}")
        for r in R: e(f"v_rcp_f32 v{Tm+r}, v{Tm+r}")
        for r in R: e(f"v_mul_f32 v{Z+r}, v{Z+r}, v{Tm+r}")
        for p in range(8): e(f"v_cvt_pk_bf16_f32 v{Tm+p}, v{Z+2*p}, v{Z+2*p+1}")
        sc = " sc1" if with_w4 else ""
        e(f"buffer_store_dwordx4 v[{Tm}:{Tm+3}], v2, s[32:35], s62 offen offset:{(2048*i) % 4096}{sc}")
        e(f"buffer_store_dwordx4 v[{Tm+4}:{Tm+7}], v2, s[32:35], s62 offen offset:{(2048*i) % 4096 + 1024}{sc}")
        if ENV("K2_DUP", "0") == "1":
            e(f"buffer_store_dwordx4 v[{Tm}:{Tm+3}], v2, s[32:35], s62 offen offset:{(2048*i) % 4096}")
            e(f"buffer_store_dwordx4 v[{Tm+4}:{Tm+7}], v2, s[32:35], s62 offen offset:{(2048*i) % 4096 + 1024}")
        if i == 1: e("s_add_u32 s62, s62, 4096")
    e("L_k2_w3_done:")
    T.stamp()
    if not with_w4: return

    xpub(1)
    if not BTW:
        xwait(1); T.stamp()
    ACC, FR, XR, X1R = 8, 72, 136, 144
    x_tile(XR, 152)
    e("s_lshl_b32 s60, s64, 5"); e("s_lshl_b32 s61, s65, 1"); e("s_add_u32 s60, s60, s61"); e("s_lshl_b32 s60, s60, 10"); e(f"s_add_u32 s60, s60, {X1OFF}")
    e(f"buffer_load_dwordx4 v[{X1R}:{X1R+3}], v2, s[32:35], s60 offen sc1")
    e(f"buffer_load_dwordx4 v[{X1R+4}:{X1R+7}], v2, s[32:35], s60 offen offset:1024 sc1")
    e("s_mul_i32 s60, s45, 22")
    e("s_sub_u32 s55, 86, s60")
    e("s_min_u32 s55, s55, 22")
    e("s_mul_i32 s56, s64, 86"); e("s_add_u32 s56, s56, s60"); e("s_lshl_b32 s56, s56, 10"); e(f"s_add_u32 s56, s56, {GOFF}")
    e("s_mul_i32 s57, s65, 86"); e("s_add_u32 s57, s57, s60"); e("s_lshl_b32 s57, s57, 10"); e(f"s_add_u32 s57, s57, {W4F}")
    signed_stride(53, 50, 86 * 1024)
    signed_stride(54, 51, 86 * 1024)
    def w1():
        xwait(1); T.stamp()
    gemm(a, "w4", 2, 2, 22, 4, ACC, FR, 56, 57, "s53", "s54", s_cnt=55, sc_act=" sc1", pace=pace, between=w1 if BTW else None)
    if ENV("K2_FINE") == "1": T.stamp()
    e("s_nop 7"); e("s_nop 3")
    e("s_mov_b32 s60, 0xffff0000")
    for base in (XR, X1R):
        for p in range(8):
            e(f"v_lshlrev_b32 v{FR+2*p}, 16, v{base+p}")
            e(f"v_and_b32 v{FR+2*p+1}, s60, v{base+p}")
        for r in range(16): e(f"v_add_f32 v{ACC+r}, v{ACC+r}, v{FR+r}")
    e("s_lshl_b32 s60, s45, 3")
    e("s_lshl_b32 s56, s64, 5"); e("s_add_u32 s56, s56, s60"); e("s_lshl_b32 s56, s56, 10"); e(f"s_add_u32 s56, s56, {OOFF}")
    e("s_lshl_b32 s57, s65, 5"); e("s_add_u32 s57, s57, s60"); e("s_lshl_b32 s57, s57, 10"); e(f"s_add_u32 s57, s57, {WOF}")
    signed_stride(53, 50, 32768)
    signed_stride(54, 51, 32768)
    e("s_add_u32 s53, s53, s56")
    e("s_add_u32 s54, s54, s57")
    OR_, WR = 72, 136
    def wload(j):
        r = WR + 8 * (j % 4)
        o = 1024 * (j % 4)
        e(f"buffer_load_dwordx4 v[{r}:{r+3}], v2, s[32:35], s57 offen offset:{o}")
        e(f"buffer_load_dwordx4 v[{r+4}:{r+7}], v2, s[32:35], s54 offen offset:{o}")
    for j in range(4): wload(j)
    e("s_add_u32 s57, s57, 4096"); e("s_add_u32 s54, s54, 4096")
    e("s_lshl_b32 s70, s40, 8")
    e("s_lshl_b32 s60, s45, 5")
    e("s_add_u32 s70, s70, s60")
    e(f"s_add_u32 s70, s70, {OFLAG}")
    e("v_and_b32 v6, 7, v1")
    e("v_lshlrev_b32 v6, 2, v6")
    e("v_bfe_u32 v7, v1, 3, 1")
    e("v_lshl_add_u32 v6, v7, 7, v6")
    e(f"s_mov_b32 s68, {SPIN_MAX}")
    e("s_setprio 0")
    e("L_k2_ow:")
    e("buffer_load_dword v7, v6, s[32:35], s70 offen sc1")
    e("s_waitcnt vmcnt(0)")
    e("v_cmp_eq_u32 vcc, 0, v7")
    e("s_cmp_eq_u64 vcc, 0")
    e("s_cbranch_scc1 L_k2_ow_go")
    e("s_sleep 2")
    e("s_sub_u32 s68, s68, 1")
    e("s_cmp_lg_u32 s68, 0")
    e("s_cbranch_scc1 L_k2_ow")
    e("L_k2_ow_go:")
    e("s_setprio 3")
    if ENV("K2_FINE") == "1": T.stamp()
    for j in range(8):
        if j == 4: e("s_add_u32 s56, s56, 4096"); e("s_add_u32 s53, s53, 4096")
        r = OR_ + 8 * j
        e(f"buffer_load_dwordx4 v[{r}:{r+3}], v2, s[32:35], s56 offen offset:{1024*(j%4)} sc1")
        e(f"buffer_load_dwordx4 v[{r+4}:{r+7}], v2, s[32:35], s53 offen offset:{1024*(j%4)} sc1")
    lds_wait(a, "ad", 13, 8, 6, 7, 68, 69)
    for j in range(1, 4):
        e(f"s_xor_b32 s60, s45, {j}")
        e("s_mul_i32 s60, s60, 12288")
        e(f"s_add_u32 s60, s60, {(j-1)*4096}")
        e(f"v_add_u32 v{2+j}, s60, v2")
    for j in range(8):
        if j < 4: e(f"s_waitcnt vmcnt({2*(7-j) + 2*j})")
        else: e(f"s_waitcnt vmcnt({2*(7-j)})")
        w = WR + 8 * (j % 4); o = OR_ + 8 * j
        for i in range(2):
            for t in range(2):
                d = ACC + 16 * (2 * i + t)
                e(f"v_mfma_f32_32x32x16_bf16 v[{d}:{d+15}], v[{w+4*i}:{w+4*i+3}], v[{o+4*t}:{o+4*t+3}], v[{d}:{d+15}]")
        if j < 4: wload(j + 4)
    e("s_mul_i32 s60, s45, 12288")
    e("v_add_u32 v136, s60, v2")
    e("v_and_b32 v152, 31, v1")
    e("v_lshrrev_b32 v153, 5, v1")
    e("v_lshlrev_b32 v154, 10, v152")
    e("v_lshl_add_u32 v154, v153, 4, v154")
    e("s_nop 7")
    for j in range(1, 4):
        for q in range(4):
            r = ACC + 16 * j + 4 * q
            e(f"ds_write_b128 v{2+j}, v[{r}:{r+3}] offset:{q*1024}")
    sync()
    for i in range(12):
        e(f"ds_read_b128 v[{FR+4*i}:{FR+4*i+3}], v136 offset:{i*1024}")
    for j in range(3):
        e(f"s_waitcnt lgkmcnt({8-4*j})")
        for r in range(16): e(f"v_add_f32 v{ACC+r}, v{ACC+r}, v{FR+16*j+r}")
    for p in range(8): e(f"v_cvt_pk_bf16_f32 v{FR+p}, v{ACC+2*p}, v{ACC+2*p+1}")
    e("s_lshl_b32 s60, s64, 15")
    e("s_lshl_b32 s61, s65, 6")
    e(f"v_permlane32_swap_b32 v{FR}, v{FR+2}")
    e(f"v_permlane32_swap_b32 v{FR+1}, v{FR+3}")
    e(f"v_permlane32_swap_b32 v{FR+4}, v{FR+6}")
    e(f"v_permlane32_swap_b32 v{FR+5}, v{FR+7}")
    e("s_add_u32 s60, s60, s61")
    OST = ENV("K2_OST", "")
    e(f"buffer_store_dwordx4 v[{FR}:{FR+3}], v154, s[28:31], s60 offen{OST}")
    e(f"buffer_store_dwordx4 v[{FR+4}:{FR+7}], v154, s[28:31], s60 offen offset:32{OST}")
    T.stamp()


def gen_k2(with_w4=True):
    a = Asm("k2"); e = a.e
    T = Stamper(a, 72, 1)
    T.stamp()
    e("s_cmp_ge_u32 s2, 256")
    e("s_cbranch_scc1 L_k2_exit")
    e("s_load_dwordx2 s[4:5], s[0:1], 0")
    e("s_load_dwordx2 s[6:7], s[0:1], 64")
    e("s_load_dwordx2 s[20:21], s[0:1], 80")
    e("v_lshrrev_b32 v1, 6, v0")
    e("s_and_b32 s54, s2, 7")
    e("v_readfirstlane_b32 s44, v1")
    e("v_and_b32 v1, 63, v0")
    e("v_lshlrev_b32 v2, 4, v1")
    e("s_lshl_b32 s40, s54, 2")
    e("s_bfe_u32 s54, s2, 0x20003")
    e("s_add_u32 s40, s40, s54")
    e("s_lshr_b32 s41, s2, 5")
    e("s_mov_b32 s45, s44")
    for r in range(4, 8): e(f"v_mov_b32 v{r}, 0")
    e(f"v_add_u32 v3, {L_CS}, v2")
    e("ds_write_b128 v3, v[4:7]")
    e("s_waitcnt lgkmcnt(0)")
    e("s_barrier")
    a.srd(32, 20, WS_USED)
    e("s_cmp_ge_u32 s44, 8")
    e("s_cbranch_scc1 L_k2_b")
    if ENV("K2_NOA") == "1":
        e("s_endpgm")
    (attn_wave64 if Q64 else attn_wave)(a, T)
    T.stamp()
    T.dump(32, 44, 12, 4, 5)
    e("s_endpgm")
    e("L_k2_b:")
    b_waves(a, T, with_w4)
    T.dump(32, 44, 12, 4, 5)
    e("L_k2_exit:")
    e("s_endpgm")
    return a.kernel(vgpr=168, sgpr=96)
```

```python
from common import *

L_CS = 131072
L_ST = L_CS + 512
L_PR = L_ST + 2048
PR_PITCH = 1088
K1_LDS = L_PR + 16 * PR_PITCH


ST = os.environ.get('K1_ST', ' sc1')


def gen_k1():
    a = Asm("k1")
    e = a.e
    L_exit = "L_k1_exit"
    T = Stamper(a, 78, 0)
    T.stamp()
    e("s_cmp_ge_u32 s2, 256")
    e(f"s_cbranch_scc1 {L_exit}")
    e("s_load_dwordx4 s[4:7], s[0:1], 0")
    e("s_load_dwordx4 s[8:11], s[0:1], 16")
    e("s_load_dwordx4 s[12:15], s[0:1], 32")
    e("s_load_dwordx4 s[16:19], s[0:1], 48")
    e("s_load_dwordx2 s[20:21], s[0:1], 80")
    e("v_lshrrev_b32 v1, 6, v0")
    e("s_and_b32 s54, s2, 7")
    e("v_readfirstlane_b32 s42, v1")
    e("v_and_b32 v1, 63, v0")
    e("s_lshr_b32 s55, s2, 3")
    e("s_lshr_b32 s40, s54, 1")
    e("s_lshl_b32 s40, s40, 2")
    e("s_and_b32 s56, s55, 3")
    e("s_add_u32 s40, s40, s56")
    e("s_and_b32 s41, s54, 1")
    e("s_lshl_b32 s41, s41, 3")
    e("s_lshr_b32 s56, s55, 2")
    e("s_add_u32 s41, s41, s56")
    e("s_and_b32 s45, s42, 3")
    e("s_cmp_lt_u32 s42, 4")
    e("s_cbranch_scc1 L_k1_compute")
    if os.environ.get("K1_SOLO") == "1": e("s_endpgm")
    if os.environ.get("K1_SOLO") == "2":
        e("s_cmp_ge_u32 s42, 8"); e(f"s_cbranch_scc1 {L_exit}")
    e("s_cmp_ge_u32 s42, 8")
    e("s_cbranch_scc1 L_k1_stat")

    def prep_decode(tag):
        Lp = {k: f"L_k1_{tag}{k}" for k in ("w2", "wo", "w4", "w3", "go")}
        e("s_mov_b32 s62, 0"); e("s_mov_b32 s61, 32"); e("s_mov_b32 s63, 1024"); e("s_mov_b32 s59, 16"); e("s_mov_b32 s73, 0")
        e(f"s_mov_b32 s38, {512*1024}")
        e("s_mov_b32 s56, s2")
        e("s_cmp_lt_u32 s2, 32");  e(f"s_cbranch_scc1 {Lp['w2']}")
        e("s_cmp_lt_u32 s2, 64");  e(f"s_cbranch_scc1 {Lp['wo']}")
        e("s_cmp_lt_u32 s2, 150"); e(f"s_cbranch_scc1 {Lp['w4']}")
        e("s_cmp_lt_u32 s2, 246"); e(f"s_cbranch_scc1 {Lp['w3']}")
        e("s_mov_b32 s38, 0"); e("s_mov_b32 s59, 0"); e("s_mov_b32 s56, 0")
        e(f"{Lp['w2']}:")
        e("s_mov_b32 s36, s14"); e("s_mov_b32 s37, s15"); e(f"s_mov_b32 s60, {W2F}")
        e(f"s_branch {Lp['go']}")
        e(f"{Lp['wo']}:")
        e("s_mov_b32 s36, s8"); e("s_mov_b32 s37, s9"); e(f"s_mov_b32 s60, {WOF}")
        e("s_sub_u32 s56, s2, 32"); e("s_mov_b32 s73, 1")
        e(f"s_branch {Lp['go']}")
        e(f"{Lp['w4']}:")
        e("s_mov_b32 s36, s18"); e("s_mov_b32 s37, s19"); e(f"s_mov_b32 s38, {1376*1024}")
        e("s_sub_u32 s56, s2, 64"); e(f"s_mov_b32 s60, {W4F}"); e("s_mov_b32 s61, 86")
        e(f"s_branch {Lp['go']}")
        e(f"{Lp['w3']}:")
        e("s_mov_b32 s36, s16"); e("s_mov_b32 s37, s17"); e(f"s_mov_b32 s38, {512*2752}")
        e("s_sub_u32 s56, s2, 150")
        e("s_lshr_b32 s62, s56, 5")
        e("s_and_b32 s56, s56, 31")
        e(f"s_mov_b32 s60, {W3F}"); e("s_mov_b32 s63, 2752")
        e("s_cmp_eq_u32 s62, 2")
        e("s_cselect_b32 s59, 11, 16")
        e(f"{Lp['go']}:")

    e("s_lshl_b32 s54, s40, 7")
    e("s_lshl_b32 s55, s45, 5")
    e("s_add_u32 s54, s54, s55")
    e("v_lshrrev_b32 v56, 3, v1")
    e("v_add_u32 v56, s54, v56")
    e("v_lshlrev_b32 v56, 10, v56")
    e("v_lshrrev_b32 v57, 4, v1")
    e("v_and_b32 v58, 7, v1")
    e("v_xor_b32 v59, v58, v57")
    e("v_xor_b32 v60, 4, v59")
    e("v_lshl_add_u32 v2, v59, 4, v56")
    e("v_lshl_add_u32 v3, v60, 4, v56")
    e(f"v_add_u32 v4, {2*8192 - 2048}, v2")
    e(f"v_add_u32 v5, {3*8192 - 3072}, v3")
    e(f"v_add_u32 v3, {8192 - 1024}, v3")
    e("s_lshr_b32 s46, s45, 1")
    e("s_lshl_b32 s44, s41, 1")
    e("s_sub_u32 s44, s44, 8")
    e("s_add_u32 s44, s44, s46")
    e("s_cmp_lt_u32 s41, 8")
    e("s_cselect_b32 s44, s41, s44")
    e("s_cselect_b32 s54, s46, 0")
    e(f"s_mov_b32 s30, {512*3072}")
    e("s_mov_b32 s43, 3072")
    e("s_cmp_eq_u32 s54, 1")
    e(f"s_cselect_b32 s30, {512*1024}, s30")
    e("s_cselect_b32 s43, 1024, s43")
    e("s_waitcnt lgkmcnt(0)")
    e("s_cselect_b32 s28, s12, s6")
    e("s_cselect_b32 s29, s13, s7")
    e("s_and_b32 s29, s29, 0xffff")
    e("s_mov_b32 s31, 0x00020000")
    a.srd(24, 4, 2048 * 1024)
    e("s_lshl_b32 s44, s44, 7")
    e("s_lshl_b32 s53, s43, 6")
    e("v_lshrrev_b32 v58, 3, v1")
    e("v_mul_lo_u32 v58, v58, s43")
    e("v_and_b32 v59, 7, v1")
    e("v_bfe_u32 v60, v1, 4, 1")
    e("v_lshlrev_b32 v60, 2, v60")
    e("v_xor_b32 v59, v59, v60")
    e("v_lshl_add_u32 v58, v59, 4, v58")
    e("v_add_u32 v6, s44, v58")
    e("s_and_b32 s54, s45, 1")
    e("s_lshl_b32 s54, s54, 5")
    e("s_mul_i32 s48, s54, s43")
    e("s_lshl_b32 s54, s43, 3")
    e("s_sub_u32 s54, s54, 1024")
    e("s_add_u32 s49, s48, s54")
    e("s_add_u32 s50, s49, s54")
    e("s_add_u32 s51, s50, s54")
    e("s_mov_b32 s52, 0")
    e("s_lshl_b32 s47, s45, 12")

    def issue_stage(st):
        b = st % 4
        if os.environ.get("K1_NOLOAD") == "1": return
        e(f"s_add_u32 m0, s47, {b*16384}")
        e("s_nop 0")
        for u in range(4):
            e(f"buffer_load_dwordx4 v{2+u}, s[24:27], s52 offen offset:{1024*u} lds")
        e(f"s_add_u32 m0, s47, {65536 + b*16384}")
        e("s_add_u32 s52, s52, 128")
        for u in range(4):
            e(f"buffer_load_dwordx4 v6, s[28:31], s{48+u} offen offset:{1024*u} lds")
        for u in range(4):
            e(f"s_add_u32 s{48+u}, s{48+u}, s53")

    def prep_loads():
        prep_decode("l")
        e("s_and_b32 s37, s37, 0xffff")
        e("s_mov_b32 s39, 0x00020000")
        e("s_lshl_b32 s54, s56, 4")
        e("s_lshl_b32 s55, s45, 2")
        e("s_add_u32 s54, s54, s55")
        e("s_mul_i32 s54, s54, s63")
        e("s_lshl_b32 s55, s62, 10")
        e("s_add_u32 s54, s54, s55")
        e(f"s_mul_i32 s55, s45, {4*PR_PITCH}")
        e(f"s_add_u32 s55, s55, {L_PR}")
        e("v_lshlrev_b32 v56, 4, v1")
        for u in range(4):
            e(f"s_add_u32 m0, s55, {u*PR_PITCH}")
            e("s_nop 0")
            e(f"buffer_load_dwordx4 v56, s[36:39], s54 offen lds")
            e("s_add_u32 s54, s54, s63")

    def wb(n):
        e(f"s_waitcnt vmcnt({n})")
        e("s_barrier")

    issue_stage(0); issue_stage(1)
    T.stamp()
    wb(8)
    T.stamp()
    issue_stage(2); issue_stage(3)
    wb(16)
    issue_stage(4); prep_loads()
    wb(20)
    issue_stage(5)
    wb(20)
    issue_stage(6)
    wb(20)
    T.stamp()
    issue_stage(7)
    wb(16)
    wb(8)
    wb(0)
    T.stamp()
    if STAMP:
        a.srd(32, 20, WS_USED)
        T.dump(32, 42, 8, 60, 61)
    e("s_endpgm")

    e("L_k1_stat:")
    e("v_and_b32 v56, 31, v1")
    e("v_lshrrev_b32 v57, 5, v1")
    e("s_lshl_b32 s54, s45, 5")
    e("v_add_u32 v56, s54, v56")
    e("v_lshlrev_b32 v56, 7, v56")
    e("v_bfe_u32 v58, v1, 1, 3")
    e("v_xor_b32 v58, v57, v58")
    for ks in range(4):
        e(f"v_xor_b32 v59, {2*ks}, v58")
        e(f"v_lshl_add_u32 v{8+ks}, v59, 4, v56")
    for r in range(12, 16): e(f"v_mov_b32 v{r}, 0")
    e("s_mov_b32 s72, 0xffff0000")
    e("s_mov_b32 s71, 0xffff")
    e("s_waitcnt lgkmcnt(0)")
    a.srd(32, 20, WS_USED)
    if os.environ.get("CODE_WARM", "1") == "1":
        e("s_getpc_b64 s[66:67]")
        e("L_k1_pc:")
        e("s_sub_u32 s66, s66, L_k1_pc-k1_kernel")
        e("s_subb_u32 s67, s67, 0")
        e("s_lshl_b32 s54, s45, 13")
        e("v_lshlrev_b32 v58, 7, v1")
        e("v_add_u32 v58, s54, v58")
        e("v_mov_b32 v59, L_code_end-k1_kernel-4")
        e("v_min_u32 v58, v58, v59")
        e("v_mov_b32 v59, s67")
        e("v_add_co_u32 v58, vcc, s66, v58")
        e("v_addc_co_u32 v59, vcc, 0, v59, vcc")
        e("global_load_dword v92, v[58:59], off")
    e("s_cmp_ge_u32 s2, 64")
    e("s_cbranch_scc1 L_k1_noflag")
    e("s_cmp_lg_u32 s45, 0")
    e("s_cbranch_scc1 L_k1_noflag")
    e("s_lshl_b32 s54, s2, 8")
    e(f"s_add_u32 s54, s54, {FLAGS}")
    e("v_lshlrev_b32 v58, 2, v1")
    e("buffer_store_dword v12, v58, s[32:35], s54 offen")
    e("L_k1_noflag:")
    prep_decode("s")
    e("s_add_u32 s54, s73, 2")
    e("v_lshlrev_b32 v56, s54, v57")
    e("v_bfe_u32 v58, v1, 2, 2")
    e("v_add_u32 v56, v56, v58")
    e(f"v_mul_u32_u24 v56, {PR_PITCH}, v56")
    e("v_and_b32 v58, 3, v1")
    e("v_lshl_add_u32 v56, v58, 3, v56")
    e("v_bfe_u32 v58, v1, 4, 1")
    e("v_lshl_add_u32 v56, v58, 5, v56")
    e("s_lshl_b32 s54, s45, 8")
    e(f"s_add_u32 s54, s54, {L_PR}")
    e("v_add_u32 v2, s54, v56")
    e(f"s_mov_b32 s54, {8*PR_PITCH}")
    e("s_cmp_eq_u32 s73, 1")
    e(f"s_cselect_b32 s54, {4*PR_PITCH}, s54")
    e("v_add_u32 v3, s54, v2")
    e("v_lshlrev_b32 v4, 4, v1")
    e("s_lshl_b32 s54, s62, 4")
    e("s_lshl_b32 s55, s45, 2")
    e("s_add_u32 s54, s54, s55")
    e("s_mul_i32 s54, s54, s61")
    e("s_add_u32 s54, s54, s56")
    e("s_lshl_b32 s54, s54, 10")
    e("s_add_u32 s60, s60, s54")
    e("s_lshl_b32 s61, s61, 10")
    e("s_sub_i32 s59, s59, s55")
    e("v_bfe_u32 v58, v1, 4, 1")
    e("v_xor_b32 v59, v58, v1")
    e("v_and_b32 v59, 1, v59")
    e("v_cmp_eq_u32 vcc, 0, v59")
    e("v_mov_b32 v59, 0x3f803f80")
    e("v_cmp_eq_u32 s[76:77], 1, v58")
    e("v_cndmask_b32 v72, 0, v59, vcc")
    e("v_mov_b32 v73, v72"); e("v_mov_b32 v74, v72"); e("v_mov_b32 v75, v72")
    e("v_and_b32 v5, 31, v1")
    e("v_lshlrev_b32 v5, 2, v5")
    e("s_mul_i32 s64, s56, 1408*4")
    e("s_lshl_b32 s54, s62, 11")
    e("s_add_u32 s64, s64, s54")
    e("s_lshl_b32 s54, s45, 9")
    e("s_add_u32 s64, s64, s54")
    e(f"s_add_u32 s64, s64, {CS3P}")
    e("s_mov_b32 s70, 0")
    for r in range(40, 56): e(f"v_mov_b32 v{r}, 0")
    def process(b):
        if os.environ.get("K1_NOSTAT") == "1": return
        for d in range(16):
            t = 32 + 2 * (d & 3)
            e(f"v_lshlrev_b32 v{t}, 16, v{b+d}")
            e(f"v_and_b32 v{t+1}, s72, v{b+d}")
            if d >= 1:
                t2 = 32 + 2 * ((d - 1) & 3)
                e(f"v_fmac_f32 v{12 + 2*(d&1)}, v{t2}, v{t2}")
                e(f"v_fmac_f32 v{13 + 2*(d&1)}, v{t2+1}, v{t2+1}")
        e("v_fmac_f32 v12, v38, v38")
        e("v_fmac_f32 v13, v39, v39")
    e("L_k1_sloop:")
    for half, (cur, prev) in enumerate(((16, 40), (40, 16))):
        e("s_barrier")
        for ks in range(4):
            e(f"ds_read_b128 v[{cur+4*ks}:{cur+3+4*ks}], v{8+ks} offset:{16384*half}")
        if half == 1:
            e("s_cmp_lg_u32 s70, 2")
            e("s_cbranch_scc1 L_k1_snoprep")
            for i in range(4):
                e(f"ds_read_b64_tr_b16 v[{56+4*i}:{57+4*i}], v2 offset:{64*i}")
                e(f"ds_read_b64_tr_b16 v[{58+4*i}:{59+4*i}], v3 offset:{64*i}")
            e("s_waitcnt lgkmcnt(0)")
            e("s_cmp_lg_u32 s63, 2752")
            e("s_cbranch_scc1 L_k1_snocs")
            for i in range(4):
                e(f"v_mfma_f32_16x16x32_bf16 v[{76+4*i}:{79+4*i}], v[72:75], v[{56+4*i}:{59+4*i}], 0")
            e("s_nop 7")
            for i in range(4):
                e(f"v_cndmask_b32 v{76+4*i}, v{76+4*i}, v{77+4*i}, s[76:77]")
            for i in range(4):
                e(f"s_cmp_le_i32 s59, {i}")
                e("s_cbranch_scc1 L_k1_snocs")
                e(f"buffer_store_dword v{76+4*i}, v5, s[32:35], s64 offen offset:{128*i} sc1")
            e("L_k1_snocs:")
            for i in range(4):
                e(f"s_cmp_le_i32 s59, {i}")
                e("s_cbranch_scc1 L_k1_snoprep")
                e(f"buffer_store_dwordx4 v[{56+4*i}:{59+4*i}], v4, s[32:35], s60 offen sc1")
                e("s_add_u32 s60, s60, s61")
            e("L_k1_snoprep:")
            for r in range(8, 12):
                e(f"v_xor_b32 v{r}, 0x8000, v{r}")
        process(prev)
        e("s_waitcnt lgkmcnt(0)")
    e("s_add_u32 s70, s70, 1")
    e("s_cmp_lt_u32 s70, 4")
    e("s_cbranch_scc1 L_k1_sloop")
    process(40)
    e("v_add_f32 v12, v12, v13")
    e("v_add_f32 v14, v14, v15")
    e("s_lshl_b32 s54, s45, 9")
    e(f"s_add_u32 s54, s54, {L_ST}")
    e("v_lshl_add_u32 v56, v1, 2, s54")
    e("v_add_f32 v12, v12, v14")
    e("ds_write_b32 v56, v12 offset:256")
    e("s_waitcnt lgkmcnt(0)")
    e("s_barrier")
    e("s_endpgm")

    e("L_k1_compute:")
    e("v_and_b32 v8, 31, v1")
    e("v_lshrrev_b32 v9, 5, v1")
    e("s_lshl_b32 s54, s45, 5")
    e("v_add_u32 v10, s54, v8")
    e("v_lshlrev_b32 v10, 7, v10")
    e("v_bfe_u32 v11, v1, 1, 3")
    e("v_xor_b32 v11, v9, v11")
    for ks in range(4):
        e(f"v_xor_b32 v12, {2*ks}, v11")
        e(f"v_lshl_add_u32 v{2+ks}, v12, 4, v10")
    e("v_bfe_u32 v10, v1, 2, 2")
    e("v_lshl_add_u32 v10, v9, 3, v10")
    e("v_lshlrev_b32 v10, 7, v10")
    e("v_and_b32 v11, 3, v1")
    e("v_lshl_add_u32 v10, v11, 3, v10")
    e("v_bfe_u32 v11, v1, 3, 1")
    e("v_lshl_add_u32 v10, v11, 6, v10")
    e("v_bfe_u32 v11, v1, 4, 1")
    e("v_lshl_add_u32 v10, v11, 5, v10")
    e("v_add_u32 v6, 65536, v10")
    e("v_xor_b32 v16, 64, v6")
    e("v_xor_b32 v10, v11, v1")
    e("v_and_b32 v10, 1, v10")
    e("v_cmp_eq_u32 vcc, 0, v10")
    e("v_mov_b32 v10, 0x3f803f80")
    e("v_cmp_eq_u32 s[76:77], 1, v11")
    e("v_cndmask_b32 v12, 0, v10, vcc")
    e("v_mov_b32 v13, v12")
    e("v_mov_b32 v14, v12")
    e("v_mov_b32 v15, v12")
    e("s_lshr_b32 s54, s45, 1")
    e("s_lshl_b32 s54, s54, 13")
    e("s_and_b32 s55, s45, 1")
    e("s_lshl_b32 s55, s55, 6")
    e("v_xor_b32 v7, s55, v6")
    e("v_add_u32 v7, s54, v7")
    e("s_mov_b32 s73, 0xffff")
    e("s_mov_b32 s74, 0x10000")
    e("s_waitcnt lgkmcnt(0)")
    a.srd(32, 20, WS_USED)

    def X(s): return 32 + 24 * s
    def W(s, j): return 36 + 24 * s + 4 * j
    def ACC(j): return 96 + 16 * j

    def reads(ks, s):
        R = [f"ds_read_b128 v[{X(s)}:{X(s)+3}], v{2+ks}"]
        for j in range(4):
            for t in range(2):
                R.append(f"ds_read_b64_tr_b16 v[{W(s,j)+2*t}:{W(s,j)+2*t+1}], v{16 if j&1 else 6} offset:{(j>>1)*8192 + (16*ks+4*t)*128}")
        for t in range(2):
            R.append(f"ds_read_b64_tr_b16 v[{W(s,4)+2*t}:{W(s,4)+2*t+1}], v7 offset:{(16*ks+4*t)*128}")
        return R

    def updx(r):
        return [f"v_add_u32 v{r}, 16384, v{r}", f"v_and_b32 v{r}, s73, v{r}"]
    def updw(r):
        return [f"v_add_u32 v{r}, 16384, v{r}", f"v_and_b32 v{r}, s73, v{r}", f"v_or_b32 v{r}, s74, v{r}"]

    for r in list(range(24, 32)) + list(range(96, 160)):
        e(f"v_mov_b32 v{r}, 0")
    T.n = 1
    T.stamp()
    e("s_barrier")
    T.stamp()
    for r in reads(0, 0): e(r)
    for v in updx(2): e(v)
    e("s_mov_b32 s70, 8")
    e("L_k1_loop:")
    s = 0
    for ks in range(4):
        R = reads((ks + 1) % 4, 1 - s)
        M = [f"v_mfma_f32_32x32x16_bf16 v[{ACC(j)}:{ACC(j)+15}], v[{W(s,j)}:{W(s,j)+3}], v[{X(s)}:{X(s)+3}], v[{ACC(j)}:{ACC(j)+15}]" for j in range(4)]
        M.append(f"v_mfma_f32_16x16x32_bf16 v[28:31], v[12:15], v[{X(s)}:{X(s)+3}], v[28:31]")
        M.append(f"v_mfma_f32_16x16x32_bf16 v[24:27], v[12:15], v[{W(s,4)}:{W(s,4)+3}], v[24:27]")
        if os.environ.get("K1_NOMFMA") == "1": M[:4] = ["s_nop 0"]*4
        if os.environ.get("K1_NOREAD") == "1": R = [""]*11
        if os.environ.get("K1_NOM16") == "1": M[4:] = ["", ""]
        if ks < 3:
            e("s_waitcnt lgkmcnt(8)")
            e(M[0])
            for r in R[0:4]: e(r)
            e("s_waitcnt lgkmcnt(10)")
            e(M[1])
            for r in R[4:8]: e(r)
            e("s_waitcnt lgkmcnt(12)")
            e(M[2])
            for r in R[8:11]: e(r)
            e("s_waitcnt lgkmcnt(13)")
            e(M[3])
            for v in updx(2 + ks + 1): e(v)
            if ks == 2:
                for v in updw(6): e(v)
            e(M[4])
            e("s_waitcnt lgkmcnt(11)")
            if ks == 2:
                for v in updw(16): e(v)
            e(M[5])
            if ks == 2:
                for v in updw(7): e(v)
        else:
            e("s_waitcnt lgkmcnt(8)")
            e(M[0])
            e("s_sub_u32 s70, s70, 1")
            e("s_waitcnt lgkmcnt(6)")
            e(M[1])
            e("s_waitcnt lgkmcnt(0)")
            e("s_cmp_eq_u32 s70, 0")
            e("s_cbranch_scc1 L_k1_nobar")
            e("s_barrier")
            e("L_k1_nobar:")
            for r in R[0:3]: e(r)
            e(M[2])
            for r in R[3:7]: e(r)
            e(M[3])
            for r in R[7:11]: e(r)
            e(M[4])
            for v in updx(2): e(v)
            e(M[5])
        s = 1 - s
    e("s_cmp_lg_u32 s70, 0")
    e("s_cbranch_scc1 L_k1_loop")
    T.stamp()

    e("s_lshl_b32 s54, s45, 7")
    e(f"s_add_u32 s54, s54, {L_CS}")
    e("v_lshl_add_u32 v7, v8, 2, s54")
    e("s_lshl_b32 s54, s45, 9")
    e(f"s_add_u32 s54, s54, {L_ST}")
    e("v_lshl_add_u32 v6, v8, 2, s54")
    e("s_lshl_b32 s58, s40, 2")
    e("s_add_u32 s58, s58, s45")
    e("s_nop 2")
    e("v_cndmask_b32 v24, v24, v25, s[76:77]")
    e("ds_write_b32 v7, v24")
    e("v_cndmask_b32 v24, v28, v29, s[76:77]")
    e("v_lshlrev_b32 v20, 4, v1")
    e("v_lshlrev_b32 v21, 5, v8")
    e("v_lshl_add_u32 v21, v9, 4, v21")
    e("s_lshr_b32 s57, s41, 1")
    e("s_lshr_b32 s54, s57, 1")
    e("s_add_u32 s54, s54, 1")
    e("s_sub_u32 s55, 0, s54")
    e("s_bitcmp1_b32 s57, 0")
    e("s_cselect_b32 s54, s55, s54")
    e("s_lshl_b32 s55, s58, 5")
    e("s_add_u32 s55, s55, s54")
    e("v_add_u32 v22, s55, v8")
    e("v_cmp_gt_u32 vcc, 2048, v22")
    e("v_and_b32 v22, 2047, v22")
    e("v_lshrrev_b32 v23, 5, v22")
    e("v_lshlrev_b32 v23, 15, v23")
    e("v_and_b32 v22, 31, v22")
    e("v_lshl_add_u32 v23, v22, 4, v23")
    e("v_lshl_add_u32 v23, v9, 9, v23")
    e("v_cndmask_b32 v22, 0, 1.0, vcc")
    e(f"v_lshlrev_b32 v7, 4, v9")
    e(f"v_add_u32 v7, {L_CS}, v7")
    e("s_waitcnt lgkmcnt(0)")
    T.stamp()
    e("s_barrier")
    T.stamp()
    e("ds_read_b32 v16, v6 offset:256")
    e("ds_read_b32 v17, v6 offset:384")
    for j in range(4):
        for g in range(4):
            if j == 3 and g == 1: e("s_waitcnt lgkmcnt(13)")
            e(f"ds_read_b128 v[{32+16*j+4*g}:{35+16*j+4*g}], v7 offset:{128*j+32*g}")
    e("v_add_f32 v16, v16, v17")
    e(f"v_mul_f32 v24, {f32(1.0/512)}, v24")
    e(f"v_mul_f32 v16, {f32(1.0/512)}, v16")
    e("v_fma_f32 v16, -v24, v24, v16")
    e("v_max_f32 v16, 0, v16")
    e(f"v_add_f32 v17, {f32(EPS)}, v16")
    e("v_rsq_f32 v25, v17")
    e(f"v_mov_b32 v19, {f32(EPS)}")
    e("v_mul_f32 v18, v25, v25")
    e("v_fma_f32 v18, v18, v16, v19")
    e("v_rsq_f32 v18, v18")
    e("v_mul_f32 v26, v24, v25")
    e("v_sub_f32 v26, 0, v26")
    e("v_mul_f32 v18, v18, v22")
    e("s_cmp_lg_u32 s41, 0")
    e("s_cbranch_scc1 L_k1_nostat")
    e("s_lshl_b32 s54, s58, 8")
    e(f"s_add_u32 s54, s54, {STAT}")
    e("v_lshlrev_b32 v19, 3, v8")
    e("buffer_store_dwordx2 v[24:25], v19, s[32:35], s54 offen")
    e("L_k1_nostat:")
    e("s_lshl_b32 s56, s41, 2")
    e("s_sub_u32 s56, s56, 16")
    e("s_lshl_b32 s54, s41, 1")
    e("s_cmp_lt_u32 s41, 8")
    e("s_cselect_b32 s56, s54, s56")
    e(f"s_mov_b32 s60, {f32(QSCALE)}")
    e(f"s_mov_b32 s62, {f32(GELU_K2)}")
    e(f"s_mov_b32 s63, {f32(GELU_K2)}")
    e(f"v_mov_b32 v16, {f32(GELU_K1)}")
    e("s_waitcnt lgkmcnt(0)")
    OUT = [160, 32, 48, 64]
    def tile(j, ish):
        c = ACC(j)
        if not ish:
            e(f"s_add_u32 s55, s56, {j}")
            e("s_cmp_lt_u32 s55, 16")
            e("s_cselect_b32 s54, s60, 1.0")
            e("v_mul_f32 v28, s54, v25")
            e("v_mul_f32 v30, s54, v26")
            e("s_cmp_ge_u32 s55, 32")
            e("s_cselect_b64 vcc, -1, 0")
            e("s_lshl_b32 s55, s55, 7")
            e("s_add_u32 s55, s55, s58")
            e("s_lshl_b32 s55, s55, 10")
            e("s_add_u32 s59, s55, 65536")
            e("v_cndmask_b32 v27, v20, v21, vcc")
        else:
            e("v_mul_f32 v28, v18, v25")
            e("v_mul_f32 v30, v18, v26")
            e("s_lshl_b32 s55, s41, 12")
            e(f"s_add_u32 s55, s55, {HOFF + (j-2)*2048}")
        cs = 32 + 16 * j
        for r in range(0, 16, 2):
            e(f"v_pk_mul_f32 v[{cs+r}:{cs+r+1}], v[{cs+r}:{cs+r+1}], v[30:31] op_sel_hi:[1,0]")
        for r in range(0, 16, 2):
            e(f"v_pk_fma_f32 v[{c+r}:{c+r+1}], v[{c+r}:{c+r+1}], v[28:29], v[{cs+r}:{cs+r+1}] op_sel_hi:[1,0,1]")
        if ish:
            emit_gelu_pk(a, c, 16, cs, 16, 62)
        o = OUT[j]
        for p in range(8):
            e(f"v_cvt_pk_bf16_f32 v{o+p}, v{c+2*p}, v{c+2*p+1}")
        if not ish:
            e(f"buffer_store_dwordx4 v[{o}:{o+3}], v27, s[32:35], s55 offen{ST}")
            e(f"buffer_store_dwordx4 v[{o+4}:{o+7}], v27, s[32:35], s59 offen{ST}")
        else:
            e(f"buffer_store_dwordx4 v[{o}:{o+3}], v23, s[32:35], s55 offen{ST}")
            e(f"buffer_store_dwordx4 v[{o+4}:{o+7}], v23, s[32:35], s55 offen offset:1024{ST}")
    tile(0, False)
    T.stamp()
    tile(1, False)
    e("s_cmp_lt_u32 s41, 8")
    e("s_cbranch_scc1 L_k1_htiles")
    tile(2, False)
    tile(3, False)
    e("s_branch L_k1_fin")
    e("L_k1_htiles:")
    tile(2, True)
    tile(3, True)
    e("L_k1_fin:")
    T.stamp()
    T.dump(32, 42, 8, 60, 61)
    e(f"{L_exit}:")
    e("s_endpgm")
    return a.kernel(vgpr=168, sgpr=96)
```

```python
from common import *

L_K = 0
L_V = 65536
L_ONES = 131072
L_B = L_ONES + 5632
L_CS = L_B + 24576
L_FLG = L_CS + 768
K2_LDS = L_FLG + 256
SPIN_MAX = 20000
BIG = 0x7ff00000
ENV = os.environ.get
FUSE = ENV("K2_FUSE", "1") == "1"
Q64 = ENV("K2_Q64", "1") == "1"


def lds_signal(a, idx, va, vb):
    e = a.e
    e(f"v_mov_b32 v{va}, {L_FLG + 4*idx}")
    e(f"v_mov_b32 v{vb}, 1")
    e("s_mov_b64 exec, 1")
    e(f"ds_add_u32 v{va}, v{vb}")
    e("s_mov_b64 exec, -1")


def lds_wait(a, tag, idx, target, va, vb, s0, s1, sleep=1, setaddr=True):
    e = a.e
    if setaddr: e(f"v_mov_b32 v{va}, {L_FLG + 4*idx}")
    e(f"s_mov_b32 s{s0}, {SPIN_MAX}")
    e(f"L_{a.name}_lw{tag}:")
    e(f"ds_read_b32 v{vb}, v{va}")
    e("s_waitcnt lgkmcnt(0)")
    e(f"v_readfirstlane_b32 s{s1}, v{vb}")
    e(f"s_cmp_ge_u32 s{s1}, {target}")
    e(f"s_cbranch_scc1 L_{a.name}_lw{tag}_go")
    e(f"s_sleep {sleep}")
    e(f"s_sub_u32 s{s0}, s{s0}, 1")
    e(f"s_cmp_lg_u32 s{s0}, 0")
    e(f"s_cbranch_scc1 L_{a.name}_lw{tag}")
    e(f"L_{a.name}_lw{tag}_go:")


def attn_wave(a, T):
    e = a.e; n = a.name
    e("s_lshl_b32 s48, s41, 3")
    e("s_add_u32 s48, s48, s45")
    e("s_lshl_b32 s49, s40, 6")
    e("s_add_u32 s49, s49, s48")
    e("s_lshl_b32 s49, s49, 10")
    e("buffer_load_dwordx4 v[8:11], v2, s[32:35], s49 offen")
    e("v_and_b32 v5, 1, v1")
    e("v_cmp_eq_u32 vcc, 0, v5")
    e("v_mov_b32 v5, 0x3f80")
    e("v_mov_b32 v33, 0"); e("v_mov_b32 v35, 0")
    e("v_cndmask_b32 v32, 0, v5, vcc")
    e("v_mov_b32 v34, v32")
    e("v_lshlrev_b32 v3, 4, v0")
    e(f"v_cmp_gt_u32 vcc, 5632, v3")
    e(f"v_add_u32 v3, {L_ONES}, v3")
    e("s_and_saveexec_b64 s[50:51], vcc")
    e("ds_write_b128 v3, v[32:35]")
    e("s_mov_b64 exec, -1")
    e("v_lshrrev_b32 v5, 5, v1")
    e("v_bfe_u32 v6, v1, 4, 1")
    e("v_xor_b32 v7, v5, v6")
    e("v_and_b32 v3, 15, v1")
    e("v_lshlrev_b32 v3, 3, v3")
    e("v_lshl_add_u32 v3, v7, 7, v3")
    e("v_lshl_add_u32 v3, v6, 16, v3")
    e(f"v_add_u32 v112, {L_V}, v3")
    e("v_xor_b32 v4, 1, v6")
    e("v_lshlrev_b32 v4, 12, v4")
    e("s_mov_b32 s56, 0")
    e("s_lshl_b32 s51, s45, 2")
    e(f"s_add_u32 s51, s51, {L_FLG + 64}")
    e("v_mov_b32 v113, s51")
    e("v_xor_b32 v114, 16, v113")
    e("v_mov_b32 v115, 0")
    e("v_mov_b32 v116, 0")
    e("s_waitcnt lgkmcnt(0)")
    lds_signal(a, 9, 5, 6)
    lds_wait(a, "c0", 9, 12, 5, 6, 51, 52)
    T.stamp()
    e("ds_read_b128 v[88:91], v2")
    e("s_waitcnt vmcnt(0) lgkmcnt(0)")
    e("v_mfma_f32_32x32x16_bf16 v[32:47], v[88:91], v[8:11], 0")
    e("s_nop 7"); e("s_nop 3")
    e("v_max3_f32 v16, v32, v33, v34")
    e("v_max3_f32 v17, v35, v36, v37")
    e("v_max3_f32 v16, v16, v38, v39")
    e("v_max3_f32 v17, v17, v40, v41")
    e("v_max3_f32 v16, v16, v42, v43")
    e("v_max3_f32 v17, v17, v44, v45")
    e("v_max3_f32 v16, v16, v46, v47")
    e(f"L_{n}_setmax:")
    e("v_max_f32 v16, v16, v17")
    e("v_mov_b32 v12, v2")
    e("v_mov_b32 v17, v16")
    e("v_mov_b32 v3, v112")
    e("ds_read_b128 v[88:91], v12")
    e("ds_read_b128 v[92:95], v12 offset:1024")
    e("v_permlane32_swap_b32 v16, v17")
    for u in range(2):
        for t in range(2):
            e(f"ds_read_b64_tr_b16 v[{96+4*u+2*t}:{97+4*u+2*t}], v3 offset:{512*u+256*t}")
    e("v_max_f32 v16, v16, v17")
    e("v_sub_f32 v16, 0, v16")
    for r in range(17, 32): e(f"v_mov_b32 v{r}, v16")
    for r in list(range(68, 88)) + list(range(104, 112)): e(f"v_mov_b32 v{r}, 0")
    e("s_waitcnt lgkmcnt(5)")
    e("v_mfma_f32_32x32x16_bf16 v[32:47], v[88:91], v[8:11], v[16:31]")
    e("s_nop 7")
    e("s_mov_b32 s55, 0")
    e(f"L_{n}_loop:")
    e("s_add_u32 s51, s55, 1")
    e("s_and_b32 s52, s51, s55")
    e("s_cmp_lg_u32 s52, 0")
    e(f"s_cbranch_scc1 L_{n}_nobar")
    e("s_cmp_eq_u32 s55, 0")
    e(f"s_cbranch_scc1 L_{n}_nobar")
    e("s_cmp_eq_u32 s55, 15")
    e(f"s_cbranch_scc1 L_{n}_nobar")
    e("s_bcnt1_i32_b32 s51, s55")
    e("s_lshl_b32 s51, s51, 2")
    e(f"s_add_u32 s51, s51, {L_FLG + 36}")
    e("v_mov_b32 v5, s51")
    lds_wait(a, "c1", 0, 4, 5, 6, 51, 52, setaddr=False)
    e(f"L_{n}_nobar:")
    X = lambda r: e(f"v_exp_f32 v{r}, v{r}")
    fair = ENV("K2_FAIR", "1") == "1"
    for tl in range(4):
        S = 32 + 16 * (tl % 2); Sn = 32 + 16 * ((tl + 1) % 2)
        Kn = 88 + 4 * ((tl + 1) % 2); Knn = 88 + 4 * (tl % 2)
        V = 96 + 8 * (tl % 2); Vp = 96 + 8 * ((tl + 1) % 2)
        e("s_waitcnt lgkmcnt(4)")
        e(f"v_mfma_f32_32x32x16_bf16 v[{Sn}:{Sn+15}], v[{Kn}:{Kn+3}], v[8:11], v[16:31]")
        if fair and tl == 0:
            e("ds_write_b32 v113, v115")
            e("ds_read_b32 v116, v114")
        e(f"ds_read_b128 v[{Knn}:{Knn+3}], v12 offset:{1024*(tl+2)}")
        X(S); X(S + 1); X(S + 2)
        e(f"v_mfma_f32_32x32x16_bf16 v[72:87], v[{Vp+4}:{Vp+7}], v[68:71], v[72:87]")
        for u in range(2):
            for t in range(2):
                e(f"ds_read_b64_tr_b16 v[{Vp+4*u+2*t}:{Vp+4*u+2*t+1}], v3 offset:{1024*(tl+1)+512*u+256*t}")
        if fair and tl == 1:
            e("v_readfirstlane_b32 s51, v116")
            e("v_add_u32 v115, 1, v115")
            e("s_cmp_gt_u32 s55, s51")
            e(f"s_cbranch_scc1 L_{n}_lo")
            e("s_setprio 1")
            e(f"s_branch L_{n}_pd")
            e(f"L_{n}_lo:")
            e("s_setprio 0")
            e(f"L_{n}_pd:")
        for i in range(3, 9): X(S + i)
        for i in range(4): e(f"v_cvt_pk_bf16_f32 v{64+i}, v{S+2*i}, v{S+2*i+1}")
        X(S + 9); X(S + 10)
        e("s_waitcnt lgkmcnt(5)")
        e(f"v_mfma_f32_32x32x16_bf16 v[72:87], v[{V}:{V+3}], v[64:67], v[72:87]")
        for i in range(11, 16): X(S + i)
        if tl == 3:
            e("v_add_u32 v12, 4096, v12")
            e("v_add_u32 v3, v4, v3")
        else:
            e("s_nop 0")
        for i in range(4, 8): e(f"v_cvt_pk_bf16_f32 v{64+i}, v{S+2*i}, v{S+2*i+1}")
    e("s_add_u32 s55, s55, 1")
    e("s_cmp_lt_u32 s55, 16")
    e(f"s_cbranch_scc1 L_{n}_loop")
    e("v_mfma_f32_32x32x16_bf16 v[72:87], v[108:111], v[68:71], v[72:87]")
    T.stamp()
    e("s_lshl_b32 s49, s48, 5")
    e("s_add_u32 s49, s49, s40")
    e("s_lshl_b32 s49, s49, 10")
    e(f"s_add_u32 s49, s49, {OOFF}")
    e("s_waitcnt lgkmcnt(0)")
    e("s_nop 7")
    e("v_mul_f32 v32, 0, v72")
    for r in range(73, 80): e(f"v_fma_f32 v32, v{r}, 0, v32")
    e(f"v_mov_b32 v33, {f32(2.0**60)}")
    e("v_add_f32 v32, v32, v80")
    e("v_cmp_nlt_f32 vcc, v32, v33")
    e("s_cmp_lg_u32 s56, 0")
    e(f"s_cbranch_scc1 L_{n}_store")
    e("s_cmp_eq_u64 vcc, 0")
    e(f"s_cbranch_scc1 L_{n}_store")
    e("s_mov_b32 s56, 1")
    e("s_mov_b32 s55, 0")
    e("v_mov_b32 v12, v2")
    e("v_mov_b32 v16, 0xff800000")
    e("v_mov_b32 v17, 0xff800000")
    e(f"L_{n}_mloop:")
    e("ds_read_b128 v[88:91], v12")
    e("s_waitcnt lgkmcnt(0)")
    e("v_mfma_f32_32x32x16_bf16 v[32:47], v[88:91], v[8:11], 0")
    e("v_add_u32 v12, 1024, v12")
    e("s_nop 7"); e("s_nop 3")
    for i in range(4):
        e(f"v_max3_f32 v16, v16, v{32+4*i}, v{33+4*i}")
        e(f"v_max3_f32 v17, v17, v{34+4*i}, v{35+4*i}")
    e("s_add_u32 s55, s55, 1")
    e("s_cmp_lt_u32 s55, 64")
    e(f"s_cbranch_scc1 L_{n}_mloop")
    e(f"s_branch L_{n}_setmax")
    e(f"L_{n}_store:")
    lds_signal(a, 13, 5, 6)
    e("v_rcp_f32 v80, v80")
    e("s_nop 0")
    for r in range(72, 80): e(f"v_mul_f32 v{r}, v{r}, v80")
    for p in range(4): e(f"v_cvt_pk_bf16_f32 v{64+p}, v{72+2*p}, v{73+2*p}")
    if FUSE:
        e("buffer_store_dwordx4 v[64:67], v2, s[32:35], s49 offen sc1")
        e("s_lshl_b32 s49, s48, 5")
        e("s_add_u32 s49, s49, s40")
        e("s_lshl_b32 s49, s49, 2")
        e(f"s_add_u32 s49, s49, {OFLAG}")
        e("v_mov_b32 v5, 0")
        e("v_mov_b32 v6, 1")
        e("s_waitcnt vmcnt(0)")
        e("s_mov_b64 exec, 1")
        e("buffer_store_dword v6, v5, s[32:35], s49 offen sc1")
        e("s_mov_b64 exec, -1")
    else:
        e("buffer_store_dwordx4 v[64:67], v2, s[32:35], s49 offen")


def attn_wave64(a, T):
    e = a.e; n = a.name
    e("s_and_b32 s46, s45, 3")
    e("s_lshr_b32 s47, s45, 2")
    e("s_lshl_b32 s48, s41, 3")
    e("s_lshl_b32 s49, s46, 1")
    e("s_add_u32 s48, s48, s49")
    e("s_add_u32 s48, s48, s47")
    e("s_xor_b32 s49, s48, 1")
    e("s_lshl_b32 s50, s40, 6")
    e("s_add_u32 s51, s50, s48"); e("s_lshl_b32 s51, s51, 10")
    e("s_add_u32 s52, s50, s49"); e("s_lshl_b32 s52, s52, 10")
    e("buffer_load_dwordx4 v[8:11], v2, s[32:35], s51 offen")
    e("buffer_load_dwordx4 v[12:15], v2, s[32:35], s52 offen")
    e("v_and_b32 v5, 1, v1")
    e("v_cmp_eq_u32 vcc, 0, v5")
    e("v_mov_b32 v5, 0x3f80")
    e("v_mov_b32 v33, 0"); e("v_mov_b32 v35, 0")
    e("v_cndmask_b32 v32, 0, v5, vcc")
    e("v_mov_b32 v34, v32")
    e("v_lshlrev_b32 v3, 4, v0")
    e(f"v_cmp_gt_u32 vcc, 5632, v3")
    e(f"v_add_u32 v3, {L_ONES}, v3")
    e("s_and_saveexec_b64 s[50:51], vcc")
    e("ds_write_b128 v3, v[32:35]")
    e("s_mov_b64 exec, -1")
    e("v_lshrrev_b32 v5, 5, v1")
    e("v_bfe_u32 v6, v1, 4, 1")
    e("v_xor_b32 v7, v5, v6")
    e("v_and_b32 v3, 15, v1")
    e("v_lshlrev_b32 v3, 3, v3")
    e("v_lshl_add_u32 v3, v7, 7, v3")
    e("s_lshl_b32 s53, s47, 15")
    e(f"s_add_u32 s51, s53, {L_V}")
    e("v_mov_b32 v7, s51")
    e(f"v_mov_b32 v160, {L_ONES}")
    e("v_cmp_eq_u32 vcc, 1, v6")
    e("v_xor_b32 v4, 1, v6")
    e("v_lshlrev_b32 v4, 12, v4")
    e("v_cndmask_b32 v7, v7, v160, vcc")
    e("v_add_u32 v160, v7, v3")
    e("v_add_u32 v165, s53, v2")
    e("s_mov_b32 s56, 0")
    e("s_lshl_b32 s51, s45, 2")
    e(f"s_add_u32 s51, s51, {L_FLG + 64}")
    e("v_mov_b32 v161, s51")
    e("v_xor_b32 v162, 16, v161")
    e("v_mov_b32 v163, 0")
    e("v_mov_b32 v164, 0")
    e("s_waitcnt lgkmcnt(0)")
    lds_signal(a, 9, 5, 6)
    lds_wait(a, "c0", 9, 12, 5, 6, 51, 52)
    T.stamp()
    e("ds_read_b128 v[112:115], v165")
    e("s_waitcnt vmcnt(0) lgkmcnt(0)")
    e("v_mfma_f32_32x32x16_bf16 v[32:47], v[112:115], v[8:11], 0")
    e("v_mfma_f32_32x32x16_bf16 v[48:63], v[112:115], v[12:15], 0")
    e("s_nop 7"); e("s_nop 3")
    for (m, S) in ((16, 32), (144, 48)):
        e(f"v_max3_f32 v{m}, v{S}, v{S+1}, v{S+2}")
        e(f"v_max3_f32 v{m+1}, v{S+3}, v{S+4}, v{S+5}")
        e(f"v_max3_f32 v{m}, v{m}, v{S+6}, v{S+7}")
        e(f"v_max3_f32 v{m+1}, v{m+1}, v{S+8}, v{S+9}")
        e(f"v_max3_f32 v{m}, v{m}, v{S+10}, v{S+11}")
        e(f"v_max3_f32 v{m+1}, v{m+1}, v{S+12}, v{S+13}")
        e(f"v_max3_f32 v{m}, v{m}, v{S+14}, v{S+15}")
    e(f"L_{n}_setmax:")
    e("v_max_f32 v16, v16, v17")
    e("v_max_f32 v144, v144, v145")
    e("v_mov_b32 v17, v16")
    e("v_mov_b32 v145, v144")
    e("v_mov_b32 v120, v165")
    e("v_mov_b32 v3, v160")
    e("v_permlane32_swap_b32 v16, v17")
    e("v_permlane32_swap_b32 v144, v145")
    e("ds_read_b128 v[112:115], v120")
    e("ds_read_b128 v[116:119], v120 offset:1024")
    for u in range(2):
        for t in range(2):
            e(f"ds_read_b64_tr_b16 v[{128+4*u+2*t}:{129+4*u+2*t}], v3 offset:{512*u+256*t}")
    e("v_max_f32 v16, v16, v17")
    e("v_max_f32 v144, v144, v145")
    e("v_sub_f32 v16, 0, v16")
    e("v_sub_f32 v144, 0, v144")
    for r in range(17, 32): e(f"v_mov_b32 v{r}, v16")
    for r in range(145, 160): e(f"v_mov_b32 v{r}, v144")
    for r in list(range(76, 112)) + list(range(136, 144)): e(f"v_mov_b32 v{r}, 0")
    e("s_waitcnt lgkmcnt(5)")
    e("v_mfma_f32_32x32x16_bf16 v[32:47], v[112:115], v[8:11], v[16:31]")
    e("s_nop 7")
    e("s_mov_b32 s55, 0")
    e(f"L_{n}_loop:")
    e("s_cmp_eq_u32 s55, 1")
    e(f"s_cbranch_scc1 L_{n}_g")
    e("s_cmp_lg_u32 s55, 3")
    e(f"s_cbranch_scc1 L_{n}_nobar")
    e(f"L_{n}_g:")
    e("s_lshl_b32 s51, s55, 2")
    e(f"s_add_u32 s51, s51, {L_FLG + 36}")
    e("v_mov_b32 v5, s51")
    lds_wait(a, "c1", 0, 4, 5, 6, 51, 52, setaddr=False)
    e(f"L_{n}_nobar:")
    X = lambda r: e(f"v_exp_f32 v{r}, v{r}")
    def CV(d, s): e(f"v_cvt_pk_bf16_f32 v{d}, v{s}, v{s+1}")
    for tl in range(4):
        K = 112 + 4 * (tl % 2); Kn = 112 + 4 * ((tl + 1) % 2)
        V = 128 + 8 * (tl % 2); Vp = 128 + 8 * ((tl + 1) % 2)
        e(f"v_mfma_f32_32x32x16_bf16 v[48:63], v[{K}:{K+3}], v[12:15], v[144:159]")
        if tl in (0, 2):
            e("ds_write_b32 v161, v163")
            e("ds_read_b32 v164, v162")
        e(f"ds_read_b128 v[{K}:{K+3}], v120 offset:{1024*(tl+2)}")
        X(32); X(33); X(34)
        e(f"v_mfma_f32_32x32x16_bf16 v[96:111], v[{Vp+4}:{Vp+7}], v[76:79], v[96:111]")
        for u in range(2):
            for t in range(2):
                e(f"ds_read_b64_tr_b16 v[{Vp+4*u+2*t}:{Vp+4*u+2*t+1}], v3 offset:{1024*(tl+1)+512*u+256*t}")
        if tl in (1, 3):
            e("v_readfirstlane_b32 s51, v164")
            e("v_add_u32 v163, 1, v163")
            e("s_lshl_b32 s52, s55, 1")
            e(f"s_add_u32 s52, s52, {tl >> 1}")
            e("s_cmp_gt_u32 s52, s51")
            e(f"s_cbranch_scc1 L_{n}_lo{tl}")
            e("s_setprio 1")
            e(f"s_branch L_{n}_pd{tl}")
            e(f"L_{n}_lo{tl}:")
            e("s_setprio 0")
            e(f"L_{n}_pd{tl}:")
        for i in range(3, 9): X(32 + i)
        for i in range(4): CV(64 + i, 32 + 2 * i)
        X(41); X(42)
        e("s_waitcnt lgkmcnt(5)")
        e(f"v_mfma_f32_32x32x16_bf16 v[80:95], v[{V}:{V+3}], v[64:67], v[80:95]")
        for i in range(11, 16): X(32 + i)
        X(48)
        for i in range(4, 8): CV(64 + i, 32 + 2 * i)
        X(49); X(50)
        e(f"v_mfma_f32_32x32x16_bf16 v[80:95], v[{V+4}:{V+7}], v[68:71], v[80:95]")
        X(51); X(52); X(53)
        e(f"v_mfma_f32_32x32x16_bf16 v[32:47], v[{Kn}:{Kn+3}], v[8:11], v[16:31]")
        for i in range(6, 9): X(48 + i)
        for i in range(4): CV(72 + i, 48 + 2 * i)
        X(57); X(58)
        e(f"v_mfma_f32_32x32x16_bf16 v[96:111], v[{V}:{V+3}], v[72:75], v[96:111]")
        for i in range(11, 16): X(48 + i)
        if tl == 3:
            e("v_add_u32 v3, v4, v3")
            e("v_add_u32 v120, 4096, v120")
        else:
            e("s_nop 0")
        for i in range(4, 8): CV(72 + i, 48 + 2 * i)
    e("s_add_u32 s55, s55, 1")
    e("s_cmp_lt_u32 s55, 8")
    e(f"s_cbranch_scc1 L_{n}_loop")
    e("v_mfma_f32_32x32x16_bf16 v[96:111], v[140:143], v[76:79], v[96:111]")
    T.stamp()
    e("s_waitcnt lgkmcnt(0)")
    e("s_nop 7"); e("s_nop 3")
    e("v_mul_f32 v32, 0, v80")
    for r in list(range(81, 88)) + list(range(96, 104)): e(f"v_fma_f32 v32, v{r}, 0, v32")
    e(f"v_mov_b32 v33, {f32(2.0**60)}")
    e("v_add_f32 v32, v32, v88")
    e("v_add_f32 v32, v32, v104")
    e("v_cmp_nlt_f32 vcc, v32, v33")
    e("s_cmp_lg_u32 s56, 0")
    e(f"s_cbranch_scc1 L_{n}_comb")
    e("s_cmp_eq_u64 vcc, 0")
    e(f"s_cbranch_scc1 L_{n}_comb")
    e("s_mov_b32 s56, 1")
    e("s_mov_b32 s55, 0")
    e("v_mov_b32 v120, v165")
    for r in (16, 17, 144, 145): e(f"v_mov_b32 v{r}, 0xff800000")
    e(f"L_{n}_mloop:")
    e("ds_read_b128 v[112:115], v120")
    e("s_waitcnt lgkmcnt(0)")
    e("v_mfma_f32_32x32x16_bf16 v[32:47], v[112:115], v[8:11], 0")
    e("v_mfma_f32_32x32x16_bf16 v[48:63], v[112:115], v[12:15], 0")
    e("v_add_u32 v120, 1024, v120")
    e("s_nop 7"); e("s_nop 3")
    for (m, S) in ((16, 32), (144, 48)):
        for i in range(4):
            e(f"v_max3_f32 v{m}, v{m}, v{S+4*i}, v{S+1+4*i}")
            e(f"v_max3_f32 v{m+1}, v{m+1}, v{S+2+4*i}, v{S+3+4*i}")
    e("s_add_u32 s55, s55, 1")
    e("s_cmp_lt_u32 s55, 32")
    e(f"s_cbranch_scc1 L_{n}_mloop")
    e(f"s_branch L_{n}_setmax")
    e(f"L_{n}_comb:")
    e("s_lshl_b32 s51, s47, 2")
    e(f"s_add_u32 s51, s51, {L_FLG + 56}")
    e("v_mov_b32 v5, s51")
    e("v_mov_b32 v6, 1")
    e("s_mov_b64 exec, 1")
    e("ds_add_u32 v5, v6")
    e("s_mov_b64 exec, -1")
    e("v_mov_b32 v105, v144")
    e("s_mul_i32 s51, s46, 3072")
    e(f"s_add_u32 s54, s51, {L_V + 8192}")
    e("s_add_u32 s51, s54, s53")
    e("v_add_u32 v3, s51, v2")
    lds_wait(a, "hd", 0, 4, 5, 6, 51, 52, setaddr=False)
    e("ds_write_b128 v3, v[96:99]")
    e("ds_write_b128 v3, v[100:103] offset:1024")
    e("ds_write_b128 v3, v[104:107] offset:2048")
    e("s_lshl_b32 s51, s45, 2")
    e(f"s_add_u32 s51, s51, {L_FLG}")
    e("v_mov_b32 v5, s51")
    e("v_mov_b32 v6, 1")
    e("s_waitcnt lgkmcnt(0)")
    e("ds_write_b32 v5, v6")
    e("v_xor_b32 v5, 16, v5")
    e("v_xor_b32 v3, 0x8000, v3")
    lds_wait(a, "pr", 0, 1, 5, 6, 51, 52, setaddr=False)
    e("ds_read_b128 v[96:99], v3")
    e("ds_read_b128 v[100:103], v3 offset:1024")
    e("ds_read_b128 v[104:107], v3 offset:2048")
    e("s_lshl_b32 s49, s48, 5")
    e("s_add_u32 s49, s49, s40")
    e("s_lshl_b32 s50, s49, 2")
    e(f"s_add_u32 s50, s50, {OFLAG}")
    e("s_lshl_b32 s49, s49, 10")
    e(f"s_add_u32 s49, s49, {OOFF}")
    e("s_waitcnt lgkmcnt(0)")
    lds_signal(a, 13, 5, 6)
    e("v_min_f32 v32, v16, v105")
    e("v_sub_f32 v33, v32, v16")
    e("v_sub_f32 v34, v32, v105")
    e("v_exp_f32 v33, v33")
    e("v_exp_f32 v34, v34")
    e("s_nop 0")
    e("v_mul_f32 v88, v88, v33")
    e("v_fmac_f32 v88, v104, v34")
    e("v_rcp_f32 v88, v88")
    e("s_nop 0")
    e("v_mul_f32 v33, v33, v88")
    e("v_mul_f32 v34, v34, v88")
    for i in range(8): e(f"v_mul_f32 v{80+i}, v{80+i}, v33")
    for i in range(8): e(f"v_fmac_f32 v{80+i}, v{96+i}, v34")
    for p in range(4): e(f"v_cvt_pk_bf16_f32 v{64+p}, v{80+2*p}, v{81+2*p}")
    e("buffer_store_dwordx4 v[64:67], v2, s[32:35], s49 offen sc1")
    e("v_mov_b32 v5, 0")
    e("v_mov_b32 v6, 1")
    e("s_waitcnt vmcnt(0)")
    e("s_mov_b64 exec, 1")
    e("buffer_store_dword v6, v5, s[32:35], s50 offen sc1")
    e("s_mov_b64 exec, -1")


def gemm(a, tag, nact, nw, N, D, acc, fr, s_act, s_w, st_act, st_w, s_cnt=None, sc_act="", pace=None, hook=None, hook_step=None, noinit=False, between=None):
    e = a.e
    nf = nact + nw
    def F(r, i): return fr + 4 * (nf * r + i)
    def issue(r, part=3):
        if part != 3:
            for t in range(nact if part == 1 else 0):
                e(f"s_add_u32 s62, s{s_act}, {1024*r}")
                if t: e(f"s_add_u32 s62, s62, {st_act}")
                e(f"buffer_load_dwordx4 v[{F(r,t)}:{F(r,t)+3}], v2, s[32:35], s62 offen{sc_act}")
            for i in range(nw if part == 2 else 0):
                e(f"s_add_u32 s62, s{s_w}, {1024*r}")
                if i: e(f"s_add_u32 s62, s62, {st_w if isinstance(st_w, str) else i*st_w}")
                e(f"buffer_load_dwordx4 v[{F(r,nact+i)}:{F(r,nact+i)+3}], v2, s[32:35], s62 offen")
            return
        if s_cnt is not None:
            e(f"s_cmp_gt_i32 s{s_cnt}, 0")
            e(f"s_cselect_b32 s60, s{s_act}, s59")
            e(f"s_cselect_b32 s61, s{s_w}, s59")
            e(f"s_sub_i32 s{s_cnt}, s{s_cnt}, 1")
            sa, sw = 60, 61
        else:
            sa, sw = s_act, s_w
        for t in range(nact):
            so = f"s{sa}"
            if t:
                e(f"s_add_u32 s62, s{sa}, {st_act if isinstance(st_act, str) else t*st_act}"); so = "s62"
            e(f"buffer_load_dwordx4 v[{F(r,t)}:{F(r,t)+3}], v2, s[32:35], {so} offen{sc_act}")
        for i in range(nw):
            so = f"s{sw}"
            if i:
                e(f"s_add_u32 s62, s{sw}, {st_w if isinstance(st_w, str) else i*st_w}"); so = "s62"
            e(f"buffer_load_dwordx4 v[{F(r,nact+i)}:{F(r,nact+i)+3}], v2, s[32:35], {so} offen")
        e(f"s_add_u32 s{s_act}, s{s_act}, 1024")
        e(f"s_add_u32 s{s_w}, s{s_w}, 1024")
    def step(j, first=False):
        r = j % D
        if between and j < D:
            e(f"s_waitcnt vmcnt({nact*(D-1-j) + nf*min(j, max(N-D, 0))})")
        else:
            e(f"s_waitcnt vmcnt({nf*min(D-1, N-1-j)})")
        if hook_step: hook_step(j)
        more = j + D < N
        il = ENV("K2_IL", "1") == "1" and more
        if il:
            if s_cnt is not None:
                e(f"s_cmp_gt_i32 s{s_cnt}, 0")
                e(f"s_cselect_b32 s60, s{s_act}, s59")
                e(f"s_cselect_b32 s61, s{s_w}, s59")
                e(f"s_sub_i32 s{s_cnt}, s{s_cnt}, 1")
                sa, sw = 60, 61
            else:
                sa, sw = s_act, s_w
        def ld_w(i):
            so = f"s{sw}"
            if i:
                e(f"s_add_u32 s62, s{sw}, {st_w if isinstance(st_w, str) else i*st_w}"); so = "s62"
            e(f"buffer_load_dwordx4 v[{F(r,nact+i)}:{F(r,nact+i)+3}], v2, s[32:35], {so} offen")
        def ld_a(t):
            so = f"s{sa}"
            if t:
                e(f"s_add_u32 s62, s{sa}, {st_act if isinstance(st_act, str) else t*st_act}"); so = "s62"
            e(f"buffer_load_dwordx4 v[{F(r,t)}:{F(r,t)+3}], v2, s[32:35], {so} offen{sc_act}")
        mp = ENV("K2_MPRIO", "0")
        if mp: e(f"s_setprio {mp}")
        for i in range(nw):
            for t in range(nact):
                d = acc + 16 * (i * nact + t)
                cc = "0" if first else f"v[{d}:{d+15}]"
                e(f"v_mfma_f32_32x32x16_bf16 v[{d}:{d+15}], v[{F(r,nact+i)}:{F(r,nact+i)+3}], v[{F(r,t)}:{F(r,t)+3}], {cc}")
                did = False
                if il:
                    if t == nact - 1: ld_w(i); did = True
                    if i == nw - 1: ld_a(t); did = True
                if pace and not did: e(pace)
        if mp: e("s_setprio 3")
        if il:
            e(f"s_add_u32 s{s_act}, s{s_act}, 1024")
            e(f"s_add_u32 s{s_w}, s{s_w}, 1024")
        elif more: issue(r)
    if s_cnt is not None: e(f"s_mov_b32 s59, {BIG}")
    if between:
        for r in range(D): issue(r, 2)
        between()
        for r in range(D): issue(r, 1)
        e(f"s_add_u32 s{s_act}, s{s_act}, {1024*D}")
        e(f"s_add_u32 s{s_w}, s{s_w}, {1024*D}")
        if s_cnt is not None: e(f"s_sub_i32 s{s_cnt}, s{s_cnt}, {D}")
        for j in range(D): step(j, first=(j == 0 and not noinit))
        j0 = D
    else:
        for r in range(D): issue(r)
        if hook: hook(nf * D)
        step(0, not noinit)
        j0 = 1
    m = (N - j0 - D) // D
    j = j0
    if m >= 2:
        e(f"s_mov_b32 s58, {m}")
        e(f"L_{a.name}_{tag}_loop:")
        for jj in range(j0, j0 + D): step(jj)
        e("s_sub_u32 s58, s58, 1")
        e("s_cmp_lg_u32 s58, 0")
        e(f"s_cbranch_scc1 L_{a.name}_{tag}_loop")
        j = j0 + m * D
    while j < N:
        step(j); j += 1


def b_waves(a, T, with_w4):
    e = a.e
    pace = ENV("K2_PACE", "") or None
    st = {"n": 0}
    def sync():
        st["n"] += 1
        e("s_waitcnt lgkmcnt(0)")
        lds_signal(a, 8, 6, 7)
        lds_wait(a, f"sy{st['n']}", 8, 4 * st["n"], 6, 7, 68, 69, setaddr=False)

    e("s_sub_u32 s45, s44, 8")
    a.srd(24, 4, 2048 * 1024)
    a.srd(28, 6, 2048 * 1024)
    e("s_lshl_b32 s46, s40, 16")
    e("s_lshl_b32 s47, s45, 10")
    e("s_add_u32 s46, s46, s47")
    e(f"s_add_u32 s46, s46, {KOFF}")
    def kv(t0, cnt):
        for i in range(cnt):
            off = (t0 + 4 * i) * 1024
            e(f"s_add_u32 m0, s47, {L_K + off}")
            e(f"s_add_u32 s48, s46, {off}")
            e("buffer_load_dwordx4 v2, s[32:35], s48 offen lds")
            e(f"s_add_u32 m0, s47, {L_V + off}")
            e(f"s_add_u32 s48, s46, {off + VOFF - KOFF}")
            e("buffer_load_dwordx4 v2, s[32:35], s48 offen lds")
    OLD = ENV("K2_ORDER", "old") == "old"
    kv(0, 2)
    if Q64:
        kv(32, 2); kv(8, 2); kv(40, 2)
        e("s_waitcnt vmcnt(8)")
        lds_signal(a, 9, 6, 7)
    elif OLD:
        kv(8, 6)
        e("s_waitcnt vmcnt(12)")
        lds_signal(a, 9, 6, 7)
    e("s_setprio %s" % ENV("K2_PRIO", "3"))
    T.n = 1
    T.stamp()
    if ENV("K2_NOB") == "1":
        kv(16, 4); kv(48, 4); e("s_waitcnt vmcnt(0)")
        for i in (10, 11, 12): lds_signal(a, i, 6, 7)
        e("s_endpgm")

    e("s_and_b32 s50, s45, 1")
    e("s_lshr_b32 s51, s45, 1")
    e("s_lshl_b32 s64, s40, 1"); e("s_add_u32 s64, s64, s50")
    e("s_lshl_b32 s65, s41, 1"); e("s_add_u32 s65, s65, s51")
    for j in range(1, 4):
        e(f"s_xor_b32 s60, s45, {j}")
        e("s_mul_i32 s60, s60, 6144")
        e(f"s_add_u32 s60, s60, {L_B + (j-1)*2048}")
        e(f"v_add_u32 v{2+j}, s60, v2")
    e("s_mul_i32 s52, s45, 6144")
    e(f"s_add_u32 s52, s52, {L_B}")

    def signed_stride(sreg, bit_sreg, stride):
        e(f"s_mov_b32 s{sreg}, {stride}")
        e(f"s_cmp_eq_u32 s{bit_sreg}, 1")
        e(f"s_cselect_b32 s{sreg}, {(-stride) & 0xffffffff}, s{sreg}")

    def x_tile(dst, vt):
        e("s_lshl_b32 s60, s64, 15")
        e("s_lshl_b32 s61, s65, 6")
        e("s_add_u32 s60, s60, s61")
        e(f"v_and_b32 v{vt}, 31, v1")
        e(f"v_lshrrev_b32 v{vt+1}, 5, v1")
        e(f"v_lshlrev_b32 v{vt+2}, 10, v{vt}")
        e(f"v_lshl_add_u32 v{vt+2}, v{vt+1}, 3, v{vt+2}")
        for g in range(4):
            e(f"buffer_load_dwordx2 v[{dst+2*g}:{dst+2*g+1}], v{vt+2}, s[24:27], s60 offen offset:{16*g}")

    def reduce22(ACC, TMP):
        e("s_nop 7"); e("s_nop 3")
        e(f"v_add_u32 v{TMP+24}, s52, v2")
        for h in range(2):
            for j in range(1, 4):
                for q in range(2):
                    r = ACC + 16 * j + 8 * h + 4 * q
                    e(f"ds_write_b128 v{2+j}, v[{r}:{r+3}] offset:{q*1024}")
            sync()
            for i in range(6):
                e(f"ds_read_b128 v[{TMP+4*i}:{TMP+4*i+3}], v{TMP+24} offset:{i*1024}")
            if h == 0:
                sync()
            else:
                e("s_waitcnt lgkmcnt(0)")
            for j in range(3):
                for r in range(8):
                    e(f"v_add_f32 v{ACC+8*h+r}, v{ACC+8*h+r}, v{TMP+8*j+r}")

    def xsync(ph, during=None):
        xpub(ph)
        if during: during()
        xwait(ph)

    def xpub(ph):
        e("s_waitcnt vmcnt(0)")
        e("s_lshl_b32 s70, s40, 8")
        e(f"s_add_u32 s70, s70, {FLAGS + 128*ph}")
        e("s_lshl_b32 s61, s41, 2")
        e("s_add_u32 s61, s61, s45")
        e("s_lshl_b32 s61, s61, 2")
        e("v_mov_b32 v6, s61")
        e("v_mov_b32 v7, 1")
        e("s_mov_b64 exec, 1")
        e("buffer_store_dword v7, v6, s[32:35], s70 offen sc1")
        e("s_mov_b64 exec, -1")

    def xwait(ph):
        e("v_and_b32 v6, 31, v1")
        e("v_lshlrev_b32 v6, 2, v6")
        e(f"s_mov_b32 s68, {SPIN_MAX}")
        e(f"L_k2_xs{ph}:")
        e("buffer_load_dword v7, v6, s[32:35], s70 offen sc1")
        e("s_waitcnt vmcnt(0)")
        e("v_cmp_eq_u32 vcc, 0, v7")
        e("s_cmp_eq_u64 vcc, 0")
        e(f"s_cbranch_scc1 L_k2_xs{ph}_go")
        e("s_sleep 2")
        e("s_sub_u32 s68, s68, 1")
        e("s_cmp_lg_u32 s68, 0")
        e(f"s_cbranch_scc1 L_k2_xs{ph}")
        e(f"L_k2_xs{ph}_go:")

    ACC, FR, XR = 8, 72, 136
    x_tile(XR, 146)
    e("s_lshl_b32 s61, s64, 8")
    e(f"s_add_u32 s61, s61, {STAT}")
    e("v_lshlrev_b32 v148, 3, v146")
    e("buffer_load_dwordx2 v[144:145], v148, s[32:35], s61 offen")
    e("s_lshl_b32 s60, s45, 3")
    e("s_lshl_b32 s56, s64, 5"); e("s_add_u32 s56, s56, s60"); e("s_lshl_b32 s56, s56, 10"); e(f"s_add_u32 s56, s56, {HOFF}")
    e("s_lshl_b32 s57, s65, 5"); e("s_add_u32 s57, s57, s60"); e("s_lshl_b32 s57, s57, 10"); e(f"s_add_u32 s57, s57, {W2F}")
    signed_stride(53, 50, 32768)
    signed_stride(54, 51, 32768)
    def hook(ny):
        if OLD:
            e(f"s_waitcnt vmcnt({ny + 5})")
            lds_signal(a, 10, 6, 7); lds_signal(a, 11, 6, 7)
            return
        kv(8, 2)
        e(f"s_waitcnt vmcnt({ny + 5 + 4})")
        lds_signal(a, 9, 6, 7)
    def hook_step(j):
        if j == 4 and not OLD: lds_signal(a, 10, 6, 7)
    gemm(a, "w2", 2, 2, 8, 4, ACC, FR, 56, 57, "s53", "s54", pace=pace, hook=hook, hook_step=hook_step)
    if ENV("K2_FINE") == "1": T.stamp()
    LATE = ENV("K2_LATEKV", "1") == "1"
    def lastkv():
        if Q64:
            kv(16, 4); kv(48, 4)
        else:
            if not OLD: kv(16, 4)
            kv(32, 8)
    if not LATE: lastkv()
    e("s_mul_i32 s66, s41, 5")
    e("s_min_u32 s60, s41, 3")
    e("s_add_u32 s66, s66, s60")
    e("s_and_b32 s61, s40, 3"); e("s_lshl_b32 s61, s61, 2"); e("s_add_u32 s61, s61, s45")
    e("s_lshl_b32 s62, s66, 5"); e("s_mul_i32 s63, s61, 12"); e("s_add_u32 s62, s62, s63"); e("s_lshl_b32 s62, s62, 10"); e(f"s_add_u32 s62, s62, {W3F}")
    e("v_lshlrev_b32 v6, 7, v1")
    e("buffer_load_dword v149, v6, s[32:35], s62 offen")
    e("s_add_u32 s62, s62, 4096")
    e("buffer_load_dword v149, v6, s[32:35], s62 offen")
    reduce22(ACC, FR)
    if ENV("K2_FINE") == "1": T.stamp()
    if not OLD:
        e("s_waitcnt vmcnt(18)")
        lds_signal(a, 11, 6, 7)
    if not LATE:
        e("s_waitcnt vmcnt(2)")
        lds_signal(a, 12, 6, 7)
    U = FR
    e("v_mul_f32 v146, v144, v145")
    e("s_mov_b32 s60, 0xffff0000")
    for p in range(8):
        e(f"v_lshlrev_b32 v{U+2*p}, 16, v{XR+p}")
        e(f"v_and_b32 v{U+2*p+1}, s60, v{XR+p}")
    for r in range(16): e(f"v_sub_f32 v{ACC+r}, v{ACC+r}, v146")
    for r in range(16): e(f"v_fmac_f32 v{ACC+r}, v{U+r}, v145")
    for p in range(8): e(f"v_cvt_pk_bf16_f32 v{ACC+16+p}, v{ACC+2*p}, v{ACC+2*p+1}")
    e("s_lshl_b32 s60, s64, 5"); e("s_lshl_b32 s61, s65, 1"); e("s_add_u32 s60, s60, s61"); e("s_lshl_b32 s60, s60, 10"); e(f"s_add_u32 s60, s60, {X1OFF}")
    e(f"buffer_store_dwordx4 v[{ACC+16}:{ACC+19}], v2, s[32:35], s60 offen sc1")
    e(f"buffer_store_dwordx4 v[{ACC+20}:{ACC+23}], v2, s[32:35], s60 offen offset:1024 sc1")
    if ENV("K2_DUP", "0") == "1":
        e(f"buffer_store_dwordx4 v[{ACC+16}:{ACC+19}], v2, s[32:35], s60 offen")
        e(f"buffer_store_dwordx4 v[{ACC+20}:{ACC+23}], v2, s[32:35], s60 offen offset:1024")
    e(f"v_add_f32 v144, v{ACC}, v{ACC+1}")
    e(f"v_mul_f32 v145, v{ACC}, v{ACC}")
    e(f"v_add_f32 v146, v{ACC+2}, v{ACC+3}")
    e(f"v_mul_f32 v147, v{ACC+1}, v{ACC+1}")
    e(f"v_fmac_f32 v145, v{ACC+2}, v{ACC+2}")
    e(f"v_fmac_f32 v147, v{ACC+3}, v{ACC+3}")
    for r in range(4, 16):
        e(f"v_add_f32 v{144 + 2*(r&1)}, v{144 + 2*(r&1)}, v{ACC+r}")
        e(f"v_fmac_f32 v{145 + 2*(r&1)}, v{ACC+r}, v{ACC+r}")
    e("v_add_f32 v144, v144, v146")
    e("v_add_f32 v145, v145, v147")
    e("v_mov_b32 v146, v144")
    e("v_mov_b32 v147, v145")
    e("s_lshl_b32 s60, s64, 4"); e("s_add_u32 s60, s60, s65")
    e("v_permlane32_swap_b32 v144, v146")
    e("v_permlane32_swap_b32 v145, v147")
    e("s_lshl_b32 s60, s60, 8"); e(f"s_add_u32 s60, s60, {X1STAT}")
    e("v_add_f32 v144, v144, v146")
    e("v_add_f32 v145, v145, v147")
    e("s_mov_b32 exec_hi, 0")
    e("buffer_store_dwordx2 v[144:145], v148, s[32:35], s60 offen sc1")
    e("s_mov_b64 exec, -1")
    T.stamp()
    if ENV("K2_STOP") == "1": e("s_endpgm")

    def colsum():
        e("s_mul_i32 s60, s45, 8*1408*4")
        e("s_lshl_b32 s61, s66, 7")
        e("s_add_u32 s60, s60, s61")
        e(f"s_add_u32 s60, s60, {CS3P}")
        e("s_mov_b32 exec_hi, 0xffff")
        for i in range(8):
            e(f"buffer_load_dwordx4 v[{8+4*i}:{11+4*i}], v2, s[32:35], s60 offen")
            if i < 7: e("s_add_u32 s60, s60, 1408*4")
        e(f"v_add_u32 v6, {L_CS}, v2")
        e("s_waitcnt vmcnt(0)")
        for i in range(1, 8):
            for r in range(4): e(f"v_add_f32 v{8+r}, v{8+r}, v{8+4*i+r}")
        for r in range(4): e(f"ds_add_f32 v6, v{8+r} offset:{4*r}")
        e("s_mov_b64 exec, -1")
    xpub(0)
    if LATE: lastkv()
    colsum()
    if LATE: lds_signal(a, 12, 6, 7)

    ACC, FR = 8, 104
    e("s_mul_i32 s61, s51, 3")
    e("s_add_u32 s67, s66, s61")
    e("s_lshl_b32 s60, s50, 4")
    e("s_lshl_b32 s56, s64, 5"); e("s_add_u32 s56, s56, s60"); e("s_lshl_b32 s56, s56, 10"); e(f"s_add_u32 s56, s56, {X1OFF}")
    e("s_lshl_b32 s57, s67, 5"); e("s_add_u32 s57, s57, s60"); e("s_lshl_b32 s57, s57, 10"); e(f"s_add_u32 s57, s57, {W3F}")
    def w0():
        xwait(0); T.stamp()
    BTW = ENV("K2_BTW", "0") == "1"
    if not BTW: w0()
    gemm(a, "w3", 2, 3, 16, 3, ACC, FR, 56, 57, "s53", 32768, sc_act=" sc1", pace=pace, between=w0 if BTW else None)
    if ENV("K2_FINE") == "1": T.stamp()
    if with_w4 and ENV("K2_W4T", "0") == "1":
        e("s_and_b32 s61, s40, 3"); e("s_lshl_b32 s61, s61, 2"); e("s_add_u32 s61, s61, s45")
        e("s_mul_i32 s62, s41, 172"); e("s_mul_i32 s63, s61, 11"); e("s_add_u32 s62, s62, s63"); e("s_lshl_b32 s62, s62, 10"); e(f"s_add_u32 s62, s62, {W4F}")
        e("v_lshlrev_b32 v6, 7, v1")
        e("buffer_load_dword v163, v6, s[32:35], s62 offen")
        e("s_add_u32 s62, s62, 3072")
        e("buffer_load_dword v163, v6, s[32:35], s62 offen")
    e("v_and_b32 v164, 31, v1")
    e("v_lshrrev_b32 v165, 5, v1")
    e("v_lshlrev_b32 v166, 3, v164")
    e("v_lshl_add_u32 v166, v165, 11, v166")
    e("s_lshl_b32 s60, s64, 12")
    e(f"s_add_u32 s60, s60, {X1STAT}")
    SR = FR + 40
    for j in range(8):
        e(f"buffer_load_dwordx2 v[{SR+2*j}:{SR+2*j+1}], v166, s[32:35], s60 offen offset:{256*j} sc1")
    e(f"v_add_u32 v167, s52, v2")
    e("s_nop 3")
    quads = [(i, q) for i in range(3) for q in range(4)]
    def xwrite(h):
        for s_, (i, q) in enumerate(quads[6*h:6*h+6]):
            r = ACC + 16 * (2 * i + 1) + 4 * q
            e(f"ds_write_b128 v3, v[{r}:{r+3}] offset:{s_*1024}")
    def xread(h):
        for s_ in range(6):
            e(f"ds_read_b128 v[{FR+4*s_}:{FR+4*s_+3}], v167 offset:{s_*1024}")
    def xadd(h):
        for s_, (i, q) in enumerate(quads[6*h:6*h+6]):
            for r in range(4):
                d = ACC + 32 * i + 4 * q + r
                e(f"v_add_f32 v{d}, v{d}, v{FR+4*s_+r}")
    def sig():
        st["n"] += 1
        e("s_waitcnt lgkmcnt(0)")
        lds_signal(a, 8, 6, 7)
        return st["n"]
    def wt(n_):
        lds_wait(a, f"sy{n_}", 8, 4 * n_, 6, 7, 68, 69)
    xwrite(0)
    n1 = sig()
    e("s_waitcnt vmcnt(0)")
    for j in range(1, 8):
        e(f"v_add_f32 v{SR}, v{SR}, v{SR+2*j}")
        e(f"v_add_f32 v{SR+1}, v{SR+1}, v{SR+2*j+1}")
    e(f"v_mov_b32 v{SR+2}, v{SR}")
    e(f"v_mov_b32 v{SR+3}, v{SR+1}")
    e("s_mul_i32 s60, s51, 384")
    e(f"s_add_u32 s60, s60, {L_CS}")
    e(f"v_permlane32_swap_b32 v{SR}, v{SR+2}")
    e(f"v_permlane32_swap_b32 v{SR+1}, v{SR+3}")
    e("v_lshl_add_u32 v166, v165, 4, s60")
    e(f"v_add_f32 v{SR}, v{SR}, v{SR+2}")
    e(f"v_add_f32 v{SR+1}, v{SR+1}, v{SR+3}")
    NMU, C1, C2, IA = SR + 4, SR + 5, SR + 6, SR + 7
    e(f"v_mul_f32 v{NMU}, {f32(-1/512)}, v{SR}")
    e(f"v_mul_f32 v{SR+1}, {f32(1/512)}, v{SR+1}")
    e(f"v_fma_f32 v{SR+1}, -v{NMU}, v{NMU}, v{SR+1}")
    e(f"v_max_f32 v{SR+1}, 0, v{SR+1}")
    e(f"v_add_f32 v{SR+1}, {f32(EPS)}, v{SR+1}")
    e(f"v_rsq_f32 v{SR}, v{SR+1}")
    e("s_mul_i32 s62, s64, 86")
    e(f"v_mul_f32 v{IA}, v{SR+1}, v{SR}")
    e(f"v_mul_f32 v{C1}, {f32(GELU_K1)}, v{SR}")
    e(f"v_mul_f32 v{C2}, v{SR}, v{SR}")
    e(f"v_mul_f32 v{C2}, v{C2}, v{SR}")
    e(f"v_mul_f32 v{C2}, {f32(GELU_K2)}, v{C2}")
    e("s_lshl_b32 s63, s67, 1"); e("s_add_u32 s62, s62, s63"); e("s_lshl_b32 s62, s62, 10"); e(f"s_add_u32 s62, s62, {GOFF}")
    e("s_cmp_ge_u32 s41, 3")
    e("s_cselect_b32 s63, s51, 0")
    CSR = FR + 24
    def epi(i):
        Z = ACC + 32 * i; Tm = Z + 16
        for g in range(4):
            e(f"ds_read_b128 v[{CSR+4*g}:{CSR+4*g+3}], v166 offset:{128*i + 32*g}")
        e("s_waitcnt lgkmcnt(0)")
        R = range(16)
        for r in R: e(f"v_fmac_f32 v{Z+r}, v{NMU}, v{CSR+r}")
        for r in R: e(f"v_mul_f32 v{Tm+r}, v{Z+r}, v{Z+r}")
        for r in R: e(f"v_fma_f32 v{Tm+r}, v{Tm+r}, v{C2}, v{C1}")
        for r in R: e(f"v_mul_f32 v{Tm+r}, v{Tm+r}, v{Z+r}")
        for r in R: e(f"v_exp_f32 v{Tm+r}, v{Tm+r}")
        for r in R: e(f"v_fma_f32 v{Tm+r}, v{Tm+r}, v{IA}, v{IA}")
        for r in R: e(f"v_rcp_f32 v{Tm+r}, v{Tm+r}")
        for r in R: e(f"v_mul_f32 v{Z+r}, v{Z+r}, v{Tm+r}")
        for p in range(8): e(f"v_cvt_pk_bf16_f32 v{Tm+p}, v{Z+2*p}, v{Z+2*p+1}")
        e(f"buffer_store_dwordx4 v[{Tm}:{Tm+3}], v2, s[32:35], s62 offen offset:{(2048*i) % 4096} sc1")
        e(f"buffer_store_dwordx4 v[{Tm+4}:{Tm+7}], v2, s[32:35], s62 offen offset:{(2048*i) % 4096 + 1024} sc1")
        if i == 1: e("s_add_u32 s62, s62, 4096")
    wt(n1)
    xread(0)
    n2 = sig()
    xadd(0)
    if ENV("K2_FINE") == "1": T.stamp()
    wt(n2)
    xwrite(1)
    n3 = sig()
    epi(0)
    wt(n3)
    xread(1)
    e("s_waitcnt lgkmcnt(0)")
    xadd(1)
    epi(1)
    e("s_cmp_eq_u32 s63, 1")
    e("s_cbranch_scc1 L_k2_w3_done")
    epi(2)
    e("L_k2_w3_done:")
    T.stamp()
    if not with_w4: return

    xpub(1)
    if not BTW:
        xwait(1); T.stamp()
    ACC, FR, XR, X1R = 8, 72, 152, 160
    D4 = int(ENV("K2_D4", "5"))
    def xx1():
        x_tile(XR, 3)
        e("s_lshl_b32 s60, s64, 5"); e("s_lshl_b32 s61, s65, 1"); e("s_add_u32 s60, s60, s61"); e("s_lshl_b32 s60, s60, 10"); e(f"s_add_u32 s60, s60, {X1OFF}")
        e(f"buffer_load_dwordx4 v[{X1R}:{X1R+3}], v2, s[32:35], s60 offen sc1")
        e(f"buffer_load_dwordx4 v[{X1R+4}:{X1R+7}], v2, s[32:35], s60 offen offset:1024 sc1")
    xx1()
    e("s_mul_i32 s60, s45, 22")
    e("s_sub_u32 s55, 86, s60")
    e("s_min_u32 s55, s55, 22")
    e("s_mul_i32 s56, s64, 86"); e("s_add_u32 s56, s56, s60"); e("s_lshl_b32 s56, s56, 10"); e(f"s_add_u32 s56, s56, {GOFF}")
    e("s_mul_i32 s57, s65, 86"); e("s_add_u32 s57, s57, s60"); e("s_lshl_b32 s57, s57, 10"); e(f"s_add_u32 s57, s57, {W4F}")
    signed_stride(53, 50, 86 * 1024)
    signed_stride(54, 51, 86 * 1024)
    def w1():
        xwait(1); T.stamp()
    gemm(a, "w4", 2, 2, 22, D4, ACC, FR, 56, 57, "s53", "s54", s_cnt=55, sc_act=" sc1", pace=pace, between=w1 if BTW else None)
    if ENV("K2_FINE") == "1": T.stamp()
    e("s_nop 7"); e("s_nop 3")
    e("s_mov_b32 s60, 0xffff0000")
    for base in (XR, X1R):
        for p in range(8):
            e(f"v_lshlrev_b32 v{FR+2*p}, 16, v{base+p}")
            e(f"v_and_b32 v{FR+2*p+1}, s60, v{base+p}")
        for r in range(16): e(f"v_add_f32 v{ACC+r}, v{ACC+r}, v{FR+r}")
    e("s_lshl_b32 s60, s45, 3")
    e("s_lshl_b32 s56, s64, 5"); e("s_add_u32 s56, s56, s60"); e("s_lshl_b32 s56, s56, 10"); e(f"s_add_u32 s56, s56, {OOFF}")
    e("s_lshl_b32 s57, s65, 5"); e("s_add_u32 s57, s57, s60"); e("s_lshl_b32 s57, s57, 10"); e(f"s_add_u32 s57, s57, {WOF}")
    signed_stride(53, 50, 32768)
    signed_stride(54, 51, 32768)
    e("s_add_u32 s53, s53, s56")
    e("s_add_u32 s54, s54, s57")
    OR_, WR = 72, 136
    def wload(j):
        r = WR + 8 * (j % 4)
        o = 1024 * (j % 4)
        e(f"buffer_load_dwordx4 v[{r}:{r+3}], v2, s[32:35], s57 offen offset:{o}")
        e(f"buffer_load_dwordx4 v[{r+4}:{r+7}], v2, s[32:35], s54 offen offset:{o}")
    for j in range(4): wload(j)
    e("s_add_u32 s57, s57, 4096"); e("s_add_u32 s54, s54, 4096")
    e("s_lshl_b32 s70, s40, 8")
    e("s_lshl_b32 s60, s45, 5")
    e("s_add_u32 s70, s70, s60")
    e(f"s_add_u32 s70, s70, {OFLAG}")
    e("v_and_b32 v6, 7, v1")
    e("v_lshlrev_b32 v6, 2, v6")
    e("v_bfe_u32 v7, v1, 3, 1")
    e("v_lshl_add_u32 v6, v7, 7, v6")
    e(f"s_mov_b32 s68, {SPIN_MAX}")
    e("s_setprio 0")
    e("L_k2_ow:")
    e("buffer_load_dword v7, v6, s[32:35], s70 offen sc1")
    e("s_waitcnt vmcnt(0)")
    e("v_cmp_eq_u32 vcc, 0, v7")
    e("s_cmp_eq_u64 vcc, 0")
    e("s_cbranch_scc1 L_k2_ow_go")
    e("s_sleep 2")
    e("s_sub_u32 s68, s68, 1")
    e("s_cmp_lg_u32 s68, 0")
    e("s_cbranch_scc1 L_k2_ow")
    e("L_k2_ow_go:")
    e("s_setprio 3")
    if ENV("K2_FINE") == "1": T.stamp()
    for j in range(8):
        if j == 4: e("s_add_u32 s56, s56, 4096"); e("s_add_u32 s53, s53, 4096")
        r = OR_ + 8 * j
        e(f"buffer_load_dwordx4 v[{r}:{r+3}], v2, s[32:35], s56 offen offset:{1024*(j%4)} sc1")
        e(f"buffer_load_dwordx4 v[{r+4}:{r+7}], v2, s[32:35], s53 offen offset:{1024*(j%4)} sc1")
    lds_wait(a, "ad", 13, 8, 6, 7, 68, 69)
    for j in range(1, 4):
        e(f"s_xor_b32 s60, s45, {j}")
        e("s_mul_i32 s60, s60, 12288")
        e(f"s_add_u32 s60, s60, {(j-1)*4096}")
        e(f"v_add_u32 v{2+j}, s60, v2")
    for j in range(8):
        if j < 4: e(f"s_waitcnt vmcnt({2*(7-j) + 2*j})")
        else: e(f"s_waitcnt vmcnt({2*(7-j)})")
        w = WR + 8 * (j % 4); o = OR_ + 8 * j
        for i in range(2):
            for t in range(2):
                d = ACC + 16 * (2 * i + t)
                e(f"v_mfma_f32_32x32x16_bf16 v[{d}:{d+15}], v[{w+4*i}:{w+4*i+3}], v[{o+4*t}:{o+4*t+3}], v[{d}:{d+15}]")
        if j < 4: wload(j + 4)
    e("s_mul_i32 s60, s45, 12288")
    e("v_add_u32 v136, s60, v2")
    e("v_and_b32 v152, 31, v1")
    e("v_lshrrev_b32 v153, 5, v1")
    e("v_lshlrev_b32 v154, 10, v152")
    e("v_lshl_add_u32 v154, v153, 4, v154")
    e("s_nop 7")
    for j in range(1, 4):
        for q in range(4):
            r = ACC + 16 * j + 4 * q
            e(f"ds_write_b128 v{2+j}, v[{r}:{r+3}] offset:{q*1024}")
    sync()
    for i in range(12):
        e(f"ds_read_b128 v[{FR+4*i}:{FR+4*i+3}], v136 offset:{i*1024}")
    for j in range(3):
        e(f"s_waitcnt lgkmcnt({8-4*j})")
        for r in range(16): e(f"v_add_f32 v{ACC+r}, v{ACC+r}, v{FR+16*j+r}")
    for p in range(8): e(f"v_cvt_pk_bf16_f32 v{FR+p}, v{ACC+2*p}, v{ACC+2*p+1}")
    e("s_lshl_b32 s60, s64, 15")
    e("s_lshl_b32 s61, s65, 6")
    e(f"v_permlane32_swap_b32 v{FR}, v{FR+2}")
    e(f"v_permlane32_swap_b32 v{FR+1}, v{FR+3}")
    e(f"v_permlane32_swap_b32 v{FR+4}, v{FR+6}")
    e(f"v_permlane32_swap_b32 v{FR+5}, v{FR+7}")
    e("s_add_u32 s60, s60, s61")
    OST = ENV("K2_OST", "")
    e(f"buffer_store_dwordx4 v[{FR}:{FR+3}], v154, s[28:31], s60 offen{OST}")
    e(f"buffer_store_dwordx4 v[{FR+4}:{FR+7}], v154, s[28:31], s60 offen offset:32{OST}")
    T.stamp()


def gen_k2(with_w4=True):
    a = Asm("k2"); e = a.e
    T = Stamper(a, 72, 1)
    T.stamp()
    e("s_cmp_ge_u32 s2, 256")
    e("s_cbranch_scc1 L_k2_exit")
    e("s_load_dwordx2 s[4:5], s[0:1], 0")
    e("s_load_dwordx2 s[6:7], s[0:1], 64")
    e("s_load_dwordx2 s[20:21], s[0:1], 80")
    e("v_lshrrev_b32 v1, 6, v0")
    e("s_and_b32 s54, s2, 7")
    e("v_readfirstlane_b32 s44, v1")
    e("v_and_b32 v1, 63, v0")
    e("v_lshlrev_b32 v2, 4, v1")
    e("s_lshl_b32 s40, s54, 2")
    e("s_bfe_u32 s54, s2, 0x20003")
    e("s_add_u32 s40, s40, s54")
    e("s_lshr_b32 s41, s2, 5")
    e("s_mov_b32 s45, s44")
    for r in range(4, 8): e(f"v_mov_b32 v{r}, 0")
    e(f"v_add_u32 v3, {L_CS}, v2")
    e("ds_write_b128 v3, v[4:7]")
    e("s_waitcnt lgkmcnt(0)")
    e("s_barrier")
    a.srd(32, 20, WS_USED)
    e("s_cmp_ge_u32 s44, 8")
    e("s_cbranch_scc1 L_k2_b")
    if ENV("K2_NOA") == "1":
        e("s_endpgm")
    (attn_wave64 if Q64 else attn_wave)(a, T)
    T.stamp()
    T.dump(32, 44, 12, 4, 5)
    e("s_endpgm")
    e("L_k2_b:")
    b_waves(a, T, with_w4)
    T.dump(32, 44, 12, 4, 5)
    e("L_k2_exit:")
    e("s_endpgm")
    return a.kernel(vgpr=168, sgpr=96)
```

```python
from common import *

L_K = 0
L_V = 65536
L_ONES = 131072
L_B = L_ONES + 5632
L_CS = L_B + 24576
L_FLG = L_CS + 768
K2_LDS = L_FLG + 256
SPIN_MAX = 20000
BIG = 0x7ff00000
ENV = os.environ.get
FUSE = ENV("K2_FUSE", "1") == "1"
Q64 = ENV("K2_Q64", "1") == "1"


def lds_signal(a, idx, va, vb):
    e = a.e
    e(f"v_mov_b32 v{va}, {L_FLG + 4*idx}")
    e(f"v_mov_b32 v{vb}, 1")
    e("s_mov_b64 exec, 1")
    e(f"ds_add_u32 v{va}, v{vb}")
    e("s_mov_b64 exec, -1")


def lds_wait(a, tag, idx, target, va, vb, s0, s1, sleep=1, setaddr=True):
    e = a.e
    if setaddr: e(f"v_mov_b32 v{va}, {L_FLG + 4*idx}")
    e(f"s_mov_b32 s{s0}, {SPIN_MAX}")
    e(f"L_{a.name}_lw{tag}:")
    e(f"ds_read_b32 v{vb}, v{va}")
    e("s_waitcnt lgkmcnt(0)")
    e(f"v_readfirstlane_b32 s{s1}, v{vb}")
    e(f"s_cmp_ge_u32 s{s1}, {target}")
    e(f"s_cbranch_scc1 L_{a.name}_lw{tag}_go")
    e(f"s_sleep {sleep}")
    e(f"s_sub_u32 s{s0}, s{s0}, 1")
    e(f"s_cmp_lg_u32 s{s0}, 0")
    e(f"s_cbranch_scc1 L_{a.name}_lw{tag}")
    e(f"L_{a.name}_lw{tag}_go:")


def attn_wave(a, T):
    e = a.e; n = a.name
    e("s_lshl_b32 s48, s41, 3")
    e("s_add_u32 s48, s48, s45")
    e("s_lshl_b32 s49, s40, 6")
    e("s_add_u32 s49, s49, s48")
    e("s_lshl_b32 s49, s49, 10")
    e("buffer_load_dwordx4 v[8:11], v2, s[32:35], s49 offen")
    e("v_and_b32 v5, 1, v1")
    e("v_cmp_eq_u32 vcc, 0, v5")
    e("v_mov_b32 v5, 0x3f80")
    e("v_mov_b32 v33, 0"); e("v_mov_b32 v35, 0")
    e("v_cndmask_b32 v32, 0, v5, vcc")
    e("v_mov_b32 v34, v32")
    e("v_lshlrev_b32 v3, 4, v0")
    e(f"v_cmp_gt_u32 vcc, 5632, v3")
    e(f"v_add_u32 v3, {L_ONES}, v3")
    e("s_and_saveexec_b64 s[50:51], vcc")
    e("ds_write_b128 v3, v[32:35]")
    e("s_mov_b64 exec, -1")
    e("v_lshrrev_b32 v5, 5, v1")
    e("v_bfe_u32 v6, v1, 4, 1")
    e("v_xor_b32 v7, v5, v6")
    e("v_and_b32 v3, 15, v1")
    e("v_lshlrev_b32 v3, 3, v3")
    e("v_lshl_add_u32 v3, v7, 7, v3")
    e("v_lshl_add_u32 v3, v6, 16, v3")
    e(f"v_add_u32 v112, {L_V}, v3")
    e("v_xor_b32 v4, 1, v6")
    e("v_lshlrev_b32 v4, 12, v4")
    e("s_mov_b32 s56, 0")
    e("s_lshl_b32 s51, s45, 2")
    e(f"s_add_u32 s51, s51, {L_FLG + 64}")
    e("v_mov_b32 v113, s51")
    e("v_xor_b32 v114, 16, v113")
    e("v_mov_b32 v115, 0")
    e("v_mov_b32 v116, 0")
    e("s_waitcnt lgkmcnt(0)")
    lds_signal(a, 9, 5, 6)
    lds_wait(a, "c0", 9, 12, 5, 6, 51, 52)
    T.stamp()
    e("ds_read_b128 v[88:91], v2")
    e("s_waitcnt vmcnt(0) lgkmcnt(0)")
    e("v_mfma_f32_32x32x16_bf16 v[32:47], v[88:91], v[8:11], 0")
    e("s_nop 7"); e("s_nop 3")
    e("v_max3_f32 v16, v32, v33, v34")
    e("v_max3_f32 v17, v35, v36, v37")
    e("v_max3_f32 v16, v16, v38, v39")
    e("v_max3_f32 v17, v17, v40, v41")
    e("v_max3_f32 v16, v16, v42, v43")
    e("v_max3_f32 v17, v17, v44, v45")
    e("v_max3_f32 v16, v16, v46, v47")
    e(f"L_{n}_setmax:")
    e("v_max_f32 v16, v16, v17")
    e("v_mov_b32 v12, v2")
    e("v_mov_b32 v17, v16")
    e("v_mov_b32 v3, v112")
    e("ds_read_b128 v[88:91], v12")
    e("ds_read_b128 v[92:95], v12 offset:1024")
    e("v_permlane32_swap_b32 v16, v17")
    for u in range(2):
        for t in range(2):
            e(f"ds_read_b64_tr_b16 v[{96+4*u+2*t}:{97+4*u+2*t}], v3 offset:{512*u+256*t}")
    e("v_max_f32 v16, v16, v17")
    e("v_sub_f32 v16, 0, v16")
    for r in range(17, 32): e(f"v_mov_b32 v{r}, v16")
    for r in list(range(68, 88)) + list(range(104, 112)): e(f"v_mov_b32 v{r}, 0")
    e("s_waitcnt lgkmcnt(5)")
    e("v_mfma_f32_32x32x16_bf16 v[32:47], v[88:91], v[8:11], v[16:31]")
    e("s_nop 7")
    e("s_mov_b32 s55, 0")
    e(f"L_{n}_loop:")
    e("s_add_u32 s51, s55, 1")
    e("s_and_b32 s52, s51, s55")
    e("s_cmp_lg_u32 s52, 0")
    e(f"s_cbranch_scc1 L_{n}_nobar")
    e("s_cmp_eq_u32 s55, 0")
    e(f"s_cbranch_scc1 L_{n}_nobar")
    e("s_cmp_eq_u32 s55, 15")
    e(f"s_cbranch_scc1 L_{n}_nobar")
    e("s_bcnt1_i32_b32 s51, s55")
    e("s_lshl_b32 s51, s51, 2")
    e(f"s_add_u32 s51, s51, {L_FLG + 36}")
    e("v_mov_b32 v5, s51")
    lds_wait(a, "c1", 0, 4, 5, 6, 51, 52, setaddr=False)
    e(f"L_{n}_nobar:")
    X = lambda r: e(f"v_exp_f32 v{r}, v{r}")
    fair = ENV("K2_FAIR", "1") == "1"
    for tl in range(4):
        S = 32 + 16 * (tl % 2); Sn = 32 + 16 * ((tl + 1) % 2)
        Kn = 88 + 4 * ((tl + 1) % 2); Knn = 88 + 4 * (tl % 2)
        V = 96 + 8 * (tl % 2); Vp = 96 + 8 * ((tl + 1) % 2)
        e("s_waitcnt lgkmcnt(4)")
        e(f"v_mfma_f32_32x32x16_bf16 v[{Sn}:{Sn+15}], v[{Kn}:{Kn+3}], v[8:11], v[16:31]")
        if fair and tl == 0:
            e("ds_write_b32 v113, v115")
            e("ds_read_b32 v116, v114")
        e(f"ds_read_b128 v[{Knn}:{Knn+3}], v12 offset:{1024*(tl+2)}")
        X(S); X(S + 1); X(S + 2)
        e(f"v_mfma_f32_32x32x16_bf16 v[72:87], v[{Vp+4}:{Vp+7}], v[68:71], v[72:87]")
        for u in range(2):
            for t in range(2):
                e(f"ds_read_b64_tr_b16 v[{Vp+4*u+2*t}:{Vp+4*u+2*t+1}], v3 offset:{1024*(tl+1)+512*u+256*t}")
        if fair and tl == 1:
            e("v_readfirstlane_b32 s51, v116")
            e("v_add_u32 v115, 1, v115")
            e("s_cmp_gt_u32 s55, s51")
            e(f"s_cbranch_scc1 L_{n}_lo")
            e("s_setprio 1")
            e(f"s_branch L_{n}_pd")
            e(f"L_{n}_lo:")
            e("s_setprio 0")
            e(f"L_{n}_pd:")
        for i in range(3, 9): X(S + i)
        for i in range(4): e(f"v_cvt_pk_bf16_f32 v{64+i}, v{S+2*i}, v{S+2*i+1}")
        X(S + 9); X(S + 10)
        e("s_waitcnt lgkmcnt(5)")
        e(f"v_mfma_f32_32x32x16_bf16 v[72:87], v[{V}:{V+3}], v[64:67], v[72:87]")
        for i in range(11, 16): X(S + i)
        if tl == 3:
            e("v_add_u32 v12, 4096, v12")
            e("v_add_u32 v3, v4, v3")
        else:
            e("s_nop 0")
        for i in range(4, 8): e(f"v_cvt_pk_bf16_f32 v{64+i}, v{S+2*i}, v{S+2*i+1}")
    e("s_add_u32 s55, s55, 1")
    e("s_cmp_lt_u32 s55, 16")
    e(f"s_cbranch_scc1 L_{n}_loop")
    e("v_mfma_f32_32x32x16_bf16 v[72:87], v[108:111], v[68:71], v[72:87]")
    T.stamp()
    e("s_lshl_b32 s49, s48, 5")
    e("s_add_u32 s49, s49, s40")
    e("s_lshl_b32 s49, s49, 10")
    e(f"s_add_u32 s49, s49, {OOFF}")
    e("s_waitcnt lgkmcnt(0)")
    e("s_nop 7")
    e("v_mul_f32 v32, 0, v72")
    for r in range(73, 80): e(f"v_fma_f32 v32, v{r}, 0, v32")
    e(f"v_mov_b32 v33, {f32(2.0**60)}")
    e("v_add_f32 v32, v32, v80")
    e("v_cmp_nlt_f32 vcc, v32, v33")
    e("s_cmp_lg_u32 s56, 0")
    e(f"s_cbranch_scc1 L_{n}_store")
    e("s_cmp_eq_u64 vcc, 0")
    e(f"s_cbranch_scc1 L_{n}_store")
    e("s_mov_b32 s56, 1")
    e("s_mov_b32 s55, 0")
    e("v_mov_b32 v12, v2")
    e("v_mov_b32 v16, 0xff800000")
    e("v_mov_b32 v17, 0xff800000")
    e(f"L_{n}_mloop:")
    e("ds_read_b128 v[88:91], v12")
    e("s_waitcnt lgkmcnt(0)")
    e("v_mfma_f32_32x32x16_bf16 v[32:47], v[88:91], v[8:11], 0")
    e("v_add_u32 v12, 1024, v12")
    e("s_nop 7"); e("s_nop 3")
    for i in range(4):
        e(f"v_max3_f32 v16, v16, v{32+4*i}, v{33+4*i}")
        e(f"v_max3_f32 v17, v17, v{34+4*i}, v{35+4*i}")
    e("s_add_u32 s55, s55, 1")
    e("s_cmp_lt_u32 s55, 64")
    e(f"s_cbranch_scc1 L_{n}_mloop")
    e(f"s_branch L_{n}_setmax")
    e(f"L_{n}_store:")
    lds_signal(a, 13, 5, 6)
    e("v_rcp_f32 v80, v80")
    e("s_nop 0")
    for r in range(72, 80): e(f"v_mul_f32 v{r}, v{r}, v80")
    for p in range(4): e(f"v_cvt_pk_bf16_f32 v{64+p}, v{72+2*p}, v{73+2*p}")
    if FUSE:
        e("buffer_store_dwordx4 v[64:67], v2, s[32:35], s49 offen sc1")
        e("s_lshl_b32 s49, s48, 5")
        e("s_add_u32 s49, s49, s40")
        e("s_lshl_b32 s49, s49, 2")
        e(f"s_add_u32 s49, s49, {OFLAG}")
        e("v_mov_b32 v5, 0")
        e("v_mov_b32 v6, 1")
        e("s_waitcnt vmcnt(0)")
        e("s_mov_b64 exec, 1")
        e("buffer_store_dword v6, v5, s[32:35], s49 offen sc1")
        e("s_mov_b64 exec, -1")
    else:
        e("buffer_store_dwordx4 v[64:67], v2, s[32:35], s49 offen")


def attn_wave64(a, T):
    e = a.e; n = a.name
    e("s_and_b32 s46, s45, 3")
    e("s_lshr_b32 s47, s45, 2")
    e("s_lshl_b32 s48, s41, 3")
    e("s_lshl_b32 s49, s46, 1")
    e("s_add_u32 s48, s48, s49")
    e("s_add_u32 s48, s48, s47")
    e("s_xor_b32 s49, s48, 1")
    e("s_lshl_b32 s50, s40, 6")
    e("s_add_u32 s51, s50, s48"); e("s_lshl_b32 s51, s51, 10")
    e("s_add_u32 s52, s50, s49"); e("s_lshl_b32 s52, s52, 10")
    e("buffer_load_dwordx4 v[8:11], v2, s[32:35], s51 offen")
    e("buffer_load_dwordx4 v[12:15], v2, s[32:35], s52 offen")
    e("v_and_b32 v5, 1, v1")
    e("v_cmp_eq_u32 vcc, 0, v5")
    e("v_mov_b32 v5, 0x3f80")
    e("v_mov_b32 v33, 0"); e("v_mov_b32 v35, 0")
    e("v_cndmask_b32 v32, 0, v5, vcc")
    e("v_mov_b32 v34, v32")
    e("v_lshlrev_b32 v3, 4, v0")
    e(f"v_cmp_gt_u32 vcc, 5632, v3")
    e(f"v_add_u32 v3, {L_ONES}, v3")
    e("s_and_saveexec_b64 s[50:51], vcc")
    e("ds_write_b128 v3, v[32:35]")
    e("s_mov_b64 exec, -1")
    e("v_lshrrev_b32 v5, 5, v1")
    e("v_bfe_u32 v6, v1, 4, 1")
    e("v_xor_b32 v7, v5, v6")
    e("v_and_b32 v3, 15, v1")
    e("v_lshlrev_b32 v3, 3, v3")
    e("v_lshl_add_u32 v3, v7, 7, v3")
    e("s_lshl_b32 s53, s47, 15")
    e(f"s_add_u32 s51, s53, {L_V}")
    e("v_mov_b32 v7, s51")
    e(f"v_mov_b32 v160, {L_ONES}")
    e("v_cmp_eq_u32 vcc, 1, v6")
    e("v_xor_b32 v4, 1, v6")
    e("v_lshlrev_b32 v4, 12, v4")
    e("v_cndmask_b32 v7, v7, v160, vcc")
    e("v_add_u32 v160, v7, v3")
    e("v_add_u32 v165, s53, v2")
    e("s_mov_b32 s56, 0")
    e("s_lshl_b32 s51, s45, 2")
    e(f"s_add_u32 s51, s51, {L_FLG + 64}")
    e("v_mov_b32 v161, s51")
    e("v_xor_b32 v162, 16, v161")
    e("v_mov_b32 v163, 0")
    e("v_mov_b32 v164, 0")
    e("s_waitcnt lgkmcnt(0)")
    lds_signal(a, 9, 5, 6)
    lds_wait(a, "c0", 9, 12, 5, 6, 51, 52)
    T.stamp()
    e("ds_read_b128 v[112:115], v165")
    e("s_waitcnt vmcnt(0) lgkmcnt(0)")
    e("v_mfma_f32_32x32x16_bf16 v[32:47], v[112:115], v[8:11], 0")
    e("v_mfma_f32_32x32x16_bf16 v[48:63], v[112:115], v[12:15], 0")
    e("s_nop 7"); e("s_nop 3")
    for (m, S) in ((16, 32), (144, 48)):
        e(f"v_max3_f32 v{m}, v{S}, v{S+1}, v{S+2}")
        e(f"v_max3_f32 v{m+1}, v{S+3}, v{S+4}, v{S+5}")
        e(f"v_max3_f32 v{m}, v{m}, v{S+6}, v{S+7}")
        e(f"v_max3_f32 v{m+1}, v{m+1}, v{S+8}, v{S+9}")
        e(f"v_max3_f32 v{m}, v{m}, v{S+10}, v{S+11}")
        e(f"v_max3_f32 v{m+1}, v{m+1}, v{S+12}, v{S+13}")
        e(f"v_max3_f32 v{m}, v{m}, v{S+14}, v{S+15}")
    e(f"L_{n}_setmax:")
    e("v_max_f32 v16, v16, v17")
    e("v_max_f32 v144, v144, v145")
    e("v_mov_b32 v17, v16")
    e("v_mov_b32 v145, v144")
    e("v_mov_b32 v120, v165")
    e("v_mov_b32 v3, v160")
    e("v_permlane32_swap_b32 v16, v17")
    e("v_permlane32_swap_b32 v144, v145")
    e("ds_read_b128 v[112:115], v120")
    e("ds_read_b128 v[116:119], v120 offset:1024")
    for u in range(2):
        for t in range(2):
            e(f"ds_read_b64_tr_b16 v[{128+4*u+2*t}:{129+4*u+2*t}], v3 offset:{512*u+256*t}")
    e("v_max_f32 v16, v16, v17")
    e("v_max_f32 v144, v144, v145")
    e("v_sub_f32 v16, 0, v16")
    e("v_sub_f32 v144, 0, v144")
    for r in range(17, 32): e(f"v_mov_b32 v{r}, v16")
    for r in range(145, 160): e(f"v_mov_b32 v{r}, v144")
    for r in list(range(76, 112)) + list(range(136, 144)): e(f"v_mov_b32 v{r}, 0")
    e("s_waitcnt lgkmcnt(5)")
    e("v_mfma_f32_32x32x16_bf16 v[32:47], v[112:115], v[8:11], v[16:31]")
    e("s_nop 7")
    e("s_mov_b32 s55, 0")
    e(f"L_{n}_loop:")
    e("s_cmp_eq_u32 s55, 1")
    e(f"s_cbranch_scc1 L_{n}_g")
    e("s_cmp_lg_u32 s55, 3")
    e(f"s_cbranch_scc1 L_{n}_nobar")
    e(f"L_{n}_g:")
    e("s_lshl_b32 s51, s55, 2")
    e(f"s_add_u32 s51, s51, {L_FLG + 36}")
    e("v_mov_b32 v5, s51")
    lds_wait(a, "c1", 0, 4, 5, 6, 51, 52, setaddr=False)
    e(f"L_{n}_nobar:")
    X = lambda r: e(f"v_exp_f32 v{r}, v{r}")
    def CV(d, s): e(f"v_cvt_pk_bf16_f32 v{d}, v{s}, v{s+1}")
    for tl in range(4):
        K = 112 + 4 * (tl % 2); Kn = 112 + 4 * ((tl + 1) % 2)
        V = 128 + 8 * (tl % 2); Vp = 128 + 8 * ((tl + 1) % 2)
        e(f"v_mfma_f32_32x32x16_bf16 v[48:63], v[{K}:{K+3}], v[12:15], v[144:159]")
        if tl in (0, 2):
            e("ds_write_b32 v161, v163")
            e("ds_read_b32 v164, v162")
        e(f"ds_read_b128 v[{K}:{K+3}], v120 offset:{1024*(tl+2)}")
        X(32); X(33); X(34)
        e(f"v_mfma_f32_32x32x16_bf16 v[96:111], v[{Vp+4}:{Vp+7}], v[76:79], v[96:111]")
        for u in range(2):
            for t in range(2):
                e(f"ds_read_b64_tr_b16 v[{Vp+4*u+2*t}:{Vp+4*u+2*t+1}], v3 offset:{1024*(tl+1)+512*u+256*t}")
        if tl in (1, 3):
            e("v_readfirstlane_b32 s51, v164")
            e("v_add_u32 v163, 1, v163")
            e("s_lshl_b32 s52, s55, 1")
            e(f"s_add_u32 s52, s52, {tl >> 1}")
            e("s_cmp_gt_u32 s52, s51")
            e(f"s_cbranch_scc1 L_{n}_lo{tl}")
            e("s_setprio 1")
            e(f"s_branch L_{n}_pd{tl}")
            e(f"L_{n}_lo{tl}:")
            e("s_setprio 0")
            e(f"L_{n}_pd{tl}:")
        for i in range(3, 9): X(32 + i)
        for i in range(4): CV(64 + i, 32 + 2 * i)
        X(41); X(42)
        e("s_waitcnt lgkmcnt(5)")
        e(f"v_mfma_f32_32x32x16_bf16 v[80:95], v[{V}:{V+3}], v[64:67], v[80:95]")
        for i in range(11, 16): X(32 + i)
        X(48)
        for i in range(4, 8): CV(64 + i, 32 + 2 * i)
        X(49); X(50)
        e(f"v_mfma_f32_32x32x16_bf16 v[80:95], v[{V+4}:{V+7}], v[68:71], v[80:95]")
        X(51); X(52); X(53)
        e(f"v_mfma_f32_32x32x16_bf16 v[32:47], v[{Kn}:{Kn+3}], v[8:11], v[16:31]")
        for i in range(6, 9): X(48 + i)
        for i in range(4): CV(72 + i, 48 + 2 * i)
        X(57); X(58)
        e(f"v_mfma_f32_32x32x16_bf16 v[96:111], v[{V}:{V+3}], v[72:75], v[96:111]")
        for i in range(11, 16): X(48 + i)
        if tl == 3:
            e("v_add_u32 v3, v4, v3")
            e("v_add_u32 v120, 4096, v120")
        else:
            e("s_nop 0")
        for i in range(4, 8): CV(72 + i, 48 + 2 * i)
    e("s_add_u32 s55, s55, 1")
    e("s_cmp_lt_u32 s55, 8")
    e(f"s_cbranch_scc1 L_{n}_loop")
    e("v_mfma_f32_32x32x16_bf16 v[96:111], v[140:143], v[76:79], v[96:111]")
    T.stamp()
    e("s_waitcnt lgkmcnt(0)")
    e("s_nop 7"); e("s_nop 3")
    e("v_mul_f32 v32, 0, v80")
    for r in list(range(81, 88)) + list(range(96, 104)): e(f"v_fma_f32 v32, v{r}, 0, v32")
    e(f"v_mov_b32 v33, {f32(2.0**60)}")
    e("v_add_f32 v32, v32, v88")
    e("v_add_f32 v32, v32, v104")
    e("v_cmp_nlt_f32 vcc, v32, v33")
    e("s_cmp_lg_u32 s56, 0")
    e(f"s_cbranch_scc1 L_{n}_comb")
    e("s_cmp_eq_u64 vcc, 0")
    e(f"s_cbranch_scc1 L_{n}_comb")
    e("s_mov_b32 s56, 1")
    e("s_mov_b32 s55, 0")
    e("v_mov_b32 v120, v165")
    for r in (16, 17, 144, 145): e(f"v_mov_b32 v{r}, 0xff800000")
    e(f"L_{n}_mloop:")
    e("ds_read_b128 v[112:115], v120")
    e("s_waitcnt lgkmcnt(0)")
    e("v_mfma_f32_32x32x16_bf16 v[32:47], v[112:115], v[8:11], 0")
    e("v_mfma_f32_32x32x16_bf16 v[48:63], v[112:115], v[12:15], 0")
    e("v_add_u32 v120, 1024, v120")
    e("s_nop 7"); e("s_nop 3")
    for (m, S) in ((16, 32), (144, 48)):
        for i in range(4):
            e(f"v_max3_f32 v{m}, v{m}, v{S+4*i}, v{S+1+4*i}")
            e(f"v_max3_f32 v{m+1}, v{m+1}, v{S+2+4*i}, v{S+3+4*i}")
    e("s_add_u32 s55, s55, 1")
    e("s_cmp_lt_u32 s55, 32")
    e(f"s_cbranch_scc1 L_{n}_mloop")
    e(f"s_branch L_{n}_setmax")
    e(f"L_{n}_comb:")
    e("v_mov_b32 v105, v144")
    e("s_mul_i32 s51, s45, 3072")
    e(f"s_add_u32 s51, s51, {L_B}")
    e("v_add_u32 v3, s51, v2")
    e("s_xor_b32 s51, s45, 4")
    e("s_mul_i32 s51, s51, 3072")
    e(f"s_add_u32 s51, s51, {L_B}")
    e("v_add_u32 v7, s51, v2")
    lds_wait(a, "hd", 14, 4, 5, 6, 51, 52)
    e("ds_write_b128 v3, v[96:99]")
    e("ds_write_b128 v3, v[100:103] offset:1024")
    e("ds_write_b128 v3, v[104:107] offset:2048")
    e("s_lshl_b32 s51, s45, 2")
    e(f"s_add_u32 s51, s51, {L_FLG}")
    e("v_mov_b32 v5, s51")
    e("v_mov_b32 v6, 1")
    e("s_waitcnt lgkmcnt(0)")
    e("ds_write_b32 v5, v6")
    e("v_xor_b32 v5, 16, v5")
    e("v_mov_b32 v3, v7")
    lds_wait(a, "pr", 0, 1, 5, 6, 51, 52, setaddr=False)
    e("ds_read_b128 v[96:99], v3")
    e("ds_read_b128 v[100:103], v3 offset:1024")
    e("ds_read_b128 v[104:107], v3 offset:2048")
    e("s_lshl_b32 s49, s48, 5")
    e("s_add_u32 s49, s49, s40")
    e("s_lshl_b32 s50, s49, 2")
    e(f"s_add_u32 s50, s50, {OFLAG}")
    e("s_lshl_b32 s49, s49, 10")
    e(f"s_add_u32 s49, s49, {OOFF}")
    e("s_waitcnt lgkmcnt(0)")
    lds_signal(a, 13, 5, 6)
    e("v_min_f32 v32, v16, v105")
    e("v_sub_f32 v33, v32, v16")
    e("v_sub_f32 v34, v32, v105")
    e("v_exp_f32 v33, v33")
    e("v_exp_f32 v34, v34")
    e("s_nop 0")
    e("v_mul_f32 v88, v88, v33")
    e("v_fmac_f32 v88, v104, v34")
    e("v_rcp_f32 v88, v88")
    e("s_nop 0")
    e("v_mul_f32 v33, v33, v88")
    e("v_mul_f32 v34, v34, v88")
    for i in range(8): e(f"v_mul_f32 v{80+i}, v{80+i}, v33")
    for i in range(8): e(f"v_fmac_f32 v{80+i}, v{96+i}, v34")
    for p in range(4): e(f"v_cvt_pk_bf16_f32 v{64+p}, v{80+2*p}, v{81+2*p}")
    e("buffer_store_dwordx4 v[64:67], v2, s[32:35], s49 offen sc1")
    e("v_mov_b32 v5, 0")
    e("v_mov_b32 v6, 1")
    e("s_waitcnt vmcnt(0)")
    e("s_mov_b64 exec, 1")
    e("buffer_store_dword v6, v5, s[32:35], s50 offen sc1")
    e("s_mov_b64 exec, -1")


def gemm(a, tag, nact, nw, N, D, acc, fr, s_act, s_w, st_act, st_w, s_cnt=None, sc_act="", pace=None, hook=None, hook_step=None, noinit=False, between=None):
    e = a.e
    nf = nact + nw
    def F(r, i): return fr + 4 * (nf * r + i)
    def issue(r, part=3):
        if part != 3:
            for t in range(nact if part == 1 else 0):
                e(f"s_add_u32 s62, s{s_act}, {1024*r}")
                if t: e(f"s_add_u32 s62, s62, {st_act}")
                e(f"buffer_load_dwordx4 v[{F(r,t)}:{F(r,t)+3}], v2, s[32:35], s62 offen{sc_act}")
            for i in range(nw if part == 2 else 0):
                e(f"s_add_u32 s62, s{s_w}, {1024*r}")
                if i: e(f"s_add_u32 s62, s62, {st_w if isinstance(st_w, str) else i*st_w}")
                e(f"buffer_load_dwordx4 v[{F(r,nact+i)}:{F(r,nact+i)+3}], v2, s[32:35], s62 offen")
            return
        if s_cnt is not None:
            e(f"s_cmp_gt_i32 s{s_cnt}, 0")
            e(f"s_cselect_b32 s60, s{s_act}, s59")
            e(f"s_cselect_b32 s61, s{s_w}, s59")
            e(f"s_sub_i32 s{s_cnt}, s{s_cnt}, 1")
            sa, sw = 60, 61
        else:
            sa, sw = s_act, s_w
        for t in range(nact):
            so = f"s{sa}"
            if t:
                e(f"s_add_u32 s62, s{sa}, {st_act if isinstance(st_act, str) else t*st_act}"); so = "s62"
            e(f"buffer_load_dwordx4 v[{F(r,t)}:{F(r,t)+3}], v2, s[32:35], {so} offen{sc_act}")
        for i in range(nw):
            so = f"s{sw}"
            if i:
                e(f"s_add_u32 s62, s{sw}, {st_w if isinstance(st_w, str) else i*st_w}"); so = "s62"
            e(f"buffer_load_dwordx4 v[{F(r,nact+i)}:{F(r,nact+i)+3}], v2, s[32:35], {so} offen")
        e(f"s_add_u32 s{s_act}, s{s_act}, 1024")
        e(f"s_add_u32 s{s_w}, s{s_w}, 1024")
    def step(j, first=False):
        r = j % D
        if between and j < D:
            e(f"s_waitcnt vmcnt({nact*(D-1-j) + nf*min(j, max(N-D, 0))})")
        else:
            e(f"s_waitcnt vmcnt({nf*min(D-1, N-1-j)})")
        if hook_step: hook_step(j)
        more = j + D < N
        il = ENV("K2_IL", "1") == "1" and more
        if il:
            if s_cnt is not None:
                e(f"s_cmp_gt_i32 s{s_cnt}, 0")
                e(f"s_cselect_b32 s60, s{s_act}, s59")
                e(f"s_cselect_b32 s61, s{s_w}, s59")
                e(f"s_sub_i32 s{s_cnt}, s{s_cnt}, 1")
                sa, sw = 60, 61
            else:
                sa, sw = s_act, s_w
        def ld_w(i):
            so = f"s{sw}"
            if i:
                e(f"s_add_u32 s62, s{sw}, {st_w if isinstance(st_w, str) else i*st_w}"); so = "s62"
            e(f"buffer_load_dwordx4 v[{F(r,nact+i)}:{F(r,nact+i)+3}], v2, s[32:35], {so} offen")
        def ld_a(t):
            so = f"s{sa}"
            if t:
                e(f"s_add_u32 s62, s{sa}, {st_act if isinstance(st_act, str) else t*st_act}"); so = "s62"
            e(f"buffer_load_dwordx4 v[{F(r,t)}:{F(r,t)+3}], v2, s[32:35], {so} offen{sc_act}")
        mp = ENV("K2_MPRIO", "0")
        if mp: e(f"s_setprio {mp}")
        for i in range(nw):
            for t in range(nact):
                d = acc + 16 * (i * nact + t)
                cc = "0" if first else f"v[{d}:{d+15}]"
                e(f"v_mfma_f32_32x32x16_bf16 v[{d}:{d+15}], v[{F(r,nact+i)}:{F(r,nact+i)+3}], v[{F(r,t)}:{F(r,t)+3}], {cc}")
                did = False
                if il:
                    if t == nact - 1: ld_w(i); did = True
                    if i == nw - 1: ld_a(t); did = True
                if pace and not did: e(pace)
        if mp: e("s_setprio 3")
        if il:
            e(f"s_add_u32 s{s_act}, s{s_act}, 1024")
            e(f"s_add_u32 s{s_w}, s{s_w}, 1024")
        elif more: issue(r)
    if s_cnt is not None: e(f"s_mov_b32 s59, {BIG}")
    if between:
        for r in range(D): issue(r, 2)
        between()
        for r in range(D): issue(r, 1)
        e(f"s_add_u32 s{s_act}, s{s_act}, {1024*D}")
        e(f"s_add_u32 s{s_w}, s{s_w}, {1024*D}")
        if s_cnt is not None: e(f"s_sub_i32 s{s_cnt}, s{s_cnt}, {D}")
        for j in range(D): step(j, first=(j == 0 and not noinit))
        j0 = D
    else:
        for r in range(D): issue(r)
        if hook: hook(nf * D)
        step(0, not noinit)
        j0 = 1
    m = (N - j0 - D) // D
    j = j0
    if m >= 2:
        e(f"s_mov_b32 s58, {m}")
        e(f"L_{a.name}_{tag}_loop:")
        for jj in range(j0, j0 + D): step(jj)
        e("s_sub_u32 s58, s58, 1")
        e("s_cmp_lg_u32 s58, 0")
        e(f"s_cbranch_scc1 L_{a.name}_{tag}_loop")
        j = j0 + m * D
    while j < N:
        step(j); j += 1


def b_waves(a, T, with_w4):
    e = a.e
    pace = ENV("K2_PACE", "") or None
    st = {"n": 0}
    def sync():
        st["n"] += 1
        e("s_waitcnt lgkmcnt(0)")
        lds_signal(a, 8, 6, 7)
        lds_wait(a, f"sy{st['n']}", 8, 4 * st["n"], 6, 7, 68, 69, setaddr=False)

    e("s_sub_u32 s45, s44, 8")
    a.srd(24, 4, 2048 * 1024)
    a.srd(28, 6, 2048 * 1024)
    e("s_lshl_b32 s46, s40, 16")
    e("s_lshl_b32 s47, s45, 10")
    e("s_add_u32 s46, s46, s47")
    e(f"s_add_u32 s46, s46, {KOFF}")
    def kv(t0, cnt):
        for i in range(cnt):
            off = (t0 + 4 * i) * 1024
            e(f"s_add_u32 m0, s47, {L_K + off}")
            e(f"s_add_u32 s48, s46, {off}")
            e("buffer_load_dwordx4 v2, s[32:35], s48 offen lds")
            e(f"s_add_u32 m0, s47, {L_V + off}")
            e(f"s_add_u32 s48, s46, {off + VOFF - KOFF}")
            e("buffer_load_dwordx4 v2, s[32:35], s48 offen lds")
    OLD = ENV("K2_ORDER", "old") == "old"
    kv(0, 2)
    if Q64:
        kv(32, 2); kv(8, 2); kv(40, 2)
        e("s_waitcnt vmcnt(8)")
        lds_signal(a, 9, 6, 7)
    elif OLD:
        kv(8, 6)
        e("s_waitcnt vmcnt(12)")
        lds_signal(a, 9, 6, 7)
    e("s_setprio %s" % ENV("K2_PRIO", "3"))
    T.n = 1
    T.stamp()
    if ENV("K2_NOB") == "1":
        kv(16, 4); kv(48, 4); e("s_waitcnt vmcnt(0)")
        for i in (10, 11, 12, 14): lds_signal(a, i, 6, 7)
        e("s_endpgm")

    e("s_and_b32 s50, s45, 1")
    e("s_lshr_b32 s51, s45, 1")
    e("s_lshl_b32 s64, s40, 1"); e("s_add_u32 s64, s64, s50")
    e("s_lshl_b32 s65, s41, 1"); e("s_add_u32 s65, s65, s51")
    for j in range(1, 4):
        e(f"s_xor_b32 s60, s45, {j}")
        e("s_mul_i32 s60, s60, 6144")
        e(f"s_add_u32 s60, s60, {L_B + (j-1)*2048}")
        e(f"v_add_u32 v{2+j}, s60, v2")
    e("s_mul_i32 s52, s45, 6144")
    e(f"s_add_u32 s52, s52, {L_B}")

    def signed_stride(sreg, bit_sreg, stride):
        e(f"s_mov_b32 s{sreg}, {stride}")
        e(f"s_cmp_eq_u32 s{bit_sreg}, 1")
        e(f"s_cselect_b32 s{sreg}, {(-stride) & 0xffffffff}, s{sreg}")

    def x_tile(dst, vt):
        e("s_lshl_b32 s60, s64, 15")
        e("s_lshl_b32 s61, s65, 6")
        e("s_add_u32 s60, s60, s61")
        e(f"v_and_b32 v{vt}, 31, v1")
        e(f"v_lshrrev_b32 v{vt+1}, 5, v1")
        e(f"v_lshlrev_b32 v{vt+2}, 10, v{vt}")
        e(f"v_lshl_add_u32 v{vt+2}, v{vt+1}, 3, v{vt+2}")
        for g in range(4):
            e(f"buffer_load_dwordx2 v[{dst+2*g}:{dst+2*g+1}], v{vt+2}, s[24:27], s60 offen offset:{16*g}")

    def reduce22(ACC, TMP):
        e("s_nop 7"); e("s_nop 3")
        e(f"v_add_u32 v{TMP+24}, s52, v2")
        for h in range(2):
            for j in range(1, 4):
                for q in range(2):
                    r = ACC + 16 * j + 8 * h + 4 * q
                    e(f"ds_write_b128 v{2+j}, v[{r}:{r+3}] offset:{q*1024}")
            sync()
            for i in range(6):
                e(f"ds_read_b128 v[{TMP+4*i}:{TMP+4*i+3}], v{TMP+24} offset:{i*1024}")
            if h == 0:
                sync()
            else:
                e("s_waitcnt lgkmcnt(0)")
            for j in range(3):
                for r in range(8):
                    e(f"v_add_f32 v{ACC+8*h+r}, v{ACC+8*h+r}, v{TMP+8*j+r}")

    def xsync(ph, during=None):
        xpub(ph)
        if during: during()
        xwait(ph)

    def xpub(ph):
        e("s_waitcnt vmcnt(0)")
        e("s_lshl_b32 s70, s40, 8")
        e(f"s_add_u32 s70, s70, {FLAGS + 128*ph}")
        e("s_lshl_b32 s61, s41, 2")
        e("s_add_u32 s61, s61, s45")
        e("s_lshl_b32 s61, s61, 2")
        e("v_mov_b32 v6, s61")
        e("v_mov_b32 v7, 1")
        e("s_mov_b64 exec, 1")
        e("buffer_store_dword v7, v6, s[32:35], s70 offen sc1")
        e("s_mov_b64 exec, -1")

    def xwait(ph):
        e("v_and_b32 v6, 31, v1")
        e("v_lshlrev_b32 v6, 2, v6")
        e(f"s_mov_b32 s68, {SPIN_MAX}")
        e(f"L_k2_xs{ph}:")
        e("buffer_load_dword v7, v6, s[32:35], s70 offen sc1")
        e("s_waitcnt vmcnt(0)")
        e("v_cmp_eq_u32 vcc, 0, v7")
        e("s_cmp_eq_u64 vcc, 0")
        e(f"s_cbranch_scc1 L_k2_xs{ph}_go")
        e("s_sleep 2")
        e("s_sub_u32 s68, s68, 1")
        e("s_cmp_lg_u32 s68, 0")
        e(f"s_cbranch_scc1 L_k2_xs{ph}")
        e(f"L_k2_xs{ph}_go:")

    ACC, FR, XR = 8, 72, 136
    x_tile(XR, 146)
    e("s_lshl_b32 s61, s64, 8")
    e(f"s_add_u32 s61, s61, {STAT}")
    e("v_lshlrev_b32 v148, 3, v146")
    e("buffer_load_dwordx2 v[144:145], v148, s[32:35], s61 offen")
    e("s_lshl_b32 s60, s45, 3")
    e("s_lshl_b32 s56, s64, 5"); e("s_add_u32 s56, s56, s60"); e("s_lshl_b32 s56, s56, 10"); e(f"s_add_u32 s56, s56, {HOFF}")
    e("s_lshl_b32 s57, s65, 5"); e("s_add_u32 s57, s57, s60"); e("s_lshl_b32 s57, s57, 10"); e(f"s_add_u32 s57, s57, {W2F}")
    signed_stride(53, 50, 32768)
    signed_stride(54, 51, 32768)
    def hook(ny):
        if OLD:
            e(f"s_waitcnt vmcnt({ny + 5})")
            lds_signal(a, 10, 6, 7); lds_signal(a, 11, 6, 7)
            return
        kv(8, 2)
        e(f"s_waitcnt vmcnt({ny + 5 + 4})")
        lds_signal(a, 9, 6, 7)
    def hook_step(j):
        if j == 4 and not OLD: lds_signal(a, 10, 6, 7)
    gemm(a, "w2", 2, 2, 8, 4, ACC, FR, 56, 57, "s53", "s54", pace=pace, hook=hook, hook_step=hook_step)
    if ENV("K2_FINE") == "1": T.stamp()
    LATE = ENV("K2_LATEKV", "1") == "1"
    def lastkv():
        if Q64:
            kv(16, 4); kv(48, 4)
        else:
            if not OLD: kv(16, 4)
            kv(32, 8)
    if not LATE: lastkv()
    e("s_mul_i32 s66, s41, 5")
    e("s_min_u32 s60, s41, 3")
    e("s_add_u32 s66, s66, s60")
    e("s_and_b32 s61, s40, 3"); e("s_lshl_b32 s61, s61, 2"); e("s_add_u32 s61, s61, s45")
    e("s_lshl_b32 s62, s66, 5"); e("s_mul_i32 s63, s61, 12"); e("s_add_u32 s62, s62, s63"); e("s_lshl_b32 s62, s62, 10"); e(f"s_add_u32 s62, s62, {W3F}")
    e("v_lshlrev_b32 v6, 7, v1")
    e("buffer_load_dword v149, v6, s[32:35], s62 offen")
    e("s_add_u32 s62, s62, 4096")
    e("buffer_load_dword v149, v6, s[32:35], s62 offen")
    reduce22(ACC, FR)
    if ENV("K2_FINE") == "1": T.stamp()
    if not OLD:
        e("s_waitcnt vmcnt(18)")
        lds_signal(a, 11, 6, 7)
    if not LATE:
        e("s_waitcnt vmcnt(2)")
        lds_signal(a, 12, 6, 7)
    U = FR
    e("v_mul_f32 v146, v144, v145")
    e("s_mov_b32 s60, 0xffff0000")
    for p in range(8):
        e(f"v_lshlrev_b32 v{U+2*p}, 16, v{XR+p}")
        e(f"v_and_b32 v{U+2*p+1}, s60, v{XR+p}")
    for r in range(16): e(f"v_sub_f32 v{ACC+r}, v{ACC+r}, v146")
    for r in range(16): e(f"v_fmac_f32 v{ACC+r}, v{U+r}, v145")
    for p in range(8): e(f"v_cvt_pk_bf16_f32 v{ACC+16+p}, v{ACC+2*p}, v{ACC+2*p+1}")
    e("s_lshl_b32 s60, s64, 5"); e("s_lshl_b32 s61, s65, 1"); e("s_add_u32 s60, s60, s61"); e("s_lshl_b32 s60, s60, 10"); e(f"s_add_u32 s60, s60, {X1OFF}")
    e(f"buffer_store_dwordx4 v[{ACC+16}:{ACC+19}], v2, s[32:35], s60 offen sc1")
    e(f"buffer_store_dwordx4 v[{ACC+20}:{ACC+23}], v2, s[32:35], s60 offen offset:1024 sc1")
    if ENV("K2_DUP", "0") == "1":
        e(f"buffer_store_dwordx4 v[{ACC+16}:{ACC+19}], v2, s[32:35], s60 offen")
        e(f"buffer_store_dwordx4 v[{ACC+20}:{ACC+23}], v2, s[32:35], s60 offen offset:1024")
    e(f"v_add_f32 v144, v{ACC}, v{ACC+1}")
    e(f"v_mul_f32 v145, v{ACC}, v{ACC}")
    e(f"v_add_f32 v146, v{ACC+2}, v{ACC+3}")
    e(f"v_mul_f32 v147, v{ACC+1}, v{ACC+1}")
    e(f"v_fmac_f32 v145, v{ACC+2}, v{ACC+2}")
    e(f"v_fmac_f32 v147, v{ACC+3}, v{ACC+3}")
    for r in range(4, 16):
        e(f"v_add_f32 v{144 + 2*(r&1)}, v{144 + 2*(r&1)}, v{ACC+r}")
        e(f"v_fmac_f32 v{145 + 2*(r&1)}, v{ACC+r}, v{ACC+r}")
    e("v_add_f32 v144, v144, v146")
    e("v_add_f32 v145, v145, v147")
    e("v_mov_b32 v146, v144")
    e("v_mov_b32 v147, v145")
    e("s_lshl_b32 s60, s64, 4"); e("s_add_u32 s60, s60, s65")
    e("v_permlane32_swap_b32 v144, v146")
    e("v_permlane32_swap_b32 v145, v147")
    e("s_lshl_b32 s60, s60, 8"); e(f"s_add_u32 s60, s60, {X1STAT}")
    e("v_add_f32 v144, v144, v146")
    e("v_add_f32 v145, v145, v147")
    e("s_mov_b32 exec_hi, 0")
    e("buffer_store_dwordx2 v[144:145], v148, s[32:35], s60 offen sc1")
    e("s_mov_b64 exec, -1")
    T.stamp()
    if ENV("K2_STOP") == "1": e("s_endpgm")

    def colsum():
        e("s_mul_i32 s60, s45, 8*1408*4")
        e("s_lshl_b32 s61, s66, 7")
        e("s_add_u32 s60, s60, s61")
        e(f"s_add_u32 s60, s60, {CS3P}")
        e("s_mov_b32 exec_hi, 0xffff")
        for i in range(8):
            e(f"buffer_load_dwordx4 v[{8+4*i}:{11+4*i}], v2, s[32:35], s60 offen")
            if i < 7: e("s_add_u32 s60, s60, 1408*4")
        e(f"v_add_u32 v6, {L_CS}, v2")
        e("s_waitcnt vmcnt(0)")
        for i in range(1, 8):
            for r in range(4): e(f"v_add_f32 v{8+r}, v{8+r}, v{8+4*i+r}")
        for r in range(4): e(f"ds_add_f32 v6, v{8+r} offset:{4*r}")
        e("s_mov_b64 exec, -1")
    xpub(0)
    if LATE: lastkv()
    colsum()
    if LATE: lds_signal(a, 12, 6, 7)

    ACC, FR = 8, 104
    e("s_mul_i32 s61, s51, 3")
    e("s_add_u32 s67, s66, s61")
    e("s_lshl_b32 s60, s50, 4")
    e("s_lshl_b32 s56, s64, 5"); e("s_add_u32 s56, s56, s60"); e("s_lshl_b32 s56, s56, 10"); e(f"s_add_u32 s56, s56, {X1OFF}")
    e("s_lshl_b32 s57, s67, 5"); e("s_add_u32 s57, s57, s60"); e("s_lshl_b32 s57, s57, 10"); e(f"s_add_u32 s57, s57, {W3F}")
    def w0():
        xwait(0); T.stamp()
    BTW = ENV("K2_BTW", "0") == "1"
    if not BTW: w0()
    gemm(a, "w3", 2, 3, 16, 3, ACC, FR, 56, 57, "s53", 32768, sc_act=" sc1", pace=pace, between=w0 if BTW else None)
    if ENV("K2_FINE") == "1": T.stamp()
    if with_w4 and ENV("K2_W4T", "0") == "1":
        e("s_and_b32 s61, s40, 3"); e("s_lshl_b32 s61, s61, 2"); e("s_add_u32 s61, s61, s45")
        e("s_mul_i32 s62, s41, 172"); e("s_mul_i32 s63, s61, 11"); e("s_add_u32 s62, s62, s63"); e("s_lshl_b32 s62, s62, 10"); e(f"s_add_u32 s62, s62, {W4F}")
        e("v_lshlrev_b32 v6, 7, v1")
        e("buffer_load_dword v163, v6, s[32:35], s62 offen")
        e("s_add_u32 s62, s62, 3072")
        e("buffer_load_dword v163, v6, s[32:35], s62 offen")
    e("v_and_b32 v164, 31, v1")
    e("v_lshrrev_b32 v165, 5, v1")
    e("v_lshlrev_b32 v166, 3, v164")
    e("v_lshl_add_u32 v166, v165, 11, v166")
    e("s_lshl_b32 s60, s64, 12")
    e(f"s_add_u32 s60, s60, {X1STAT}")
    SR = FR + 40
    for j in range(8):
        e(f"buffer_load_dwordx2 v[{SR+2*j}:{SR+2*j+1}], v166, s[32:35], s60 offen offset:{256*j} sc1")
    e(f"v_add_u32 v167, s52, v2")
    e("s_nop 3")
    quads = [(i, q) for i in range(3) for q in range(4)]
    def xwrite(h):
        for s_, (i, q) in enumerate(quads[6*h:6*h+6]):
            r = ACC + 16 * (2 * i + 1) + 4 * q
            e(f"ds_write_b128 v3, v[{r}:{r+3}] offset:{s_*1024}")
    def xread(h):
        for s_ in range(6):
            e(f"ds_read_b128 v[{FR+4*s_}:{FR+4*s_+3}], v167 offset:{s_*1024}")
    def xadd(h):
        for s_, (i, q) in enumerate(quads[6*h:6*h+6]):
            for r in range(4):
                d = ACC + 32 * i + 4 * q + r
                e(f"v_add_f32 v{d}, v{d}, v{FR+4*s_+r}")
    def sig():
        st["n"] += 1
        e("s_waitcnt lgkmcnt(0)")
        lds_signal(a, 8, 6, 7)
        return st["n"]
    def wt(n_):
        lds_wait(a, f"sy{n_}", 8, 4 * n_, 6, 7, 68, 69)
    xwrite(0)
    n1 = sig()
    e("s_waitcnt vmcnt(0)")
    for j in range(1, 8):
        e(f"v_add_f32 v{SR}, v{SR}, v{SR+2*j}")
        e(f"v_add_f32 v{SR+1}, v{SR+1}, v{SR+2*j+1}")
    e(f"v_mov_b32 v{SR+2}, v{SR}")
    e(f"v_mov_b32 v{SR+3}, v{SR+1}")
    e("s_mul_i32 s60, s51, 384")
    e(f"s_add_u32 s60, s60, {L_CS}")
    e(f"v_permlane32_swap_b32 v{SR}, v{SR+2}")
    e(f"v_permlane32_swap_b32 v{SR+1}, v{SR+3}")
    e("v_lshl_add_u32 v166, v165, 4, s60")
    e(f"v_add_f32 v{SR}, v{SR}, v{SR+2}")
    e(f"v_add_f32 v{SR+1}, v{SR+1}, v{SR+3}")
    NMU, C1, C2, IA = SR + 4, SR + 5, SR + 6, SR + 7
    e(f"v_mul_f32 v{NMU}, {f32(-1/512)}, v{SR}")
    e(f"v_mul_f32 v{SR+1}, {f32(1/512)}, v{SR+1}")
    e(f"v_fma_f32 v{SR+1}, -v{NMU}, v{NMU}, v{SR+1}")
    e(f"v_max_f32 v{SR+1}, 0, v{SR+1}")
    e(f"v_add_f32 v{SR+1}, {f32(EPS)}, v{SR+1}")
    e(f"v_rsq_f32 v{SR}, v{SR+1}")
    e("s_mul_i32 s62, s64, 86")
    e(f"v_mul_f32 v{IA}, v{SR+1}, v{SR}")
    e(f"v_mul_f32 v{C1}, {f32(GELU_K1)}, v{SR}")
    e(f"v_mul_f32 v{C2}, v{SR}, v{SR}")
    e(f"v_mul_f32 v{C2}, v{C2}, v{SR}")
    e(f"v_mul_f32 v{C2}, {f32(GELU_K2)}, v{C2}")
    e("s_lshl_b32 s63, s67, 1"); e("s_add_u32 s62, s62, s63"); e("s_lshl_b32 s62, s62, 10"); e(f"s_add_u32 s62, s62, {GOFF}")
    e("s_cmp_ge_u32 s41, 3")
    e("s_cselect_b32 s63, s51, 0")
    CSR = FR + 24
    def epi(i):
        Z = ACC + 32 * i; Tm = Z + 16
        for g in range(4):
            e(f"ds_read_b128 v[{CSR+4*g}:{CSR+4*g+3}], v166 offset:{128*i + 32*g}")
        e("s_waitcnt lgkmcnt(0)")
        R = range(16)
        for r in R: e(f"v_fmac_f32 v{Z+r}, v{NMU}, v{CSR+r}")
        for r in R: e(f"v_mul_f32 v{Tm+r}, v{Z+r}, v{Z+r}")
        for r in R: e(f"v_fma_f32 v{Tm+r}, v{Tm+r}, v{C2}, v{C1}")
        for r in R: e(f"v_mul_f32 v{Tm+r}, v{Tm+r}, v{Z+r}")
        for r in R: e(f"v_exp_f32 v{Tm+r}, v{Tm+r}")
        for r in R: e(f"v_fma_f32 v{Tm+r}, v{Tm+r}, v{IA}, v{IA}")
        for r in R: e(f"v_rcp_f32 v{Tm+r}, v{Tm+r}")
        for r in R: e(f"v_mul_f32 v{Z+r}, v{Z+r}, v{Tm+r}")
        for p in range(8): e(f"v_cvt_pk_bf16_f32 v{Tm+p}, v{Z+2*p}, v{Z+2*p+1}")
        e(f"buffer_store_dwordx4 v[{Tm}:{Tm+3}], v2, s[32:35], s62 offen offset:{(2048*i) % 4096} sc1")
        e(f"buffer_store_dwordx4 v[{Tm+4}:{Tm+7}], v2, s[32:35], s62 offen offset:{(2048*i) % 4096 + 1024} sc1")
        if i == 1: e("s_add_u32 s62, s62, 4096")
    wt(n1)
    xread(0)
    n2 = sig()
    xadd(0)
    if ENV("K2_FINE") == "1": T.stamp()
    wt(n2)
    xwrite(1)
    n3 = sig()
    epi(0)
    wt(n3)
    xread(1)
    e("s_waitcnt lgkmcnt(0)")
    lds_signal(a, 14, 6, 7)
    xadd(1)
    epi(1)
    e("s_cmp_eq_u32 s63, 1")
    e("s_cbranch_scc1 L_k2_w3_done")
    epi(2)
    e("L_k2_w3_done:")
    T.stamp()
    if not with_w4: return

    xpub(1)
    if not BTW:
        xwait(1); T.stamp()
    ACC, FR, XR, X1R = 8, 72, 152, 160
    D4 = int(ENV("K2_D4", "5"))
    def xx1():
        x_tile(XR, 3)
        e("s_lshl_b32 s60, s64, 5"); e("s_lshl_b32 s61, s65, 1"); e("s_add_u32 s60, s60, s61"); e("s_lshl_b32 s60, s60, 10"); e(f"s_add_u32 s60, s60, {X1OFF}")
        e(f"buffer_load_dwordx4 v[{X1R}:{X1R+3}], v2, s[32:35], s60 offen sc1")
        e(f"buffer_load_dwordx4 v[{X1R+4}:{X1R+7}], v2, s[32:35], s60 offen offset:1024 sc1")
    xx1()
    e("s_mul_i32 s60, s45, 22")
    e("s_sub_u32 s55, 86, s60")
    e("s_min_u32 s55, s55, 22")
    e("s_mul_i32 s56, s64, 86"); e("s_add_u32 s56, s56, s60"); e("s_lshl_b32 s56, s56, 10"); e(f"s_add_u32 s56, s56, {GOFF}")
    e("s_mul_i32 s57, s65, 86"); e("s_add_u32 s57, s57, s60"); e("s_lshl_b32 s57, s57, 10"); e(f"s_add_u32 s57, s57, {W4F}")
    signed_stride(53, 50, 86 * 1024)
    signed_stride(54, 51, 86 * 1024)
    def w1():
        xwait(1); T.stamp()
    gemm(a, "w4", 2, 2, 22, D4, ACC, FR, 56, 57, "s53", "s54", s_cnt=55, sc_act=" sc1", pace=pace, between=w1 if BTW else None)
    if ENV("K2_FINE") == "1": T.stamp()
    e("s_nop 7"); e("s_nop 3")
    e("s_mov_b32 s60, 0xffff0000")
    for base in (XR, X1R):
        for p in range(8):
            e(f"v_lshlrev_b32 v{FR+2*p}, 16, v{base+p}")
            e(f"v_and_b32 v{FR+2*p+1}, s60, v{base+p}")
        for r in range(16): e(f"v_add_f32 v{ACC+r}, v{ACC+r}, v{FR+r}")
    e("s_lshl_b32 s60, s45, 3")
    e("s_lshl_b32 s56, s64, 5"); e("s_add_u32 s56, s56, s60"); e("s_lshl_b32 s56, s56, 10"); e(f"s_add_u32 s56, s56, {OOFF}")
    e("s_lshl_b32 s57, s65, 5"); e("s_add_u32 s57, s57, s60"); e("s_lshl_b32 s57, s57, 10"); e(f"s_add_u32 s57, s57, {WOF}")
    signed_stride(53, 50, 32768)
    signed_stride(54, 51, 32768)
    e("s_add_u32 s53, s53, s56")
    e("s_add_u32 s54, s54, s57")
    OR_, WR = 72, 136
    def wload(j):
        r = WR + 8 * (j % 4)
        o = 1024 * (j % 4)
        e(f"buffer_load_dwordx4 v[{r}:{r+3}], v2, s[32:35], s57 offen offset:{o}")
        e(f"buffer_load_dwordx4 v[{r+4}:{r+7}], v2, s[32:35], s54 offen offset:{o}")
    for j in range(4): wload(j)
    e("s_add_u32 s57, s57, 4096"); e("s_add_u32 s54, s54, 4096")
    e("s_lshl_b32 s70, s40, 8")
    e("s_lshl_b32 s60, s45, 5")
    e("s_add_u32 s70, s70, s60")
    e(f"s_add_u32 s70, s70, {OFLAG}")
    e("v_and_b32 v6, 7, v1")
    e("v_lshlrev_b32 v6, 2, v6")
    e("v_bfe_u32 v7, v1, 3, 1")
    e("v_lshl_add_u32 v6, v7, 7, v6")
    e(f"s_mov_b32 s68, {SPIN_MAX}")
    e("s_setprio 0")
    e("L_k2_ow:")
    e("buffer_load_dword v7, v6, s[32:35], s70 offen sc1")
    e("s_waitcnt vmcnt(0)")
    e("v_cmp_eq_u32 vcc, 0, v7")
    e("s_cmp_eq_u64 vcc, 0")
    e("s_cbranch_scc1 L_k2_ow_go")
    e("s_sleep 2")
    e("s_sub_u32 s68, s68, 1")
    e("s_cmp_lg_u32 s68, 0")
    e("s_cbranch_scc1 L_k2_ow")
    e("L_k2_ow_go:")
    e("s_setprio 3")
    if ENV("K2_FINE") == "1": T.stamp()
    for j in range(8):
        if j == 4: e("s_add_u32 s56, s56, 4096"); e("s_add_u32 s53, s53, 4096")
        r = OR_ + 8 * j
        e(f"buffer_load_dwordx4 v[{r}:{r+3}], v2, s[32:35], s56 offen offset:{1024*(j%4)} sc1")
        e(f"buffer_load_dwordx4 v[{r+4}:{r+7}], v2, s[32:35], s53 offen offset:{1024*(j%4)} sc1")
    lds_wait(a, "ad", 13, 8, 6, 7, 68, 69)
    for j in range(1, 4):
        e(f"s_xor_b32 s60, s45, {j}")
        e("s_mul_i32 s60, s60, 12288")
        e(f"s_add_u32 s60, s60, {(j-1)*4096}")
        e(f"v_add_u32 v{2+j}, s60, v2")
    for j in range(8):
        if j < 4: e(f"s_waitcnt vmcnt({2*(7-j) + 2*j})")
        else: e(f"s_waitcnt vmcnt({2*(7-j)})")
        w = WR + 8 * (j % 4); o = OR_ + 8 * j
        for i in range(2):
            for t in range(2):
                d = ACC + 16 * (2 * i + t)
                e(f"v_mfma_f32_32x32x16_bf16 v[{d}:{d+15}], v[{w+4*i}:{w+4*i+3}], v[{o+4*t}:{o+4*t+3}], v[{d}:{d+15}]")
        if j < 4: wload(j + 4)
    e("s_mul_i32 s60, s45, 12288")
    e("v_add_u32 v136, s60, v2")
    e("v_and_b32 v152, 31, v1")
    e("v_lshrrev_b32 v153, 5, v1")
    e("v_lshlrev_b32 v154, 10, v152")
    e("v_lshl_add_u32 v154, v153, 4, v154")
    e("s_nop 7")
    for j in range(1, 4):
        for q in range(4):
            r = ACC + 16 * j + 4 * q
            e(f"ds_write_b128 v{2+j}, v[{r}:{r+3}] offset:{q*1024}")
    sync()
    for i in range(12):
        e(f"ds_read_b128 v[{FR+4*i}:{FR+4*i+3}], v136 offset:{i*1024}")
    for j in range(3):
        e(f"s_waitcnt lgkmcnt({8-4*j})")
        for r in range(16): e(f"v_add_f32 v{ACC+r}, v{ACC+r}, v{FR+16*j+r}")
    for p in range(8): e(f"v_cvt_pk_bf16_f32 v{FR+p}, v{ACC+2*p}, v{ACC+2*p+1}")
    e("s_lshl_b32 s60, s64, 15")
    e("s_lshl_b32 s61, s65, 6")
    e(f"v_permlane32_swap_b32 v{FR}, v{FR+2}")
    e(f"v_permlane32_swap_b32 v{FR+1}, v{FR+3}")
    e(f"v_permlane32_swap_b32 v{FR+4}, v{FR+6}")
    e(f"v_permlane32_swap_b32 v{FR+5}, v{FR+7}")
    e("s_add_u32 s60, s60, s61")
    OST = ENV("K2_OST", "")
    e(f"buffer_store_dwordx4 v[{FR}:{FR+3}], v154, s[28:31], s60 offen{OST}")
    e(f"buffer_store_dwordx4 v[{FR+4}:{FR+7}], v154, s[28:31], s60 offen offset:32{OST}")
    T.stamp()


def gen_k2(with_w4=True):
    a = Asm("k2"); e = a.e
    T = Stamper(a, 72, 1)
    T.stamp()
    e("s_cmp_ge_u32 s2, 256")
    e("s_cbranch_scc1 L_k2_exit")
    e("s_load_dwordx2 s[4:5], s[0:1], 0")
    e("s_load_dwordx2 s[6:7], s[0:1], 64")
    e("s_load_dwordx2 s[20:21], s[0:1], 80")
    e("v_lshrrev_b32 v1, 6, v0")
    e("s_and_b32 s54, s2, 7")
    e("v_readfirstlane_b32 s44, v1")
    e("v_and_b32 v1, 63, v0")
    e("v_lshlrev_b32 v2, 4, v1")
    e("s_lshl_b32 s40, s54, 2")
    e("s_bfe_u32 s54, s2, 0x20003")
    e("s_add_u32 s40, s40, s54")
    e("s_lshr_b32 s41, s2, 5")
    e("s_mov_b32 s45, s44")
    for r in range(4, 8): e(f"v_mov_b32 v{r}, 0")
    e(f"v_add_u32 v3, {L_CS}, v2")
    e("ds_write_b128 v3, v[4:7]")
    e("s_waitcnt lgkmcnt(0)")
    e("s_barrier")
    a.srd(32, 20, WS_USED)
    e("s_cmp_ge_u32 s44, 8")
    e("s_cbranch_scc1 L_k2_b")
    if ENV("K2_NOA") == "1":
        e("s_endpgm")
    (attn_wave64 if Q64 else attn_wave)(a, T)
    T.stamp()
    T.dump(32, 44, 12, 4, 5)
    e("s_endpgm")
    e("L_k2_b:")
    b_waves(a, T, with_w4)
    T.dump(32, 44, 12, 4, 5)
    e("L_k2_exit:")
    e("s_endpgm")
    return a.kernel(vgpr=168, sgpr=96)
```

```python
import sys
HEAD = """; @launch grid=({grid},1,1) block=({block},1,1) lds={lds}
.amdgcn_target "amdgcn-amd-amdhsa--gfx950"
.text
.globl mb_kernel
.p2align 8
.type mb_kernel,@function
mb_kernel:
    s_load_dwordx4 s[4:7], s[0:1], 0
    s_waitcnt lgkmcnt(0)
    s_mov_b32 s8, s4
    s_mov_b32 s9, s5
    s_mov_b32 s10, 0x4000000
    s_mov_b32 s11, 0x00020000
    s_mov_b32 s12, s6
    s_mov_b32 s13, s7
    s_mov_b32 s14, 0x100000
    s_mov_b32 s15, 0x00020000
    v_lshrrev_b32 v1, 6, v0
    s_nop 0
    v_readfirstlane_b32 s20, v1
    s_mul_i32 s21, s2, {waves}
    s_add_u32 s21, s21, s20
    v_and_b32 v1, 63, v0
    v_lshlrev_b32 v2, 2, v1
{init}
    s_barrier
    s_memtime s[16:17]
    s_waitcnt lgkmcnt(0)
    s_mov_b32 s22, {iters}
L_loop:
{body}
    s_sub_u32 s22, s22, 1
    s_cmp_lg_u32 s22, 0
    s_cbranch_scc1 L_loop
    s_nop 15
    s_nop 15
    s_memtime s[18:19]
    s_waitcnt lgkmcnt(0)
    s_sub_u32 s18, s18, s16
    v_mov_b32 v3, s18
    s_lshl_b32 s21, s21, 2
    v_mov_b32 v4, s21
    v_cmp_eq_u32 vcc, 0, v1
    s_and_saveexec_b64 s[24:25], vcc
    buffer_store_dword v3, v4, s[12:15], 0 offen
    s_waitcnt vmcnt(0)
    s_endpgm
.section .rodata,"a"
.p2align 6
.amdhsa_kernel mb_kernel
  .amdhsa_next_free_vgpr {vgpr}
  .amdhsa_next_free_sgpr 102
  .amdhsa_accum_offset {acc}
  .amdhsa_group_segment_fixed_size 0
  .amdhsa_kernarg_size 16
  .amdhsa_user_sgpr_count 2
  .amdhsa_user_sgpr_kernarg_segment_ptr 1
  .amdhsa_system_sgpr_workgroup_id_x 1
.end_amdhsa_kernel
"""
def gen(name, body, init="", waves=4, iters=1000, vgpr=128, grid=256, lds=0):
    open(name, "w").write(HEAD.format(grid=grid, block=waves*64, waves=waves, init=init, body=body, iters=iters, vgpr=vgpr, acc=(vgpr+3)//4*4, lds=lds))

def initv(lo, hi, val="0.5"):
    return "\n".join(f"    v_mov_b32 v{i}, {val}" for i in range(lo, hi))

if __name__ == "__main__":
    for w in (4, 8, 16):
        gen(f"exp_w{w}.s", "\n".join(f"    v_exp_f32 v{40+i}, v{8+i}" for i in range(32)), initv(8,72), waves=w)
        gen(f"fma_w{w}.s", "\n".join(f"    v_fma_f32 v{40+i}, v{8+i}, v{8+i}, v{8+i}" for i in range(32)), initv(8,72), waves=w)
        gen(f"pkfma_w{w}.s", "\n".join(f"    v_pk_fma_f32 v[{40+2*i}:{41+2*i}], v[{8+2*i}:{9+2*i}], v[{8+2*i}:{9+2*i}], v[{8+2*i}:{9+2*i}]" for i in range(16)), initv(8,72), waves=w)
        gen(f"cvt_w{w}.s", "\n".join(f"    v_cvt_pk_bf16_f32 v{40+i}, v{8+i}, v{9+i}" for i in range(32)), initv(8,73), waves=w)
        gen(f"expfma_w{w}.s", "\n".join(f"    v_exp_f32 v{40+i}, v{8+i}\n    v_fma_f32 v{56+i}, v{24+i}, v{24+i}, v{24+i}" for i in range(16)), initv(8,72), waves=w)
        gen(f"exp3fma_w{w}.s", "\n".join(f"    v_exp_f32 v{40+i}, v{8+i}\n    v_fma_f32 v{56+i}, v{24+i}, v{24+i}, v{24+i}\n    v_fma_f32 v{72+i}, v{24+i}, v{24+i}, v{24+i}\n    v_fma_f32 v{88+i}, v{24+i}, v{24+i}, v{24+i}" for i in range(16)), initv(8,104), waves=w)
```

```python
from mb_gen import gen, initv
names=[]
def loop(order):
    L=[]
    e=L.append
    X=lambda r: e(f"v_exp_f32 v{r}, v{r}")
    CV=lambda d,s: e(f"v_cvt_pk_bf16_f32 v{d}, v{s}, v{s+1}")
    for tl in range(4):
        K=112+4*(tl%2); Kn=112+4*((tl+1)%2); V=128+8*(tl%2); Vp=128+8*((tl+1)%2)
        Sb=f"v_mfma_f32_32x32x16_bf16 v[48:63], v[{K}:{K+3}], v[12:15], v[144:159]"
        PVb1=f"v_mfma_f32_32x32x16_bf16 v[96:111], v[{Vp+4}:{Vp+7}], v[76:79], v[96:111]"
        PVa0=f"v_mfma_f32_32x32x16_bf16 v[80:95], v[{V}:{V+3}], v[64:67], v[80:95]"
        PVa1=f"v_mfma_f32_32x32x16_bf16 v[80:95], v[{V+4}:{V+7}], v[68:71], v[80:95]"
        Sa=f"v_mfma_f32_32x32x16_bf16 v[32:47], v[{Kn}:{Kn+3}], v[8:11], v[16:31]"
        PVb0=f"v_mfma_f32_32x32x16_bf16 v[96:111], v[{V}:{V+3}], v[72:75], v[96:111]"
        rK=f"ds_read_b128 v[{K}:{K+3}], v2 offset:{1024*(tl+2)}"
        rV=[f"ds_read_b64_tr_b16 v[{Vp+4*u+2*t}:{Vp+4*u+2*t+1}], v3 offset:{16384+1024*(tl+1)+512*u+256*t}" for u in range(2) for t in range(2)]
        if order=="old":
            e(Sb); e(rK); X(32);X(33);X(34); e(PVb1)
            for r in rV: e(r)
            for i in range(3,9): X(32+i)
            for i in range(4): CV(64+i,32+2*i)
            X(41);X(42); e("s_waitcnt lgkmcnt(5)"); e(PVa0)
            for i in range(11,16): X(32+i)
            X(48)
            for i in range(4,8): CV(64+i,32+2*i)
            X(49);X(50); e(PVa1); X(51);X(52);X(53); e(Sa)
            for i in range(6,9): X(48+i)
            for i in range(4): CV(72+i,48+2*i)
            X(57);X(58); e(PVb0)
            for i in range(11,16): X(48+i)
            e("s_nop 0")
            for i in range(4,8): CV(72+i,48+2*i)
        else:
            X(32);X(33); e(PVb1)
            for r in rV: e(r)
            for i in range(2,8): X(32+i)
            e(Sb); e(rK)
            X(40)
            for i in range(4): CV(64+i,32+2*i)
            X(41);X(42);X(43); e("s_waitcnt lgkmcnt(5)"); e(PVa0)
            for i in range(12,16): X(32+i)
            X(48)
            for i in range(4,8): CV(64+i,32+2*i)
            X(49);X(50); e(PVa1)
            for i in range(3,9): X(48+i)
            e(Sa)
            for i in range(4): CV(72+i,48+2*i)
            X(57);X(58);X(59);X(60); e(PVb0)
            for i in range(13,16): X(48+i)
            e("s_nop 0")
            for i in range(4,8): CV(72+i,48+2*i)
    return "\n".join("    "+l for l in L)
init = initv(8,160,"0") + "\n    v_lshlrev_b32 v2, 4, v1\n    v_lshlrev_b32 v3, 3, v1\n"
init += "    v_mov_b32 v4, 0\n    v_mov_b32 v5, 0\n    v_mov_b32 v6, 0\n    v_mov_b32 v7, 0\n"
for o in range(0, 49152, 1024): init += f"    ds_write_b128 v2, v[4:7] offset:{o}\n"
init += "    s_waitcnt lgkmcnt(0)\n"
def three(A, nm):
    B = "\n".join(f"    v_mfma_f32_32x32x16_bf16 v[{32+16*(i%4)}:{47+16*(i%4)}], v[8:11], v[12:15], v[{32+16*(i%4)}:{47+16*(i%4)}]" for i in range(nm))
    return f"    s_cmp_ge_u32 s20, 8\n    s_cbranch_scc1 L_b\n{A}\n    s_branch L_join\nL_b:\n{B}\nL_join:"
for o in ("old","new"):
    n=f"a2_{o}_w8.s"; gen(n, loop(o), init, waves=8, iters=200, vgpr=168, lds=65536); names.append(n)
    n=f"a2_{o}_w4.s"; gen(n, loop(o), init, waves=4, iters=200, vgpr=168, lds=65536); names.append(n)
    n=f"a2_{o}_m27.s"; gen(n, three(loop(o), 27), init, waves=12, iters=200, vgpr=168, lds=65536); names.append(n)
print(" ".join(names))
```

```python
from common import *

L_K = 0
L_V = 65536
L_ONES = 131072
L_B = L_ONES + 5632
L_CS = L_B + 24576
L_FLG = L_CS + 768
K2_LDS = L_FLG + 256
SPIN_MAX = 20000
BIG = 0x7ff00000
ENV = os.environ.get
FUSE = ENV("K2_FUSE", "1") == "1"
Q64 = ENV("K2_Q64", "1") == "1"


def lds_signal(a, idx, va, vb):
    e = a.e
    e(f"v_mov_b32 v{va}, {L_FLG + 4*idx}")
    e(f"v_mov_b32 v{vb}, 1")
    e("s_mov_b64 exec, 1")
    e(f"ds_add_u32 v{va}, v{vb}")
    e("s_mov_b64 exec, -1")


def lds_wait(a, tag, idx, target, va, vb, s0, s1, sleep=1, setaddr=True):
    e = a.e
    if setaddr: e(f"v_mov_b32 v{va}, {L_FLG + 4*idx}")
    e(f"s_mov_b32 s{s0}, {SPIN_MAX}")
    e(f"L_{a.name}_lw{tag}:")
    e(f"ds_read_b32 v{vb}, v{va}")
    e("s_waitcnt lgkmcnt(0)")
    e(f"v_readfirstlane_b32 s{s1}, v{vb}")
    e(f"s_cmp_ge_u32 s{s1}, {target}")
    e(f"s_cbranch_scc1 L_{a.name}_lw{tag}_go")
    e(f"s_sleep {sleep}")
    e(f"s_sub_u32 s{s0}, s{s0}, 1")
    e(f"s_cmp_lg_u32 s{s0}, 0")
    e(f"s_cbranch_scc1 L_{a.name}_lw{tag}")
    e(f"L_{a.name}_lw{tag}_go:")


def attn_wave(a, T):
    e = a.e; n = a.name
    e("s_lshl_b32 s48, s41, 3")
    e("s_add_u32 s48, s48, s45")
    e("s_lshl_b32 s49, s40, 6")
    e("s_add_u32 s49, s49, s48")
    e("s_lshl_b32 s49, s49, 10")
    e("buffer_load_dwordx4 v[8:11], v2, s[32:35], s49 offen")
    e("v_and_b32 v5, 1, v1")
    e("v_cmp_eq_u32 vcc, 0, v5")
    e("v_mov_b32 v5, 0x3f80")
    e("v_mov_b32 v33, 0"); e("v_mov_b32 v35, 0")
    e("v_cndmask_b32 v32, 0, v5, vcc")
    e("v_mov_b32 v34, v32")
    e("v_lshlrev_b32 v3, 4, v0")
    e(f"v_cmp_gt_u32 vcc, 5632, v3")
    e(f"v_add_u32 v3, {L_ONES}, v3")
    e("s_and_saveexec_b64 s[50:51], vcc")
    e("ds_write_b128 v3, v[32:35]")
    e("s_mov_b64 exec, -1")
    e("v_lshrrev_b32 v5, 5, v1")
    e("v_bfe_u32 v6, v1, 4, 1")
    e("v_xor_b32 v7, v5, v6")
    e("v_and_b32 v3, 15, v1")
    e("v_lshlrev_b32 v3, 3, v3")
    e("v_lshl_add_u32 v3, v7, 7, v3")
    e("v_lshl_add_u32 v3, v6, 16, v3")
    e(f"v_add_u32 v112, {L_V}, v3")
    e("v_xor_b32 v4, 1, v6")
    e("v_lshlrev_b32 v4, 12, v4")
    e("s_mov_b32 s56, 0")
    e("s_lshl_b32 s51, s45, 2")
    e(f"s_add_u32 s51, s51, {L_FLG + 64}")
    e("v_mov_b32 v113, s51")
    e("v_xor_b32 v114, 16, v113")
    e("v_mov_b32 v115, 0")
    e("v_mov_b32 v116, 0")
    e("s_waitcnt lgkmcnt(0)")
    lds_signal(a, 9, 5, 6)
    lds_wait(a, "c0", 9, 12, 5, 6, 51, 52)
    T.stamp()
    e("ds_read_b128 v[88:91], v2")
    e("s_waitcnt vmcnt(0) lgkmcnt(0)")
    e("v_mfma_f32_32x32x16_bf16 v[32:47], v[88:91], v[8:11], 0")
    e("s_nop 7"); e("s_nop 3")
    e("v_max3_f32 v16, v32, v33, v34")
    e("v_max3_f32 v17, v35, v36, v37")
    e("v_max3_f32 v16, v16, v38, v39")
    e("v_max3_f32 v17, v17, v40, v41")
    e("v_max3_f32 v16, v16, v42, v43")
    e("v_max3_f32 v17, v17, v44, v45")
    e("v_max3_f32 v16, v16, v46, v47")
    e(f"L_{n}_setmax:")
    e("v_max_f32 v16, v16, v17")
    e("v_mov_b32 v12, v2")
    e("v_mov_b32 v17, v16")
    e("v_mov_b32 v3, v112")
    e("ds_read_b128 v[88:91], v12")
    e("ds_read_b128 v[92:95], v12 offset:1024")
    e("v_permlane32_swap_b32 v16, v17")
    for u in range(2):
        for t in range(2):
            e(f"ds_read_b64_tr_b16 v[{96+4*u+2*t}:{97+4*u+2*t}], v3 offset:{512*u+256*t}")
    e("v_max_f32 v16, v16, v17")
    e("v_sub_f32 v16, 0, v16")
    for r in range(17, 32): e(f"v_mov_b32 v{r}, v16")
    for r in list(range(68, 88)) + list(range(104, 112)): e(f"v_mov_b32 v{r}, 0")
    e("s_waitcnt lgkmcnt(5)")
    e("v_mfma_f32_32x32x16_bf16 v[32:47], v[88:91], v[8:11], v[16:31]")
    e("s_nop 7")
    e("s_mov_b32 s55, 0")
    e(f"L_{n}_loop:")
    e("s_add_u32 s51, s55, 1")
    e("s_and_b32 s52, s51, s55")
    e("s_cmp_lg_u32 s52, 0")
    e(f"s_cbranch_scc1 L_{n}_nobar")
    e("s_cmp_eq_u32 s55, 0")
    e(f"s_cbranch_scc1 L_{n}_nobar")
    e("s_cmp_eq_u32 s55, 15")
    e(f"s_cbranch_scc1 L_{n}_nobar")
    e("s_bcnt1_i32_b32 s51, s55")
    e("s_lshl_b32 s51, s51, 2")
    e(f"s_add_u32 s51, s51, {L_FLG + 36}")
    e("v_mov_b32 v5, s51")
    lds_wait(a, "c1", 0, 4, 5, 6, 51, 52, setaddr=False)
    e(f"L_{n}_nobar:")
    X = lambda r: e(f"v_exp_f32 v{r}, v{r}")
    fair = ENV("K2_FAIR", "1") == "1"
    for tl in range(4):
        S = 32 + 16 * (tl % 2); Sn = 32 + 16 * ((tl + 1) % 2)
        Kn = 88 + 4 * ((tl + 1) % 2); Knn = 88 + 4 * (tl % 2)
        V = 96 + 8 * (tl % 2); Vp = 96 + 8 * ((tl + 1) % 2)
        e("s_waitcnt lgkmcnt(4)")
        e(f"v_mfma_f32_32x32x16_bf16 v[{Sn}:{Sn+15}], v[{Kn}:{Kn+3}], v[8:11], v[16:31]")
        if fair and tl == 0:
            e("ds_write_b32 v113, v115")
            e("ds_read_b32 v116, v114")
        e(f"ds_read_b128 v[{Knn}:{Knn+3}], v12 offset:{1024*(tl+2)}")
        X(S); X(S + 1); X(S + 2)
        e(f"v_mfma_f32_32x32x16_bf16 v[72:87], v[{Vp+4}:{Vp+7}], v[68:71], v[72:87]")
        for u in range(2):
            for t in range(2):
                e(f"ds_read_b64_tr_b16 v[{Vp+4*u+2*t}:{Vp+4*u+2*t+1}], v3 offset:{1024*(tl+1)+512*u+256*t}")
        if fair and tl == 1:
            e("v_readfirstlane_b32 s51, v116")
            e("v_add_u32 v115, 1, v115")
            e("s_cmp_gt_u32 s55, s51")
            e(f"s_cbranch_scc1 L_{n}_lo")
            e("s_setprio 1")
            e(f"s_branch L_{n}_pd")
            e(f"L_{n}_lo:")
            e("s_setprio 0")
            e(f"L_{n}_pd:")
        for i in range(3, 9): X(S + i)
        for i in range(4): e(f"v_cvt_pk_bf16_f32 v{64+i}, v{S+2*i}, v{S+2*i+1}")
        X(S + 9); X(S + 10)
        e("s_waitcnt lgkmcnt(5)")
        e(f"v_mfma_f32_32x32x16_bf16 v[72:87], v[{V}:{V+3}], v[64:67], v[72:87]")
        for i in range(11, 16): X(S + i)
        if tl == 3:
            e("v_add_u32 v12, 4096, v12")
            e("v_add_u32 v3, v4, v3")
        else:
            e("s_nop 0")
        for i in range(4, 8): e(f"v_cvt_pk_bf16_f32 v{64+i}, v{S+2*i}, v{S+2*i+1}")
    e("s_add_u32 s55, s55, 1")
    e("s_cmp_lt_u32 s55, 16")
    e(f"s_cbranch_scc1 L_{n}_loop")
    e("v_mfma_f32_32x32x16_bf16 v[72:87], v[108:111], v[68:71], v[72:87]")
    T.stamp()
    e("s_lshl_b32 s49, s48, 5")
    e("s_add_u32 s49, s49, s40")
    e("s_lshl_b32 s49, s49, 10")
    e(f"s_add_u32 s49, s49, {OOFF}")
    e("s_waitcnt lgkmcnt(0)")
    e("s_nop 7")
    e("v_mul_f32 v32, 0, v72")
    for r in range(73, 80): e(f"v_fma_f32 v32, v{r}, 0, v32")
    e(f"v_mov_b32 v33, {f32(2.0**60)}")
    e("v_add_f32 v32, v32, v80")
    e("v_cmp_nlt_f32 vcc, v32, v33")
    e("s_cmp_lg_u32 s56, 0")
    e(f"s_cbranch_scc1 L_{n}_store")
    e("s_cmp_eq_u64 vcc, 0")
    e(f"s_cbranch_scc1 L_{n}_store")
    e("s_mov_b32 s56, 1")
    e("s_mov_b32 s55, 0")
    e("v_mov_b32 v12, v2")
    e("v_mov_b32 v16, 0xff800000")
    e("v_mov_b32 v17, 0xff800000")
    e(f"L_{n}_mloop:")
    e("ds_read_b128 v[88:91], v12")
    e("s_waitcnt lgkmcnt(0)")
    e("v_mfma_f32_32x32x16_bf16 v[32:47], v[88:91], v[8:11], 0")
    e("v_add_u32 v12, 1024, v12")
    e("s_nop 7"); e("s_nop 3")
    for i in range(4):
        e(f"v_max3_f32 v16, v16, v{32+4*i}, v{33+4*i}")
        e(f"v_max3_f32 v17, v17, v{34+4*i}, v{35+4*i}")
    e("s_add_u32 s55, s55, 1")
    e("s_cmp_lt_u32 s55, 64")
    e(f"s_cbranch_scc1 L_{n}_mloop")
    e(f"s_branch L_{n}_setmax")
    e(f"L_{n}_store:")
    lds_signal(a, 13, 5, 6)
    e("v_rcp_f32 v80, v80")
    e("s_nop 0")
    for r in range(72, 80): e(f"v_mul_f32 v{r}, v{r}, v80")
    for p in range(4): e(f"v_cvt_pk_bf16_f32 v{64+p}, v{72+2*p}, v{73+2*p}")
    if FUSE:
        e("buffer_store_dwordx4 v[64:67], v2, s[32:35], s49 offen sc1")
        e("s_lshl_b32 s49, s48, 5")
        e("s_add_u32 s49, s49, s40")
        e("s_lshl_b32 s49, s49, 2")
        e(f"s_add_u32 s49, s49, {OFLAG}")
        e("v_mov_b32 v5, 0")
        e("v_mov_b32 v6, 1")
        e("s_waitcnt vmcnt(0)")
        e("s_mov_b64 exec, 1")
        e("buffer_store_dword v6, v5, s[32:35], s49 offen sc1")
        e("s_mov_b64 exec, -1")
    else:
        e("buffer_store_dwordx4 v[64:67], v2, s[32:35], s49 offen")


def attn_wave64(a, T):
    e = a.e; n = a.name
    e("s_and_b32 s46, s45, 3")
    e("s_lshr_b32 s47, s45, 2")
    e("s_lshl_b32 s48, s41, 3")
    e("s_lshl_b32 s49, s46, 1")
    e("s_add_u32 s48, s48, s49")
    e("s_add_u32 s48, s48, s47")
    e("s_xor_b32 s49, s48, 1")
    e("s_lshl_b32 s50, s40, 6")
    e("s_add_u32 s51, s50, s48"); e("s_lshl_b32 s51, s51, 10")
    e("s_add_u32 s52, s50, s49"); e("s_lshl_b32 s52, s52, 10")
    e("buffer_load_dwordx4 v[8:11], v2, s[32:35], s51 offen")
    e("buffer_load_dwordx4 v[12:15], v2, s[32:35], s52 offen")
    e("v_and_b32 v5, 1, v1")
    e("v_cmp_eq_u32 vcc, 0, v5")
    e("v_mov_b32 v5, 0x3f80")
    e("v_mov_b32 v33, 0"); e("v_mov_b32 v35, 0")
    e("v_cndmask_b32 v32, 0, v5, vcc")
    e("v_mov_b32 v34, v32")
    e("v_lshlrev_b32 v3, 4, v0")
    e(f"v_cmp_gt_u32 vcc, 5632, v3")
    e(f"v_add_u32 v3, {L_ONES}, v3")
    e("s_and_saveexec_b64 s[50:51], vcc")
    e("ds_write_b128 v3, v[32:35]")
    e("s_mov_b64 exec, -1")
    e("v_lshrrev_b32 v5, 5, v1")
    e("v_bfe_u32 v6, v1, 4, 1")
    e("v_xor_b32 v7, v5, v6")
    e("v_and_b32 v3, 15, v1")
    e("v_lshlrev_b32 v3, 3, v3")
    e("v_lshl_add_u32 v3, v7, 7, v3")
    e("s_lshl_b32 s53, s47, 15")
    e(f"s_add_u32 s51, s53, {L_V}")
    e("v_mov_b32 v7, s51")
    e(f"v_mov_b32 v160, {L_ONES}")
    e("v_cmp_eq_u32 vcc, 1, v6")
    e("v_xor_b32 v4, 1, v6")
    e("v_lshlrev_b32 v4, 12, v4")
    e("v_cndmask_b32 v7, v7, v160, vcc")
    e("v_add_u32 v160, v7, v3")
    e("v_add_u32 v165, s53, v2")
    e("s_mov_b32 s56, 0")
    e("s_lshl_b32 s51, s45, 2")
    e(f"s_add_u32 s51, s51, {L_FLG + 64}")
    e("v_mov_b32 v161, s51")
    e("v_xor_b32 v162, 16, v161")
    e("v_mov_b32 v163, 0")
    e("v_mov_b32 v164, 0")
    e("s_waitcnt lgkmcnt(0)")
    lds_signal(a, 9, 5, 6)
    lds_wait(a, "c0", 9, 12, 5, 6, 51, 52)
    T.stamp()
    e("ds_read_b128 v[112:115], v165")
    e("s_waitcnt vmcnt(0) lgkmcnt(0)")
    e("v_mfma_f32_32x32x16_bf16 v[32:47], v[112:115], v[8:11], 0")
    e("v_mfma_f32_32x32x16_bf16 v[48:63], v[112:115], v[12:15], 0")
    e("s_nop 7"); e("s_nop 3")
    for (m, S) in ((16, 32), (144, 48)):
        e(f"v_max3_f32 v{m}, v{S}, v{S+1}, v{S+2}")
        e(f"v_max3_f32 v{m+1}, v{S+3}, v{S+4}, v{S+5}")
        e(f"v_max3_f32 v{m}, v{m}, v{S+6}, v{S+7}")
        e(f"v_max3_f32 v{m+1}, v{m+1}, v{S+8}, v{S+9}")
        e(f"v_max3_f32 v{m}, v{m}, v{S+10}, v{S+11}")
        e(f"v_max3_f32 v{m+1}, v{m+1}, v{S+12}, v{S+13}")
        e(f"v_max3_f32 v{m}, v{m}, v{S+14}, v{S+15}")
    e(f"L_{n}_setmax:")
    e("v_max_f32 v16, v16, v17")
    e("v_max_f32 v144, v144, v145")
    e("v_mov_b32 v17, v16")
    e("v_mov_b32 v145, v144")
    e("v_mov_b32 v120, v165")
    e("v_mov_b32 v3, v160")
    e("v_permlane32_swap_b32 v16, v17")
    e("v_permlane32_swap_b32 v144, v145")
    e("ds_read_b128 v[112:115], v120")
    e("ds_read_b128 v[116:119], v120 offset:1024")
    for u in range(2):
        for t in range(2):
            e(f"ds_read_b64_tr_b16 v[{128+4*u+2*t}:{129+4*u+2*t}], v3 offset:{512*u+256*t}")
    e("v_max_f32 v16, v16, v17")
    e("v_max_f32 v144, v144, v145")
    e("v_sub_f32 v16, 0, v16")
    e("v_sub_f32 v144, 0, v144")
    for r in range(17, 32): e(f"v_mov_b32 v{r}, v16")
    for r in range(145, 160): e(f"v_mov_b32 v{r}, v144")
    for r in list(range(76, 112)) + list(range(136, 144)): e(f"v_mov_b32 v{r}, 0")
    e("s_waitcnt lgkmcnt(5)")
    e("v_mfma_f32_32x32x16_bf16 v[32:47], v[112:115], v[8:11], v[16:31]")
    e("s_nop 7")
    e("s_nop 3")
    e("s_mov_b32 s55, 0")
    e(f"L_{n}_loop:")
    e("s_cmp_eq_u32 s55, 1")
    e(f"s_cbranch_scc1 L_{n}_g")
    e("s_cmp_lg_u32 s55, 3")
    e(f"s_cbranch_scc1 L_{n}_nobar")
    e(f"L_{n}_g:")
    if ENV("K2_AT", "0") == "1":
        e("s_lshr_b32 s51, s2, 3"); e("s_lshl_b32 s51, s51, 3"); e("s_add_u32 s51, s51, s45")
        e("s_mul_i32 s52, s51, 5504")
        e(f"s_mov_b32 s54, {W4F}")
        e("s_cmp_eq_u32 s55, 1")
        e(f"s_cselect_b32 s54, {W3F}, s54")
        e("s_add_u32 s52, s52, s54")
        e("v_lshlrev_b32 v5, 7, v1")
        e("s_mov_b32 exec_hi, 0x7ff")
        e("buffer_load_dword v166, v5, s[32:35], s52 offen")
        e("s_lshl_b32 s51, s51, 11")
        e(f"s_add_u32 s51, s51, {WOF}")
        e("s_mov_b64 exec, 0xffff")
        e("buffer_load_dword v166, v5, s[32:35], s51 offen")
        e("s_mov_b64 exec, -1")
    e("s_lshl_b32 s51, s55, 2")
    e(f"s_add_u32 s51, s51, {L_FLG + 36}")
    e("v_mov_b32 v5, s51")
    lds_wait(a, "c1", 0, 4, 5, 6, 51, 52, setaddr=False)
    e(f"L_{n}_nobar:")
    X = lambda r: e(f"v_exp_f32 v{r}, v{r}")
    def CV(d, s): e(f"v_cvt_pk_bf16_f32 v{d}, v{s}, v{s+1}")
    for tl in range(4):
        K = 112 + 4 * (tl % 2); Kn = 112 + 4 * ((tl + 1) % 2)
        V = 128 + 8 * (tl % 2); Vp = 128 + 8 * ((tl + 1) % 2)
        X(32); X(33)
        e(f"v_mfma_f32_32x32x16_bf16 v[96:111], v[{Vp+4}:{Vp+7}], v[76:79], v[96:111]")
        for u in range(2):
            for t in range(2):
                e(f"ds_read_b64_tr_b16 v[{Vp+4*u+2*t}:{Vp+4*u+2*t+1}], v3 offset:{1024*(tl+1)+512*u+256*t}")
        if tl in (1, 3):
            e("v_readfirstlane_b32 s51, v164")
            e("v_add_u32 v163, 1, v163")
            e("s_lshl_b32 s52, s55, 1")
            e(f"s_add_u32 s52, s52, {tl >> 1}")
            e("s_cmp_gt_u32 s52, s51")
            e(f"s_cbranch_scc1 L_{n}_lo{tl}")
            e("s_setprio 1")
            e(f"s_branch L_{n}_pd{tl}")
            e(f"L_{n}_lo{tl}:")
            e("s_setprio 0")
            e(f"L_{n}_pd{tl}:")
        for i in range(2, 8): X(32 + i)
        e(f"v_mfma_f32_32x32x16_bf16 v[48:63], v[{K}:{K+3}], v[12:15], v[144:159]")
        e(f"ds_read_b128 v[{K}:{K+3}], v120 offset:{1024*(tl+2)}")
        X(40)
        for i in range(4): CV(64 + i, 32 + 2 * i)
        X(41); X(42); X(43)
        e("s_waitcnt lgkmcnt(5)")
        e(f"v_mfma_f32_32x32x16_bf16 v[80:95], v[{V}:{V+3}], v[64:67], v[80:95]")
        if tl in (0, 2):
            e("ds_write_b32 v161, v163")
            e("ds_read_b32 v164, v162")
        for i in range(12, 16): X(32 + i)
        X(48)
        for i in range(4, 8): CV(64 + i, 32 + 2 * i)
        X(49); X(50)
        e(f"v_mfma_f32_32x32x16_bf16 v[80:95], v[{V+4}:{V+7}], v[68:71], v[80:95]")
        for i in range(3, 9): X(48 + i)
        e(f"v_mfma_f32_32x32x16_bf16 v[32:47], v[{Kn}:{Kn+3}], v[8:11], v[16:31]")
        for i in range(4): CV(72 + i, 48 + 2 * i)
        X(57); X(58); X(59); X(60)
        e(f"v_mfma_f32_32x32x16_bf16 v[96:111], v[{V}:{V+3}], v[72:75], v[96:111]")
        for i in range(13, 16): X(48 + i)
        if tl == 3:
            e("v_add_u32 v3, v4, v3")
            e("v_add_u32 v120, 4096, v120")
        elif tl in (0, 2):
            e("s_waitcnt lgkmcnt(0)")
        else:
            e("s_nop 0")
        for i in range(4, 8): CV(72 + i, 48 + 2 * i)
    e("s_add_u32 s55, s55, 1")
    e("s_cmp_lt_u32 s55, 8")
    e(f"s_cbranch_scc1 L_{n}_loop")
    e("v_mfma_f32_32x32x16_bf16 v[96:111], v[140:143], v[76:79], v[96:111]")
    T.stamp()
    e("s_waitcnt lgkmcnt(0)")
    e("s_nop 7"); e("s_nop 3")
    e("v_mul_f32 v32, 0, v80")
    for r in list(range(81, 88)) + list(range(96, 104)): e(f"v_fma_f32 v32, v{r}, 0, v32")
    e(f"v_mov_b32 v33, {f32(2.0**60)}")
    e("v_add_f32 v32, v32, v88")
    e("v_add_f32 v32, v32, v104")
    e("v_cmp_nlt_f32 vcc, v32, v33")
    e("s_cmp_lg_u32 s56, 0")
    e(f"s_cbranch_scc1 L_{n}_comb")
    e("s_cmp_eq_u64 vcc, 0")
    e(f"s_cbranch_scc1 L_{n}_comb")
    e("s_mov_b32 s56, 1")
    e("s_mov_b32 s55, 0")
    e("v_mov_b32 v120, v165")
    for r in (16, 17, 144, 145): e(f"v_mov_b32 v{r}, 0xff800000")
    e(f"L_{n}_mloop:")
    e("ds_read_b128 v[112:115], v120")
    e("s_waitcnt lgkmcnt(0)")
    e("v_mfma_f32_32x32x16_bf16 v[32:47], v[112:115], v[8:11], 0")
    e("v_mfma_f32_32x32x16_bf16 v[48:63], v[112:115], v[12:15], 0")
    e("v_add_u32 v120, 1024, v120")
    e("s_nop 7"); e("s_nop 3")
    for (m, S) in ((16, 32), (144, 48)):
        for i in range(4):
            e(f"v_max3_f32 v{m}, v{m}, v{S+4*i}, v{S+1+4*i}")
            e(f"v_max3_f32 v{m+1}, v{m+1}, v{S+2+4*i}, v{S+3+4*i}")
    e("s_add_u32 s55, s55, 1")
    e("s_cmp_lt_u32 s55, 32")
    e(f"s_cbranch_scc1 L_{n}_mloop")
    e(f"s_branch L_{n}_setmax")
    e(f"L_{n}_comb:")
    e("v_mov_b32 v105, v144")
    e("s_mul_i32 s51, s45, 3072")
    e(f"s_add_u32 s51, s51, {L_B}")
    e("v_add_u32 v3, s51, v2")
    e("s_xor_b32 s51, s45, 4")
    e("s_mul_i32 s51, s51, 3072")
    e(f"s_add_u32 s51, s51, {L_B}")
    e("v_add_u32 v7, s51, v2")
    lds_wait(a, "hd", 14, 4, 5, 6, 51, 52)
    e("ds_write_b128 v3, v[96:99]")
    e("ds_write_b128 v3, v[100:103] offset:1024")
    e("ds_write_b128 v3, v[104:107] offset:2048")
    e("s_lshl_b32 s51, s45, 2")
    e(f"s_add_u32 s51, s51, {L_FLG}")
    e("v_mov_b32 v5, s51")
    e("v_mov_b32 v6, 1")
    e("s_waitcnt lgkmcnt(0)")
    e("ds_write_b32 v5, v6")
    e("v_xor_b32 v5, 16, v5")
    e("v_mov_b32 v3, v7")
    lds_wait(a, "pr", 0, 1, 5, 6, 51, 52, setaddr=False)
    e("ds_read_b128 v[96:99], v3")
    e("ds_read_b128 v[100:103], v3 offset:1024")
    e("ds_read_b128 v[104:107], v3 offset:2048")
    e("s_lshl_b32 s49, s48, 5")
    e("s_add_u32 s49, s49, s40")
    e("s_lshl_b32 s50, s49, 2")
    e(f"s_add_u32 s50, s50, {OFLAG}")
    e("s_lshl_b32 s49, s49, 10")
    e(f"s_add_u32 s49, s49, {OOFF}")
    e("s_waitcnt lgkmcnt(0)")
    lds_signal(a, 13, 5, 6)
    e("v_min_f32 v32, v16, v105")
    e("v_sub_f32 v33, v32, v16")
    e("v_sub_f32 v34, v32, v105")
    e("v_exp_f32 v33, v33")
    e("v_exp_f32 v34, v34")
    e("s_nop 0")
    e("v_mul_f32 v88, v88, v33")
    e("v_fmac_f32 v88, v104, v34")
    e("v_rcp_f32 v88, v88")
    e("s_nop 0")
    e("v_mul_f32 v33, v33, v88")
    e("v_mul_f32 v34, v34, v88")
    for i in range(8): e(f"v_mul_f32 v{80+i}, v{80+i}, v33")
    for i in range(8): e(f"v_fmac_f32 v{80+i}, v{96+i}, v34")
    for p in range(4): e(f"v_cvt_pk_bf16_f32 v{64+p}, v{80+2*p}, v{81+2*p}")
    e("buffer_store_dwordx4 v[64:67], v2, s[32:35], s49 offen sc1")
    e("v_mov_b32 v5, 0")
    e("v_mov_b32 v6, 1")
    e("s_waitcnt vmcnt(0)")
    e("s_mov_b64 exec, 1")
    e("buffer_store_dword v6, v5, s[32:35], s50 offen sc1")
    e("s_mov_b64 exec, -1")


def gemm(a, tag, nact, nw, N, D, acc, fr, s_act, s_w, st_act, st_w, s_cnt=None, sc_act="", pace=None, hook=None, hook_step=None, noinit=False, between=None):
    e = a.e
    nf = nact + nw
    def F(r, i): return fr + 4 * (nf * r + i)
    def issue(r, part=3):
        if part != 3:
            for t in range(nact if part == 1 else 0):
                e(f"s_add_u32 s62, s{s_act}, {1024*r}")
                if t: e(f"s_add_u32 s62, s62, {st_act}")
                e(f"buffer_load_dwordx4 v[{F(r,t)}:{F(r,t)+3}], v2, s[32:35], s62 offen{sc_act}")
            for i in range(nw if part == 2 else 0):
                e(f"s_add_u32 s62, s{s_w}, {1024*r}")
                if i: e(f"s_add_u32 s62, s62, {st_w if isinstance(st_w, str) else i*st_w}")
                e(f"buffer_load_dwordx4 v[{F(r,nact+i)}:{F(r,nact+i)+3}], v2, s[32:35], s62 offen")
            return
        if s_cnt is not None:
            e(f"s_cmp_gt_i32 s{s_cnt}, 0")
            e(f"s_cselect_b32 s60, s{s_act}, s59")
            e(f"s_cselect_b32 s61, s{s_w}, s59")
            e(f"s_sub_i32 s{s_cnt}, s{s_cnt}, 1")
            sa, sw = 60, 61
        else:
            sa, sw = s_act, s_w
        for t in range(nact):
            so = f"s{sa}"
            if t:
                e(f"s_add_u32 s62, s{sa}, {st_act if isinstance(st_act, str) else t*st_act}"); so = "s62"
            e(f"buffer_load_dwordx4 v[{F(r,t)}:{F(r,t)+3}], v2, s[32:35], {so} offen{sc_act}")
        for i in range(nw):
            so = f"s{sw}"
            if i:
                e(f"s_add_u32 s62, s{sw}, {st_w if isinstance(st_w, str) else i*st_w}"); so = "s62"
            e(f"buffer_load_dwordx4 v[{F(r,nact+i)}:{F(r,nact+i)+3}], v2, s[32:35], {so} offen")
        e(f"s_add_u32 s{s_act}, s{s_act}, 1024")
        e(f"s_add_u32 s{s_w}, s{s_w}, 1024")
    def step(j, first=False):
        r = j % D
        if between and j < D:
            e(f"s_waitcnt vmcnt({nact*(D-1-j) + nf*min(j, max(N-D, 0))})")
        else:
            e(f"s_waitcnt vmcnt({nf*min(D-1, N-1-j)})")
        if hook_step: hook_step(j)
        more = j + D < N
        il = ENV("K2_IL", "1") == "1" and more
        if il:
            if s_cnt is not None:
                e(f"s_cmp_gt_i32 s{s_cnt}, 0")
                e(f"s_cselect_b32 s60, s{s_act}, s59")
                e(f"s_cselect_b32 s61, s{s_w}, s59")
                e(f"s_sub_i32 s{s_cnt}, s{s_cnt}, 1")
                sa, sw = 60, 61
            else:
                sa, sw = s_act, s_w
        def ld_w(i):
            so = f"s{sw}"
            if i:
                e(f"s_add_u32 s62, s{sw}, {st_w if isinstance(st_w, str) else i*st_w}"); so = "s62"
            e(f"buffer_load_dwordx4 v[{F(r,nact+i)}:{F(r,nact+i)+3}], v2, s[32:35], {so} offen")
        def ld_a(t):
            so = f"s{sa}"
            if t:
                e(f"s_add_u32 s62, s{sa}, {st_act if isinstance(st_act, str) else t*st_act}"); so = "s62"
            e(f"buffer_load_dwordx4 v[{F(r,t)}:{F(r,t)+3}], v2, s[32:35], {so} offen{sc_act}")
        mp = ENV("K2_MP_" + tag, "0")
        if mp: e(f"s_setprio {mp}")
        for i in range(nw):
            for t in range(nact):
                d = acc + 16 * (i * nact + t)
                cc = "0" if first else f"v[{d}:{d+15}]"
                e(f"v_mfma_f32_32x32x16_bf16 v[{d}:{d+15}], v[{F(r,nact+i)}:{F(r,nact+i)+3}], v[{F(r,t)}:{F(r,t)+3}], {cc}")
                did = False
                if il:
                    if t == nact - 1: ld_w(i); did = True
                    if i == nw - 1: ld_a(t); did = True
                if pace and not did: e(pace)
        if mp: e("s_setprio 3")
        if il:
            e(f"s_add_u32 s{s_act}, s{s_act}, 1024")
            e(f"s_add_u32 s{s_w}, s{s_w}, 1024")
        elif more: issue(r)
    if s_cnt is not None: e(f"s_mov_b32 s59, {BIG}")
    if between:
        for r in range(D): issue(r, 2)
        between()
        for r in range(D): issue(r, 1)
        e(f"s_add_u32 s{s_act}, s{s_act}, {1024*D}")
        e(f"s_add_u32 s{s_w}, s{s_w}, {1024*D}")
        if s_cnt is not None: e(f"s_sub_i32 s{s_cnt}, s{s_cnt}, {D}")
        for j in range(D): step(j, first=(j == 0 and not noinit))
        j0 = D
    else:
        for r in range(D): issue(r)
        if hook: hook(nf * D)
        step(0, not noinit)
        j0 = 1
    m = (N - j0 - D) // D
    j = j0
    if m >= 2:
        e(f"s_mov_b32 s58, {m}")
        e(f"L_{a.name}_{tag}_loop:")
        for jj in range(j0, j0 + D): step(jj)
        e("s_sub_u32 s58, s58, 1")
        e("s_cmp_lg_u32 s58, 0")
        e(f"s_cbranch_scc1 L_{a.name}_{tag}_loop")
        j = j0 + m * D
    while j < N:
        step(j); j += 1


def b_waves(a, T, with_w4):
    e = a.e
    pace = ENV("K2_PACE", "") or None
    st = {"n": 0}
    def sync():
        st["n"] += 1
        e("s_waitcnt lgkmcnt(0)")
        lds_signal(a, 8, 6, 7)
        lds_wait(a, f"sy{st['n']}", 8, 4 * st["n"], 6, 7, 68, 69, setaddr=False)

    e("s_sub_u32 s45, s44, 8")
    a.srd(24, 4, 2048 * 1024)
    a.srd(28, 6, 2048 * 1024)
    e("s_lshl_b32 s46, s40, 16")
    e("s_lshl_b32 s47, s45, 10")
    e("s_add_u32 s46, s46, s47")
    e(f"s_add_u32 s46, s46, {KOFF}")
    def kv(t0, cnt):
        for i in range(cnt):
            off = (t0 + 4 * i) * 1024
            e(f"s_add_u32 m0, s47, {L_K + off}")
            e(f"s_add_u32 s48, s46, {off}")
            e("buffer_load_dwordx4 v2, s[32:35], s48 offen lds")
            e(f"s_add_u32 m0, s47, {L_V + off}")
            e(f"s_add_u32 s48, s46, {off + VOFF - KOFF}")
            e("buffer_load_dwordx4 v2, s[32:35], s48 offen lds")
    OLD = ENV("K2_ORDER", "old") == "old"
    kv(0, 2)
    if Q64:
        kv(32, 2); kv(8, 2); kv(40, 2)
        e("s_waitcnt vmcnt(8)")
        lds_signal(a, 9, 6, 7)
    elif OLD:
        kv(8, 6)
        e("s_waitcnt vmcnt(12)")
        lds_signal(a, 9, 6, 7)
    e("s_setprio %s" % ENV("K2_PRIO", "3"))
    T.n = 1
    T.stamp()
    if ENV("K2_NOB") == "1":
        kv(16, 4); kv(48, 4); e("s_waitcnt vmcnt(0)")
        for i in (10, 11, 12, 14): lds_signal(a, i, 6, 7)
        e("s_endpgm")

    e("s_and_b32 s50, s45, 1")
    e("s_lshr_b32 s51, s45, 1")
    e("s_lshl_b32 s64, s40, 1"); e("s_add_u32 s64, s64, s50")
    e("s_lshl_b32 s65, s41, 1"); e("s_add_u32 s65, s65, s51")
    for j in range(1, 4):
        e(f"s_xor_b32 s60, s45, {j}")
        e("s_mul_i32 s60, s60, 6144")
        e(f"s_add_u32 s60, s60, {L_B + (j-1)*2048}")
        e(f"v_add_u32 v{2+j}, s60, v2")
    e("s_mul_i32 s52, s45, 6144")
    e(f"s_add_u32 s52, s52, {L_B}")

    def signed_stride(sreg, bit_sreg, stride):
        e(f"s_mov_b32 s{sreg}, {stride}")
        e(f"s_cmp_eq_u32 s{bit_sreg}, 1")
        e(f"s_cselect_b32 s{sreg}, {(-stride) & 0xffffffff}, s{sreg}")

    def x_tile(dst, vt):
        e("s_lshl_b32 s60, s64, 15")
        e("s_lshl_b32 s61, s65, 6")
        e("s_add_u32 s60, s60, s61")
        e(f"v_and_b32 v{vt}, 31, v1")
        e(f"v_lshrrev_b32 v{vt+1}, 5, v1")
        e(f"v_lshlrev_b32 v{vt+2}, 10, v{vt}")
        e(f"v_lshl_add_u32 v{vt+2}, v{vt+1}, 3, v{vt+2}")
        for g in range(4):
            e(f"buffer_load_dwordx2 v[{dst+2*g}:{dst+2*g+1}], v{vt+2}, s[24:27], s60 offen offset:{16*g}")

    def reduce22(ACC, TMP):
        e("s_nop 7"); e("s_nop 3")
        e(f"v_add_u32 v{TMP+24}, s52, v2")
        for h in range(2):
            for j in range(1, 4):
                for q in range(2):
                    r = ACC + 16 * j + 8 * h + 4 * q
                    e(f"ds_write_b128 v{2+j}, v[{r}:{r+3}] offset:{q*1024}")
            sync()
            for i in range(6):
                e(f"ds_read_b128 v[{TMP+4*i}:{TMP+4*i+3}], v{TMP+24} offset:{i*1024}")
            if h == 0:
                sync()
            else:
                e("s_waitcnt lgkmcnt(0)")
            for j in range(3):
                for r in range(8):
                    e(f"v_add_f32 v{ACC+8*h+r}, v{ACC+8*h+r}, v{TMP+8*j+r}")

    def xsync(ph, during=None):
        xpub(ph)
        if during: during()
        xwait(ph)

    def xpub(ph):
        e("s_waitcnt vmcnt(0)")
        e("s_lshl_b32 s70, s40, 8")
        e(f"s_add_u32 s70, s70, {FLAGS + 128*ph}")
        e("s_lshl_b32 s61, s41, 2")
        e("s_add_u32 s61, s61, s45")
        e("s_lshl_b32 s61, s61, 2")
        e("v_mov_b32 v6, s61")
        e("v_mov_b32 v7, 1")
        e("s_mov_b64 exec, 1")
        e("buffer_store_dword v7, v6, s[32:35], s70 offen sc1")
        e("s_mov_b64 exec, -1")

    def xwait(ph):
        e("v_and_b32 v6, 31, v1")
        e("v_lshlrev_b32 v6, 2, v6")
        e(f"s_mov_b32 s68, {SPIN_MAX}")
        e(f"L_k2_xs{ph}:")
        e("buffer_load_dword v7, v6, s[32:35], s70 offen sc1")
        e("s_waitcnt vmcnt(0)")
        e("v_cmp_eq_u32 vcc, 0, v7")
        e("s_cmp_eq_u64 vcc, 0")
        e(f"s_cbranch_scc1 L_k2_xs{ph}_go")
        e("s_sleep 2")
        e("s_sub_u32 s68, s68, 1")
        e("s_cmp_lg_u32 s68, 0")
        e(f"s_cbranch_scc1 L_k2_xs{ph}")
        e(f"L_k2_xs{ph}_go:")

    ACC, FR, XR = 8, 72, 136
    x_tile(XR, 146)
    e("s_lshl_b32 s61, s64, 8")
    e(f"s_add_u32 s61, s61, {STAT}")
    e("v_lshlrev_b32 v148, 3, v146")
    e("buffer_load_dwordx2 v[144:145], v148, s[32:35], s61 offen")
    e("s_lshl_b32 s60, s45, 3")
    e("s_lshl_b32 s56, s64, 5"); e("s_add_u32 s56, s56, s60"); e("s_lshl_b32 s56, s56, 10"); e(f"s_add_u32 s56, s56, {HOFF}")
    e("s_lshl_b32 s57, s65, 5"); e("s_add_u32 s57, s57, s60"); e("s_lshl_b32 s57, s57, 10"); e(f"s_add_u32 s57, s57, {W2F}")
    signed_stride(53, 50, 32768)
    signed_stride(54, 51, 32768)
    def hook(ny):
        if OLD:
            e(f"s_waitcnt vmcnt({ny + 5})")
            lds_signal(a, 10, 6, 7); lds_signal(a, 11, 6, 7)
            return
        kv(8, 2)
        e(f"s_waitcnt vmcnt({ny + 5 + 4})")
        lds_signal(a, 9, 6, 7)
    def hook_step(j):
        if j == 4 and not OLD: lds_signal(a, 10, 6, 7)
    gemm(a, "w2", 2, 2, 8, 4, ACC, FR, 56, 57, "s53", "s54", pace=pace, hook=hook, hook_step=hook_step)
    if ENV("K2_FINE") == "1": T.stamp()
    LATE = ENV("K2_LATEKV", "1") == "1"
    def lastkv():
        if Q64:
            kv(16, 4); kv(48, 4)
        else:
            if not OLD: kv(16, 4)
            kv(32, 8)
    if not LATE: lastkv()
    e("s_mul_i32 s66, s41, 5")
    e("s_min_u32 s60, s41, 3")
    e("s_add_u32 s66, s66, s60")
    e("s_and_b32 s61, s40, 3"); e("s_lshl_b32 s61, s61, 2"); e("s_add_u32 s61, s61, s45")
    e("s_lshl_b32 s62, s66, 5"); e("s_mul_i32 s63, s61, 12"); e("s_add_u32 s62, s62, s63"); e("s_lshl_b32 s62, s62, 10"); e(f"s_add_u32 s62, s62, {W3F}")
    e("v_lshlrev_b32 v6, 7, v1")
    if ENV("K2_AT", "0") != "1":
        e("buffer_load_dword v149, v6, s[32:35], s62 offen")
        e("s_add_u32 s62, s62, 4096")
        e("buffer_load_dword v149, v6, s[32:35], s62 offen")
    reduce22(ACC, FR)
    if ENV("K2_FINE") == "1": T.stamp()
    if not OLD:
        e("s_waitcnt vmcnt(18)")
        lds_signal(a, 11, 6, 7)
    if not LATE:
        e("s_waitcnt vmcnt(2)")
        lds_signal(a, 12, 6, 7)
    U = FR
    e("v_mul_f32 v146, v144, v145")
    e("s_mov_b32 s60, 0xffff0000")
    for p in range(8):
        e(f"v_lshlrev_b32 v{U+2*p}, 16, v{XR+p}")
        e(f"v_and_b32 v{U+2*p+1}, s60, v{XR+p}")
    for r in range(16): e(f"v_sub_f32 v{ACC+r}, v{ACC+r}, v146")
    for r in range(16): e(f"v_fmac_f32 v{ACC+r}, v{U+r}, v145")
    for p in range(8): e(f"v_cvt_pk_bf16_f32 v{ACC+16+p}, v{ACC+2*p}, v{ACC+2*p+1}")
    e("s_lshl_b32 s60, s64, 5"); e("s_lshl_b32 s61, s65, 1"); e("s_add_u32 s60, s60, s61"); e("s_lshl_b32 s60, s60, 10"); e(f"s_add_u32 s60, s60, {X1OFF}")
    e(f"buffer_store_dwordx4 v[{ACC+16}:{ACC+19}], v2, s[32:35], s60 offen sc1")
    e(f"buffer_store_dwordx4 v[{ACC+20}:{ACC+23}], v2, s[32:35], s60 offen offset:1024 sc1")
    if ENV("K2_DUP", "0") == "1":
        e(f"buffer_store_dwordx4 v[{ACC+16}:{ACC+19}], v2, s[32:35], s60 offen")
        e(f"buffer_store_dwordx4 v[{ACC+20}:{ACC+23}], v2, s[32:35], s60 offen offset:1024")
    e(f"v_add_f32 v144, v{ACC}, v{ACC+1}")
    e(f"v_mul_f32 v145, v{ACC}, v{ACC}")
    e(f"v_add_f32 v146, v{ACC+2}, v{ACC+3}")
    e(f"v_mul_f32 v147, v{ACC+1}, v{ACC+1}")
    e(f"v_fmac_f32 v145, v{ACC+2}, v{ACC+2}")
    e(f"v_fmac_f32 v147, v{ACC+3}, v{ACC+3}")
    for r in range(4, 16):
        e(f"v_add_f32 v{144 + 2*(r&1)}, v{144 + 2*(r&1)}, v{ACC+r}")
        e(f"v_fmac_f32 v{145 + 2*(r&1)}, v{ACC+r}, v{ACC+r}")
    e("v_add_f32 v144, v144, v146")
    e("v_add_f32 v145, v145, v147")
    e("v_mov_b32 v146, v144")
    e("v_mov_b32 v147, v145")
    e("s_lshl_b32 s60, s64, 4"); e("s_add_u32 s60, s60, s65")
    e("v_permlane32_swap_b32 v144, v146")
    e("v_permlane32_swap_b32 v145, v147")
    e("s_lshl_b32 s60, s60, 8"); e(f"s_add_u32 s60, s60, {X1STAT}")
    e("v_add_f32 v144, v144, v146")
    e("v_add_f32 v145, v145, v147")
    e("s_mov_b32 exec_hi, 0")
    e("buffer_store_dwordx2 v[144:145], v148, s[32:35], s60 offen sc1")
    e("s_mov_b64 exec, -1")
    T.stamp()
    if ENV("K2_STOP") == "1": e("s_endpgm")

    def colsum():
        e("s_mul_i32 s60, s45, 8*1408*4")
        e("s_lshl_b32 s61, s66, 7")
        e("s_add_u32 s60, s60, s61")
        e(f"s_add_u32 s60, s60, {CS3P}")
        e("s_mov_b32 exec_hi, 0xffff")
        for i in range(8):
            e(f"buffer_load_dwordx4 v[{8+4*i}:{11+4*i}], v2, s[32:35], s60 offen")
            if i < 7: e("s_add_u32 s60, s60, 1408*4")
        e(f"v_add_u32 v6, {L_CS}, v2")
        e("s_waitcnt vmcnt(0)")
        for i in range(1, 8):
            for r in range(4): e(f"v_add_f32 v{8+r}, v{8+r}, v{8+4*i+r}")
        for r in range(4): e(f"ds_add_f32 v6, v{8+r} offset:{4*r}")
        e("s_mov_b64 exec, -1")
    xpub(0)
    if LATE: lastkv()
    colsum()
    if LATE: lds_signal(a, 12, 6, 7)

    ACC, FR = 8, 104
    e("s_mul_i32 s61, s51, 3")
    e("s_add_u32 s67, s66, s61")
    e("s_lshl_b32 s60, s50, 4")
    e("s_lshl_b32 s56, s64, 5"); e("s_add_u32 s56, s56, s60"); e("s_lshl_b32 s56, s56, 10"); e(f"s_add_u32 s56, s56, {X1OFF}")
    e("s_lshl_b32 s57, s67, 5"); e("s_add_u32 s57, s57, s60"); e("s_lshl_b32 s57, s57, 10"); e(f"s_add_u32 s57, s57, {W3F}")
    def w0():
        xwait(0); T.stamp()
    BTW = ENV("K2_BTW", "0") == "1"
    if not BTW: w0()
    gemm(a, "w3", 2, 3, 16, 3, ACC, FR, 56, 57, "s53", 32768, sc_act=" sc1", pace=pace, between=w0 if BTW else None)
    if ENV("K2_FINE") == "1": T.stamp()
    if with_w4 and ENV("K2_W4T", "0") == "1":
        e("s_and_b32 s61, s40, 3"); e("s_lshl_b32 s61, s61, 2"); e("s_add_u32 s61, s61, s45")
        e("s_mul_i32 s62, s41, 172"); e("s_mul_i32 s63, s61, 11"); e("s_add_u32 s62, s62, s63"); e("s_lshl_b32 s62, s62, 10"); e(f"s_add_u32 s62, s62, {W4F}")
        e("v_lshlrev_b32 v6, 7, v1")
        e("buffer_load_dword v163, v6, s[32:35], s62 offen")
        e("s_add_u32 s62, s62, 3072")
        e("buffer_load_dword v163, v6, s[32:35], s62 offen")
    e("v_and_b32 v164, 31, v1")
    e("v_lshrrev_b32 v165, 5, v1")
    e("v_lshlrev_b32 v166, 3, v164")
    e("v_lshl_add_u32 v166, v165, 11, v166")
    e("s_lshl_b32 s60, s64, 12")
    e(f"s_add_u32 s60, s60, {X1STAT}")
    SR = FR + 40
    for j in range(8):
        e(f"buffer_load_dwordx2 v[{SR+2*j}:{SR+2*j+1}], v166, s[32:35], s60 offen offset:{256*j} sc1")
    e(f"v_add_u32 v167, s52, v2")
    e("s_nop 3")
    quads = [(i, q) for i in range(3) for q in range(4)]
    def xwrite(h):
        for s_, (i, q) in enumerate(quads[6*h:6*h+6]):
            r = ACC + 16 * (2 * i + 1) + 4 * q
            e(f"ds_write_b128 v3, v[{r}:{r+3}] offset:{s_*1024}")
    def xread(h):
        for s_ in range(6):
            e(f"ds_read_b128 v[{FR+4*s_}:{FR+4*s_+3}], v167 offset:{s_*1024}")
    def xadd(h):
        for s_, (i, q) in enumerate(quads[6*h:6*h+6]):
            for r in range(4):
                d = ACC + 32 * i + 4 * q + r
                e(f"v_add_f32 v{d}, v{d}, v{FR+4*s_+r}")
    def sig():
        st["n"] += 1
        e("s_waitcnt lgkmcnt(0)")
        lds_signal(a, 8, 6, 7)
        return st["n"]
    def wt(n_):
        lds_wait(a, f"sy{n_}", 8, 4 * n_, 6, 7, 68, 69)
    xwrite(0)
    n1 = sig()
    e("s_waitcnt vmcnt(0)")
    for j in range(1, 8):
        e(f"v_add_f32 v{SR}, v{SR}, v{SR+2*j}")
        e(f"v_add_f32 v{SR+1}, v{SR+1}, v{SR+2*j+1}")
    e(f"v_mov_b32 v{SR+2}, v{SR}")
    e(f"v_mov_b32 v{SR+3}, v{SR+1}")
    e("s_mul_i32 s60, s51, 384")
    e(f"s_add_u32 s60, s60, {L_CS}")
    e(f"v_permlane32_swap_b32 v{SR}, v{SR+2}")
    e(f"v_permlane32_swap_b32 v{SR+1}, v{SR+3}")
    e("v_lshl_add_u32 v166, v165, 4, s60")
    e(f"v_add_f32 v{SR}, v{SR}, v{SR+2}")
    e(f"v_add_f32 v{SR+1}, v{SR+1}, v{SR+3}")
    NMU, C1, C2, IA = SR + 4, SR + 5, SR + 6, SR + 7
    e(f"v_mul_f32 v{NMU}, {f32(-1/512)}, v{SR}")
    e(f"v_mul_f32 v{SR+1}, {f32(1/512)}, v{SR+1}")
    e(f"v_fma_f32 v{SR+1}, -v{NMU}, v{NMU}, v{SR+1}")
    e(f"v_max_f32 v{SR+1}, 0, v{SR+1}")
    e(f"v_add_f32 v{SR+1}, {f32(EPS)}, v{SR+1}")
    e(f"v_rsq_f32 v{SR}, v{SR+1}")
    e("s_mul_i32 s62, s64, 86")
    e(f"v_mul_f32 v{IA}, v{SR+1}, v{SR}")
    e(f"v_mul_f32 v{C1}, {f32(GELU_K1)}, v{SR}")
    e(f"v_mul_f32 v{C2}, v{SR}, v{SR}")
    e(f"v_mul_f32 v{C2}, v{C2}, v{SR}")
    e(f"v_mul_f32 v{C2}, {f32(GELU_K2)}, v{C2}")
    e("s_lshl_b32 s63, s67, 1"); e("s_add_u32 s62, s62, s63"); e("s_lshl_b32 s62, s62, 10"); e(f"s_add_u32 s62, s62, {GOFF}")
    e("s_cmp_ge_u32 s41, 3")
    e("s_cselect_b32 s63, s51, 0")
    CSR = FR + 24
    def epi(i):
        Z = ACC + 32 * i; Tm = Z + 16
        for g in range(4):
            e(f"ds_read_b128 v[{CSR+4*g}:{CSR+4*g+3}], v166 offset:{128*i + 32*g}")
        e("s_waitcnt lgkmcnt(0)")
        R = range(16)
        for r in R: e(f"v_fmac_f32 v{Z+r}, v{NMU}, v{CSR+r}")
        for r in R: e(f"v_mul_f32 v{Tm+r}, v{Z+r}, v{Z+r}")
        for r in R: e(f"v_fma_f32 v{Tm+r}, v{Tm+r}, v{C2}, v{C1}")
        for r in R: e(f"v_mul_f32 v{Tm+r}, v{Tm+r}, v{Z+r}")
        for r in R: e(f"v_exp_f32 v{Tm+r}, v{Tm+r}")
        for r in R: e(f"v_fma_f32 v{Tm+r}, v{Tm+r}, v{IA}, v{IA}")
        for r in R: e(f"v_rcp_f32 v{Tm+r}, v{Tm+r}")
        for r in R: e(f"v_mul_f32 v{Z+r}, v{Z+r}, v{Tm+r}")
        for p in range(8): e(f"v_cvt_pk_bf16_f32 v{Tm+p}, v{Z+2*p}, v{Z+2*p+1}")
        e(f"buffer_store_dwordx4 v[{Tm}:{Tm+3}], v2, s[32:35], s62 offen offset:{(2048*i) % 4096} sc1")
        e(f"buffer_store_dwordx4 v[{Tm+4}:{Tm+7}], v2, s[32:35], s62 offen offset:{(2048*i) % 4096 + 1024} sc1")
        if i == 1: e("s_add_u32 s62, s62, 4096")
    wt(n1)
    xread(0)
    n2 = sig()
    xadd(0)
    if ENV("K2_FINE") == "1": T.stamp()
    wt(n2)
    xwrite(1)
    n3 = sig()
    epi(0)
    wt(n3)
    xread(1)
    e("s_waitcnt lgkmcnt(0)")
    lds_signal(a, 14, 6, 7)
    xadd(1)
    epi(1)
    e("s_cmp_eq_u32 s63, 1")
    e("s_cbranch_scc1 L_k2_w3_done")
    epi(2)
    e("L_k2_w3_done:")
    T.stamp()
    if not with_w4: return

    xpub(1)
    if not BTW:
        xwait(1); T.stamp()
    ACC, FR, XR, X1R = 8, 72, 152, 160
    D4 = int(ENV("K2_D4", "5"))
    def xx1():
        x_tile(XR, 3)
        e("s_lshl_b32 s60, s64, 5"); e("s_lshl_b32 s61, s65, 1"); e("s_add_u32 s60, s60, s61"); e("s_lshl_b32 s60, s60, 10"); e(f"s_add_u32 s60, s60, {X1OFF}")
        e(f"buffer_load_dwordx4 v[{X1R}:{X1R+3}], v2, s[32:35], s60 offen sc1")
        e(f"buffer_load_dwordx4 v[{X1R+4}:{X1R+7}], v2, s[32:35], s60 offen offset:1024 sc1")
    xx1()
    e("s_mul_i32 s60, s45, 22")
    e("s_sub_u32 s55, 86, s60")
    e("s_min_u32 s55, s55, 22")
    e("s_mul_i32 s56, s64, 86"); e("s_add_u32 s56, s56, s60"); e("s_lshl_b32 s56, s56, 10"); e(f"s_add_u32 s56, s56, {GOFF}")
    e("s_mul_i32 s57, s65, 86"); e("s_add_u32 s57, s57, s60"); e("s_lshl_b32 s57, s57, 10"); e(f"s_add_u32 s57, s57, {W4F}")
    signed_stride(53, 50, 86 * 1024)
    signed_stride(54, 51, 86 * 1024)
    def w1():
        xwait(1); T.stamp()
    gemm(a, "w4", 2, 2, 22, D4, ACC, FR, 56, 57, "s53", "s54", s_cnt=55, sc_act=" sc1", pace=pace, between=w1 if BTW else None)
    if ENV("K2_FINE") == "1": T.stamp()
    e("s_setprio 0")
    e("s_nop 7"); e("s_nop 3")
    e("s_mov_b32 s60, 0xffff0000")
    for base in (XR, X1R):
        for p in range(8):
            e(f"v_lshlrev_b32 v{FR+2*p}, 16, v{base+p}")
            e(f"v_and_b32 v{FR+2*p+1}, s60, v{base+p}")
        for r in range(16): e(f"v_add_f32 v{ACC+r}, v{ACC+r}, v{FR+r}")
    e("s_lshl_b32 s60, s45, 3")
    e("s_lshl_b32 s56, s64, 5"); e("s_add_u32 s56, s56, s60"); e("s_lshl_b32 s56, s56, 10"); e(f"s_add_u32 s56, s56, {OOFF}")
    e("s_lshl_b32 s57, s65, 5"); e("s_add_u32 s57, s57, s60"); e("s_lshl_b32 s57, s57, 10"); e(f"s_add_u32 s57, s57, {WOF}")
    signed_stride(53, 50, 32768)
    signed_stride(54, 51, 32768)
    e("s_add_u32 s53, s53, s56")
    e("s_add_u32 s54, s54, s57")
    OR_, WR = 72, 136
    def wload(j):
        r = WR + 8 * (j % 4)
        o = 1024 * (j % 4)
        e(f"buffer_load_dwordx4 v[{r}:{r+3}], v2, s[32:35], s57 offen offset:{o}")
        e(f"buffer_load_dwordx4 v[{r+4}:{r+7}], v2, s[32:35], s54 offen offset:{o}")
    for j in range(4): wload(j)
    e("s_add_u32 s57, s57, 4096"); e("s_add_u32 s54, s54, 4096")
    e("s_lshl_b32 s70, s40, 8")
    e("s_lshl_b32 s60, s45, 5")
    e("s_add_u32 s70, s70, s60")
    e(f"s_add_u32 s70, s70, {OFLAG}")
    e("v_and_b32 v6, 7, v1")
    e("v_lshlrev_b32 v6, 2, v6")
    e("v_bfe_u32 v7, v1, 3, 1")
    e("v_lshl_add_u32 v6, v7, 7, v6")
    e(f"s_mov_b32 s68, {SPIN_MAX}")
    e("s_setprio 0")
    e("L_k2_ow:")
    e("buffer_load_dword v7, v6, s[32:35], s70 offen sc1")
    e("s_waitcnt vmcnt(0)")
    e("v_cmp_eq_u32 vcc, 0, v7")
    e("s_cmp_eq_u64 vcc, 0")
    e("s_cbranch_scc1 L_k2_ow_go")
    e("s_sleep 2")
    e("s_sub_u32 s68, s68, 1")
    e("s_cmp_lg_u32 s68, 0")
    e("s_cbranch_scc1 L_k2_ow")
    e("L_k2_ow_go:")
    e("s_setprio 3")
    if ENV("K2_FINE") == "1": T.stamp()
    for j in range(8):
        if j == 4: e("s_add_u32 s56, s56, 4096"); e("s_add_u32 s53, s53, 4096")
        r = OR_ + 8 * j
        e(f"buffer_load_dwordx4 v[{r}:{r+3}], v2, s[32:35], s56 offen offset:{1024*(j%4)} sc1")
        e(f"buffer_load_dwordx4 v[{r+4}:{r+7}], v2, s[32:35], s53 offen offset:{1024*(j%4)} sc1")
    lds_wait(a, "ad", 13, 8, 6, 7, 68, 69)
    for j in range(1, 4):
        e(f"s_xor_b32 s60, s45, {j}")
        e("s_mul_i32 s60, s60, 12288")
        e(f"s_add_u32 s60, s60, {(j-1)*4096}")
        e(f"v_add_u32 v{2+j}, s60, v2")
    for j in range(8):
        if j < 4: e(f"s_waitcnt vmcnt({2*(7-j) + 2*j})")
        else: e(f"s_waitcnt vmcnt({2*(7-j)})")
        w = WR + 8 * (j % 4); o = OR_ + 8 * j
        for i in range(2):
            for t in range(2):
                d = ACC + 16 * (2 * i + t)
                e(f"v_mfma_f32_32x32x16_bf16 v[{d}:{d+15}], v[{w+4*i}:{w+4*i+3}], v[{o+4*t}:{o+4*t+3}], v[{d}:{d+15}]")
        if j < 4: wload(j + 4)
    e("s_mul_i32 s60, s45, 12288")
    e("v_add_u32 v136, s60, v2")
    e("v_and_b32 v152, 31, v1")
    e("v_lshrrev_b32 v153, 5, v1")
    e("v_lshlrev_b32 v154, 10, v152")
    e("v_lshl_add_u32 v154, v153, 4, v154")
    e("s_nop 7")
    for j in range(1, 4):
        for q in range(4):
            r = ACC + 16 * j + 4 * q
            e(f"ds_write_b128 v{2+j}, v[{r}:{r+3}] offset:{q*1024}")
    sync()
    for i in range(12):
        e(f"ds_read_b128 v[{FR+4*i}:{FR+4*i+3}], v136 offset:{i*1024}")
    for j in range(3):
        e(f"s_waitcnt lgkmcnt({8-4*j})")
        for r in range(16): e(f"v_add_f32 v{ACC+r}, v{ACC+r}, v{FR+16*j+r}")
    for p in range(8): e(f"v_cvt_pk_bf16_f32 v{FR+p}, v{ACC+2*p}, v{ACC+2*p+1}")
    e("s_lshl_b32 s60, s64, 15")
    e("s_lshl_b32 s61, s65, 6")
    e(f"v_permlane32_swap_b32 v{FR}, v{FR+2}")
    e(f"v_permlane32_swap_b32 v{FR+1}, v{FR+3}")
    e(f"v_permlane32_swap_b32 v{FR+4}, v{FR+6}")
    e(f"v_permlane32_swap_b32 v{FR+5}, v{FR+7}")
    e("s_add_u32 s60, s60, s61")
    OST = ENV("K2_OST", "")
    e(f"buffer_store_dwordx4 v[{FR}:{FR+3}], v154, s[28:31], s60 offen{OST}")
    e(f"buffer_store_dwordx4 v[{FR+4}:{FR+7}], v154, s[28:31], s60 offen offset:32{OST}")
    T.stamp()


def gen_k2(with_w4=True):
    a = Asm("k2"); e = a.e
    T = Stamper(a, 72, 1)
    T.stamp()
    e("s_cmp_ge_u32 s2, 256")
    e("s_cbranch_scc1 L_k2_exit")
    e("s_load_dwordx2 s[4:5], s[0:1], 0")
    e("s_load_dwordx2 s[6:7], s[0:1], 64")
    e("s_load_dwordx2 s[20:21], s[0:1], 80")
    e("v_lshrrev_b32 v1, 6, v0")
    e("s_and_b32 s54, s2, 7")
    e("v_readfirstlane_b32 s44, v1")
    e("v_and_b32 v1, 63, v0")
    e("v_lshlrev_b32 v2, 4, v1")
    e("s_lshl_b32 s40, s54, 2")
    e("s_bfe_u32 s54, s2, 0x20003")
    e("s_add_u32 s40, s40, s54")
    e("s_lshr_b32 s41, s2, 5")
    e("s_mov_b32 s45, s44")
    for r in range(4, 8): e(f"v_mov_b32 v{r}, 0")
    e(f"v_add_u32 v3, {L_CS}, v2")
    e("ds_write_b128 v3, v[4:7]")
    e("s_waitcnt lgkmcnt(0)")
    e("s_barrier")
    a.srd(32, 20, WS_USED)
    e("s_cmp_ge_u32 s44, 8")
    e("s_cbranch_scc1 L_k2_b")
    if ENV("K2_NOA") == "1":
        e("s_endpgm")
    (attn_wave64 if Q64 else attn_wave)(a, T)
    T.stamp()
    T.dump(32, 44, 12, 4, 5)
    e("s_endpgm")
    e("L_k2_b:")
    b_waves(a, T, with_w4)
    T.dump(32, 44, 12, 4, 5)
    e("L_k2_exit:")
    e("s_endpgm")
    return a.kernel(vgpr=168, sgpr=96)
```

```python
from common import *

L_K = 0
L_V = 65536
L_ONES = 131072
L_B = L_ONES + 5632
L_CS = L_B + 24576
L_FLG = L_CS + 768
K2_LDS = L_FLG + 256
SPIN_MAX = 20000
BIG = 0x7ff00000
ENV = os.environ.get
FUSE = ENV("K2_FUSE", "1") == "1"
Q64 = ENV("K2_Q64", "1") == "1"


def lds_signal(a, idx, va, vb):
    e = a.e
    e(f"v_mov_b32 v{va}, {L_FLG + 4*idx}")
    e(f"v_mov_b32 v{vb}, 1")
    e("s_mov_b64 exec, 1")
    e(f"ds_add_u32 v{va}, v{vb}")
    e("s_mov_b64 exec, -1")


def lds_wait(a, tag, idx, target, va, vb, s0, s1, sleep=1, setaddr=True):
    e = a.e
    if setaddr: e(f"v_mov_b32 v{va}, {L_FLG + 4*idx}")
    e(f"s_mov_b32 s{s0}, {SPIN_MAX}")
    e(f"L_{a.name}_lw{tag}:")
    e(f"ds_read_b32 v{vb}, v{va}")
    e("s_waitcnt lgkmcnt(0)")
    e(f"v_readfirstlane_b32 s{s1}, v{vb}")
    e(f"s_cmp_ge_u32 s{s1}, {target}")
    e(f"s_cbranch_scc1 L_{a.name}_lw{tag}_go")
    e(f"s_sleep {sleep}")
    e(f"s_sub_u32 s{s0}, s{s0}, 1")
    e(f"s_cmp_lg_u32 s{s0}, 0")
    e(f"s_cbranch_scc1 L_{a.name}_lw{tag}")
    e(f"L_{a.name}_lw{tag}_go:")


def attn_wave(a, T):
    e = a.e; n = a.name
    e("s_lshl_b32 s48, s41, 3")
    e("s_add_u32 s48, s48, s45")
    e("s_lshl_b32 s49, s40, 6")
    e("s_add_u32 s49, s49, s48")
    e("s_lshl_b32 s49, s49, 10")
    e("buffer_load_dwordx4 v[8:11], v2, s[32:35], s49 offen")
    e("v_and_b32 v5, 1, v1")
    e("v_cmp_eq_u32 vcc, 0, v5")
    e("v_mov_b32 v5, 0x3f80")
    e("v_mov_b32 v33, 0"); e("v_mov_b32 v35, 0")
    e("v_cndmask_b32 v32, 0, v5, vcc")
    e("v_mov_b32 v34, v32")
    e("v_lshlrev_b32 v3, 4, v0")
    e(f"v_cmp_gt_u32 vcc, 5632, v3")
    e(f"v_add_u32 v3, {L_ONES}, v3")
    e("s_and_saveexec_b64 s[50:51], vcc")
    e("ds_write_b128 v3, v[32:35]")
    e("s_mov_b64 exec, -1")
    e("v_lshrrev_b32 v5, 5, v1")
    e("v_bfe_u32 v6, v1, 4, 1")
    e("v_xor_b32 v7, v5, v6")
    e("v_and_b32 v3, 15, v1")
    e("v_lshlrev_b32 v3, 3, v3")
    e("v_lshl_add_u32 v3, v7, 7, v3")
    e("v_lshl_add_u32 v3, v6, 16, v3")
    e(f"v_add_u32 v112, {L_V}, v3")
    e("v_xor_b32 v4, 1, v6")
    e("v_lshlrev_b32 v4, 12, v4")
    e("s_mov_b32 s56, 0")
    e("s_lshl_b32 s51, s45, 2")
    e(f"s_add_u32 s51, s51, {L_FLG + 64}")
    e("v_mov_b32 v113, s51")
    e("v_xor_b32 v114, 16, v113")
    e("v_mov_b32 v115, 0")
    e("v_mov_b32 v116, 0")
    e("s_waitcnt lgkmcnt(0)")
    lds_signal(a, 9, 5, 6)
    lds_wait(a, "c0", 9, 12, 5, 6, 51, 52)
    T.stamp()
    e("ds_read_b128 v[88:91], v2")
    e("s_waitcnt vmcnt(0) lgkmcnt(0)")
    e("v_mfma_f32_32x32x16_bf16 v[32:47], v[88:91], v[8:11], 0")
    e("s_nop 7"); e("s_nop 3")
    e("v_max3_f32 v16, v32, v33, v34")
    e("v_max3_f32 v17, v35, v36, v37")
    e("v_max3_f32 v16, v16, v38, v39")
    e("v_max3_f32 v17, v17, v40, v41")
    e("v_max3_f32 v16, v16, v42, v43")
    e("v_max3_f32 v17, v17, v44, v45")
    e("v_max3_f32 v16, v16, v46, v47")
    e(f"L_{n}_setmax:")
    e("v_max_f32 v16, v16, v17")
    e("v_mov_b32 v12, v2")
    e("v_mov_b32 v17, v16")
    e("v_mov_b32 v3, v112")
    e("ds_read_b128 v[88:91], v12")
    e("ds_read_b128 v[92:95], v12 offset:1024")
    e("v_permlane32_swap_b32 v16, v17")
    for u in range(2):
        for t in range(2):
            e(f"ds_read_b64_tr_b16 v[{96+4*u+2*t}:{97+4*u+2*t}], v3 offset:{512*u+256*t}")
    e("v_max_f32 v16, v16, v17")
    e("v_sub_f32 v16, 0, v16")
    for r in range(17, 32): e(f"v_mov_b32 v{r}, v16")
    for r in list(range(68, 88)) + list(range(104, 112)): e(f"v_mov_b32 v{r}, 0")
    e("s_waitcnt lgkmcnt(5)")
    e("v_mfma_f32_32x32x16_bf16 v[32:47], v[88:91], v[8:11], v[16:31]")
    e("s_nop 7")
    e("s_mov_b32 s55, 0")
    e(f"L_{n}_loop:")
    e("s_add_u32 s51, s55, 1")
    e("s_and_b32 s52, s51, s55")
    e("s_cmp_lg_u32 s52, 0")
    e(f"s_cbranch_scc1 L_{n}_nobar")
    e("s_cmp_eq_u32 s55, 0")
    e(f"s_cbranch_scc1 L_{n}_nobar")
    e("s_cmp_eq_u32 s55, 15")
    e(f"s_cbranch_scc1 L_{n}_nobar")
    e("s_bcnt1_i32_b32 s51, s55")
    e("s_lshl_b32 s51, s51, 2")
    e(f"s_add_u32 s51, s51, {L_FLG + 36}")
    e("v_mov_b32 v5, s51")
    lds_wait(a, "c1", 0, 4, 5, 6, 51, 52, setaddr=False)
    e(f"L_{n}_nobar:")
    X = lambda r: e(f"v_exp_f32 v{r}, v{r}")
    fair = ENV("K2_FAIR", "1") == "1"
    for tl in range(4):
        S = 32 + 16 * (tl % 2); Sn = 32 + 16 * ((tl + 1) % 2)
        Kn = 88 + 4 * ((tl + 1) % 2); Knn = 88 + 4 * (tl % 2)
        V = 96 + 8 * (tl % 2); Vp = 96 + 8 * ((tl + 1) % 2)
        e("s_waitcnt lgkmcnt(4)")
        e(f"v_mfma_f32_32x32x16_bf16 v[{Sn}:{Sn+15}], v[{Kn}:{Kn+3}], v[8:11], v[16:31]")
        if fair and tl == 0:
            e("ds_write_b32 v113, v115")
            e("ds_read_b32 v116, v114")
        e(f"ds_read_b128 v[{Knn}:{Knn+3}], v12 offset:{1024*(tl+2)}")
        X(S); X(S + 1); X(S + 2)
        e(f"v_mfma_f32_32x32x16_bf16 v[72:87], v[{Vp+4}:{Vp+7}], v[68:71], v[72:87]")
        for u in range(2):
            for t in range(2):
                e(f"ds_read_b64_tr_b16 v[{Vp+4*u+2*t}:{Vp+4*u+2*t+1}], v3 offset:{1024*(tl+1)+512*u+256*t}")
        if fair and tl == 1:
            e("v_readfirstlane_b32 s51, v116")
            e("v_add_u32 v115, 1, v115")
            e("s_cmp_gt_u32 s55, s51")
            e(f"s_cbranch_scc1 L_{n}_lo")
            e("s_setprio 1")
            e(f"s_branch L_{n}_pd")
            e(f"L_{n}_lo:")
            e("s_setprio 0")
            e(f"L_{n}_pd:")
        for i in range(3, 9): X(S + i)
        for i in range(4): e(f"v_cvt_pk_bf16_f32 v{64+i}, v{S+2*i}, v{S+2*i+1}")
        X(S + 9); X(S + 10)
        e("s_waitcnt lgkmcnt(5)")
        e(f"v_mfma_f32_32x32x16_bf16 v[72:87], v[{V}:{V+3}], v[64:67], v[72:87]")
        for i in range(11, 16): X(S + i)
        if tl == 3:
            e("v_add_u32 v12, 4096, v12")
            e("v_add_u32 v3, v4, v3")
        else:
            e("s_nop 0")
        for i in range(4, 8): e(f"v_cvt_pk_bf16_f32 v{64+i}, v{S+2*i}, v{S+2*i+1}")
    e("s_add_u32 s55, s55, 1")
    e("s_cmp_lt_u32 s55, 16")
    e(f"s_cbranch_scc1 L_{n}_loop")
    e("v_mfma_f32_32x32x16_bf16 v[72:87], v[108:111], v[68:71], v[72:87]")
    T.stamp()
    e("s_lshl_b32 s49, s48, 5")
    e("s_add_u32 s49, s49, s40")
    e("s_lshl_b32 s49, s49, 10")
    e(f"s_add_u32 s49, s49, {OOFF}")
    e("s_waitcnt lgkmcnt(0)")
    e("s_nop 7")
    e("v_mul_f32 v32, 0, v72")
    for r in range(73, 80): e(f"v_fma_f32 v32, v{r}, 0, v32")
    e(f"v_mov_b32 v33, {f32(2.0**60)}")
    e("v_add_f32 v32, v32, v80")
    e("v_cmp_nlt_f32 vcc, v32, v33")
    e("s_cmp_lg_u32 s56, 0")
    e(f"s_cbranch_scc1 L_{n}_store")
    e("s_cmp_eq_u64 vcc, 0")
    e(f"s_cbranch_scc1 L_{n}_store")
    e("s_mov_b32 s56, 1")
    e("s_mov_b32 s55, 0")
    e("v_mov_b32 v12, v2")
    e("v_mov_b32 v16, 0xff800000")
    e("v_mov_b32 v17, 0xff800000")
    e(f"L_{n}_mloop:")
    e("ds_read_b128 v[88:91], v12")
    e("s_waitcnt lgkmcnt(0)")
    e("v_mfma_f32_32x32x16_bf16 v[32:47], v[88:91], v[8:11], 0")
    e("v_add_u32 v12, 1024, v12")
    e("s_nop 7"); e("s_nop 3")
    for i in range(4):
        e(f"v_max3_f32 v16, v16, v{32+4*i}, v{33+4*i}")
        e(f"v_max3_f32 v17, v17, v{34+4*i}, v{35+4*i}")
    e("s_add_u32 s55, s55, 1")
    e("s_cmp_lt_u32 s55, 64")
    e(f"s_cbranch_scc1 L_{n}_mloop")
    e(f"s_branch L_{n}_setmax")
    e(f"L_{n}_store:")
    lds_signal(a, 13, 5, 6)
    e("v_rcp_f32 v80, v80")
    e("s_nop 0")
    for r in range(72, 80): e(f"v_mul_f32 v{r}, v{r}, v80")
    for p in range(4): e(f"v_cvt_pk_bf16_f32 v{64+p}, v{72+2*p}, v{73+2*p}")
    if FUSE:
        e("buffer_store_dwordx4 v[64:67], v2, s[32:35], s49 offen sc1")
        e("s_lshl_b32 s49, s48, 5")
        e("s_add_u32 s49, s49, s40")
        e("s_lshl_b32 s49, s49, 2")
        e(f"s_add_u32 s49, s49, {OFLAG}")
        e("v_mov_b32 v5, 0")
        e("v_mov_b32 v6, 1")
        e("s_waitcnt vmcnt(0)")
        e("s_mov_b64 exec, 1")
        e("buffer_store_dword v6, v5, s[32:35], s49 offen sc1")
        e("s_mov_b64 exec, -1")
    else:
        e("buffer_store_dwordx4 v[64:67], v2, s[32:35], s49 offen")


def attn_wave64(a, T):
    e = a.e; n = a.name
    e("s_and_b32 s46, s45, 3")
    e("s_lshr_b32 s47, s45, 2")
    e("s_lshl_b32 s48, s41, 3")
    e("s_lshl_b32 s49, s46, 1")
    e("s_add_u32 s48, s48, s49")
    e("s_add_u32 s48, s48, s47")
    e("s_xor_b32 s49, s48, 1")
    e("s_lshl_b32 s50, s40, 6")
    e("s_add_u32 s51, s50, s48"); e("s_lshl_b32 s51, s51, 10")
    e("s_add_u32 s52, s50, s49"); e("s_lshl_b32 s52, s52, 10")
    e("buffer_load_dwordx4 v[8:11], v2, s[32:35], s51 offen")
    e("buffer_load_dwordx4 v[12:15], v2, s[32:35], s52 offen")
    e("v_and_b32 v5, 1, v1")
    e("v_cmp_eq_u32 vcc, 0, v5")
    e("v_mov_b32 v5, 0x3f80")
    e("v_mov_b32 v33, 0"); e("v_mov_b32 v35, 0")
    e("v_cndmask_b32 v32, 0, v5, vcc")
    e("v_mov_b32 v34, v32")
    e("v_lshlrev_b32 v3, 4, v0")
    e(f"v_cmp_gt_u32 vcc, 5632, v3")
    e(f"v_add_u32 v3, {L_ONES}, v3")
    e("s_and_saveexec_b64 s[50:51], vcc")
    e("ds_write_b128 v3, v[32:35]")
    e("s_mov_b64 exec, -1")
    e("v_lshrrev_b32 v5, 5, v1")
    e("v_bfe_u32 v6, v1, 4, 1")
    e("v_xor_b32 v7, v5, v6")
    e("v_and_b32 v3, 15, v1")
    e("v_lshlrev_b32 v3, 3, v3")
    e("v_lshl_add_u32 v3, v7, 7, v3")
    e("s_lshl_b32 s53, s47, 15")
    e(f"s_add_u32 s51, s53, {L_V}")
    e("v_mov_b32 v7, s51")
    e(f"v_mov_b32 v160, {L_ONES}")
    e("v_cmp_eq_u32 vcc, 1, v6")
    e("v_xor_b32 v4, 1, v6")
    e("v_lshlrev_b32 v4, 12, v4")
    e("v_cndmask_b32 v7, v7, v160, vcc")
    e("v_add_u32 v160, v7, v3")
    e("v_add_u32 v165, s53, v2")
    e("s_mov_b32 s56, 0")
    e("s_lshl_b32 s51, s45, 2")
    e(f"s_add_u32 s51, s51, {L_FLG + 64}")
    e("v_mov_b32 v161, s51")
    e("v_xor_b32 v162, 16, v161")
    e("v_mov_b32 v163, 0")
    e("v_mov_b32 v164, 0")
    e("s_waitcnt lgkmcnt(0)")
    lds_signal(a, 9, 5, 6)
    lds_wait(a, "c0", 9, 12, 5, 6, 51, 52)
    T.stamp()
    e("ds_read_b128 v[112:115], v165")
    e("s_waitcnt vmcnt(0) lgkmcnt(0)")
    e("v_mfma_f32_32x32x16_bf16 v[32:47], v[112:115], v[8:11], 0")
    e("v_mfma_f32_32x32x16_bf16 v[48:63], v[112:115], v[12:15], 0")
    e("s_nop 7"); e("s_nop 3")
    for (m, S) in ((16, 32), (144, 48)):
        e(f"v_max3_f32 v{m}, v{S}, v{S+1}, v{S+2}")
        e(f"v_max3_f32 v{m+1}, v{S+3}, v{S+4}, v{S+5}")
        e(f"v_max3_f32 v{m}, v{m}, v{S+6}, v{S+7}")
        e(f"v_max3_f32 v{m+1}, v{m+1}, v{S+8}, v{S+9}")
        e(f"v_max3_f32 v{m}, v{m}, v{S+10}, v{S+11}")
        e(f"v_max3_f32 v{m+1}, v{m+1}, v{S+12}, v{S+13}")
        e(f"v_max3_f32 v{m}, v{m}, v{S+14}, v{S+15}")
    e(f"L_{n}_setmax:")
    e("v_max_f32 v16, v16, v17")
    e("v_max_f32 v144, v144, v145")
    e("v_mov_b32 v17, v16")
    e("v_mov_b32 v145, v144")
    e("v_mov_b32 v120, v165")
    e("v_mov_b32 v3, v160")
    e("v_permlane32_swap_b32 v16, v17")
    e("v_permlane32_swap_b32 v144, v145")
    e("ds_read_b128 v[112:115], v120")
    e("ds_read_b128 v[116:119], v120 offset:1024")
    for u in range(2):
        for t in range(2):
            e(f"ds_read_b64_tr_b16 v[{128+4*u+2*t}:{129+4*u+2*t}], v3 offset:{512*u+256*t}")
    e("v_max_f32 v16, v16, v17")
    e("v_max_f32 v144, v144, v145")
    e("v_sub_f32 v16, 0, v16")
    e("v_sub_f32 v144, 0, v144")
    for r in range(17, 32): e(f"v_mov_b32 v{r}, v16")
    for r in range(145, 160): e(f"v_mov_b32 v{r}, v144")
    for r in list(range(76, 112)) + list(range(136, 144)): e(f"v_mov_b32 v{r}, 0")
    e("s_waitcnt lgkmcnt(5)")
    e("v_mfma_f32_32x32x16_bf16 v[32:47], v[112:115], v[8:11], v[16:31]")
    e("s_nop 7")
    e("s_nop 3")
    e("s_mov_b32 s55, 0")
    e(f"L_{n}_loop:")
    e("s_cmp_eq_u32 s55, 1")
    e(f"s_cbranch_scc1 L_{n}_g")
    e("s_cmp_lg_u32 s55, 3")
    e(f"s_cbranch_scc1 L_{n}_nobar")
    e(f"L_{n}_g:")
    if ENV("K2_AT", "0") == "1":
        e("s_lshr_b32 s51, s2, 3"); e("s_lshl_b32 s51, s51, 3"); e("s_add_u32 s51, s51, s45")
        e("s_mul_i32 s52, s51, 5504")
        e(f"s_mov_b32 s54, {W4F}")
        e("s_cmp_eq_u32 s55, 1")
        e(f"s_cselect_b32 s54, {W3F}, s54")
        e("s_add_u32 s52, s52, s54")
        e("v_lshlrev_b32 v5, 7, v1")
        e("s_mov_b32 exec_hi, 0x7ff")
        e("buffer_load_dword v166, v5, s[32:35], s52 offen")
        e("s_lshl_b32 s51, s51, 11")
        e(f"s_add_u32 s51, s51, {WOF}")
        e("s_mov_b64 exec, 0xffff")
        e("buffer_load_dword v166, v5, s[32:35], s51 offen")
        e("s_mov_b64 exec, -1")
    e("s_lshl_b32 s51, s55, 2")
    e(f"s_add_u32 s51, s51, {L_FLG + 36}")
    e("v_mov_b32 v5, s51")
    lds_wait(a, "c1", 0, 4, 5, 6, 51, 52, setaddr=False)
    e(f"L_{n}_nobar:")
    X = lambda r: e(f"v_exp_f32 v{r}, v{r}")
    def CV(d, s): e(f"v_cvt_pk_bf16_f32 v{d}, v{s}, v{s+1}")
    for tl in range(4):
        K = 112 + 4 * (tl % 2); Kn = 112 + 4 * ((tl + 1) % 2)
        V = 128 + 8 * (tl % 2); Vp = 128 + 8 * ((tl + 1) % 2)
        X(32); X(33)
        e(f"v_mfma_f32_32x32x16_bf16 v[96:111], v[{Vp+4}:{Vp+7}], v[76:79], v[96:111]")
        for u in range(2):
            for t in range(2):
                e(f"ds_read_b64_tr_b16 v[{Vp+4*u+2*t}:{Vp+4*u+2*t+1}], v3 offset:{1024*(tl+1)+512*u+256*t}")
        if tl in (1, 3):
            e("v_readfirstlane_b32 s51, v164")
            e("v_add_u32 v163, 1, v163")
            e("s_lshl_b32 s52, s55, 1")
            e(f"s_add_u32 s52, s52, {tl >> 1}")
            e("s_cmp_gt_u32 s52, s51")
            e(f"s_cbranch_scc1 L_{n}_lo{tl}")
            e("s_setprio 1")
            e(f"s_branch L_{n}_pd{tl}")
            e(f"L_{n}_lo{tl}:")
            e("s_setprio 0")
            e(f"L_{n}_pd{tl}:")
        for i in range(2, 8): X(32 + i)
        e(f"v_mfma_f32_32x32x16_bf16 v[48:63], v[{K}:{K+3}], v[12:15], v[144:159]")
        e(f"ds_read_b128 v[{K}:{K+3}], v120 offset:{1024*(tl+2)}")
        X(40)
        for i in range(4): CV(64 + i, 32 + 2 * i)
        X(41); X(42); X(43)
        e("s_waitcnt lgkmcnt(5)")
        e(f"v_mfma_f32_32x32x16_bf16 v[80:95], v[{V}:{V+3}], v[64:67], v[80:95]")
        if tl in (0, 2):
            e("ds_write_b32 v161, v163")
            e("ds_read_b32 v164, v162")
        for i in range(12, 16): X(32 + i)
        X(48)
        for i in range(4, 8): CV(64 + i, 32 + 2 * i)
        X(49); X(50)
        e(f"v_mfma_f32_32x32x16_bf16 v[80:95], v[{V+4}:{V+7}], v[68:71], v[80:95]")
        for i in range(3, 9): X(48 + i)
        e(f"v_mfma_f32_32x32x16_bf16 v[32:47], v[{Kn}:{Kn+3}], v[8:11], v[16:31]")
        for i in range(4): CV(72 + i, 48 + 2 * i)
        X(57); X(58); X(59); X(60)
        e(f"v_mfma_f32_32x32x16_bf16 v[96:111], v[{V}:{V+3}], v[72:75], v[96:111]")
        for i in range(13, 16): X(48 + i)
        if tl == 3:
            e("v_add_u32 v3, v4, v3")
            e("v_add_u32 v120, 4096, v120")
        elif tl in (0, 2):
            e("s_waitcnt lgkmcnt(0)")
        else:
            e("s_nop 0")
        for i in range(4, 8): CV(72 + i, 48 + 2 * i)
    if STAMP and ENV("K2_ITS") == "1":
        for it in range(8):
            e(f"s_cmp_lg_u32 s55, {it}")
            e(f"s_cbranch_scc1 L_{n}_its{it}")
            e(f"s_memtime s[{76+2*it}:{77+2*it}]")
            e(f"L_{n}_its{it}:")
        T.n = 10
    e("s_add_u32 s55, s55, 1")
    e("s_cmp_lt_u32 s55, 8")
    e(f"s_cbranch_scc1 L_{n}_loop")
    e("v_mfma_f32_32x32x16_bf16 v[96:111], v[140:143], v[76:79], v[96:111]")
    T.stamp()
    e("s_waitcnt lgkmcnt(0)")
    e("s_nop 7"); e("s_nop 3")
    e("v_mul_f32 v32, 0, v80")
    for r in list(range(81, 88)) + list(range(96, 104)): e(f"v_fma_f32 v32, v{r}, 0, v32")
    e(f"v_mov_b32 v33, {f32(2.0**60)}")
    e("v_add_f32 v32, v32, v88")
    e("v_add_f32 v32, v32, v104")
    e("v_cmp_nlt_f32 vcc, v32, v33")
    e("s_cmp_lg_u32 s56, 0")
    e(f"s_cbranch_scc1 L_{n}_comb")
    e("s_cmp_eq_u64 vcc, 0")
    e(f"s_cbranch_scc1 L_{n}_comb")
    e("s_mov_b32 s56, 1")
    e("s_mov_b32 s55, 0")
    e("v_mov_b32 v120, v165")
    for r in (16, 17, 144, 145): e(f"v_mov_b32 v{r}, 0xff800000")
    e(f"L_{n}_mloop:")
    e("ds_read_b128 v[112:115], v120")
    e("s_waitcnt lgkmcnt(0)")
    e("v_mfma_f32_32x32x16_bf16 v[32:47], v[112:115], v[8:11], 0")
    e("v_mfma_f32_32x32x16_bf16 v[48:63], v[112:115], v[12:15], 0")
    e("v_add_u32 v120, 1024, v120")
    e("s_nop 7"); e("s_nop 3")
    for (m, S) in ((16, 32), (144, 48)):
        for i in range(4):
            e(f"v_max3_f32 v{m}, v{m}, v{S+4*i}, v{S+1+4*i}")
            e(f"v_max3_f32 v{m+1}, v{m+1}, v{S+2+4*i}, v{S+3+4*i}")
    e("s_add_u32 s55, s55, 1")
    e("s_cmp_lt_u32 s55, 32")
    e(f"s_cbranch_scc1 L_{n}_mloop")
    e(f"s_branch L_{n}_setmax")
    e(f"L_{n}_comb:")
    e("v_mov_b32 v105, v144")
    e("s_mul_i32 s51, s45, 3072")
    e(f"s_add_u32 s51, s51, {L_B}")
    e("v_add_u32 v3, s51, v2")
    e("s_xor_b32 s51, s45, 4")
    e("s_mul_i32 s51, s51, 3072")
    e(f"s_add_u32 s51, s51, {L_B}")
    e("v_add_u32 v7, s51, v2")
    lds_wait(a, "hd", 14, 4, 5, 6, 51, 52)
    e("ds_write_b128 v3, v[96:99]")
    e("ds_write_b128 v3, v[100:103] offset:1024")
    e("ds_write_b128 v3, v[104:107] offset:2048")
    e("s_lshl_b32 s51, s45, 2")
    e(f"s_add_u32 s51, s51, {L_FLG}")
    e("v_mov_b32 v5, s51")
    e("v_mov_b32 v6, 1")
    e("s_waitcnt lgkmcnt(0)")
    e("ds_write_b32 v5, v6")
    e("v_xor_b32 v5, 16, v5")
    e("v_mov_b32 v3, v7")
    lds_wait(a, "pr", 0, 1, 5, 6, 51, 52, setaddr=False)
    e("ds_read_b128 v[96:99], v3")
    e("ds_read_b128 v[100:103], v3 offset:1024")
    e("ds_read_b128 v[104:107], v3 offset:2048")
    e("s_lshl_b32 s49, s48, 5")
    e("s_add_u32 s49, s49, s40")
    e("s_lshl_b32 s50, s49, 2")
    e(f"s_add_u32 s50, s50, {OFLAG}")
    e("s_lshl_b32 s49, s49, 10")
    e(f"s_add_u32 s49, s49, {OOFF}")
    e("s_waitcnt lgkmcnt(0)")
    lds_signal(a, 13, 5, 6)
    e("v_min_f32 v32, v16, v105")
    e("v_sub_f32 v33, v32, v16")
    e("v_sub_f32 v34, v32, v105")
    e("v_exp_f32 v33, v33")
    e("v_exp_f32 v34, v34")
    e("s_nop 0")
    e("v_mul_f32 v88, v88, v33")
    e("v_fmac_f32 v88, v104, v34")
    e("v_rcp_f32 v88, v88")
    e("s_nop 0")
    e("v_mul_f32 v33, v33, v88")
    e("v_mul_f32 v34, v34, v88")
    for i in range(8): e(f"v_mul_f32 v{80+i}, v{80+i}, v33")
    for i in range(8): e(f"v_fmac_f32 v{80+i}, v{96+i}, v34")
    for p in range(4): e(f"v_cvt_pk_bf16_f32 v{64+p}, v{80+2*p}, v{81+2*p}")
    e("buffer_store_dwordx4 v[64:67], v2, s[32:35], s49 offen sc1")
    e("v_mov_b32 v5, 0")
    e("v_mov_b32 v6, 1")
    e("s_waitcnt vmcnt(0)")
    e("s_mov_b64 exec, 1")
    e("buffer_store_dword v6, v5, s[32:35], s50 offen sc1")
    e("s_mov_b64 exec, -1")


def gemm(a, tag, nact, nw, N, D, acc, fr, s_act, s_w, st_act, st_w, s_cnt=None, sc_act="", pace=None, hook=None, hook_step=None, noinit=False, between=None):
    e = a.e
    nf = nact + nw
    def F(r, i): return fr + 4 * (nf * r + i)
    def issue(r, part=3):
        if part != 3:
            for t in range(nact if part == 1 else 0):
                e(f"s_add_u32 s62, s{s_act}, {1024*r}")
                if t: e(f"s_add_u32 s62, s62, {st_act}")
                e(f"buffer_load_dwordx4 v[{F(r,t)}:{F(r,t)+3}], v2, s[32:35], s62 offen{sc_act}")
            for i in range(nw if part == 2 else 0):
                e(f"s_add_u32 s62, s{s_w}, {1024*r}")
                if i: e(f"s_add_u32 s62, s62, {st_w if isinstance(st_w, str) else i*st_w}")
                e(f"buffer_load_dwordx4 v[{F(r,nact+i)}:{F(r,nact+i)+3}], v2, s[32:35], s62 offen")
            return
        if s_cnt is not None:
            e(f"s_cmp_gt_i32 s{s_cnt}, 0")
            e(f"s_cselect_b32 s60, s{s_act}, s59")
            e(f"s_cselect_b32 s61, s{s_w}, s59")
            e(f"s_sub_i32 s{s_cnt}, s{s_cnt}, 1")
            sa, sw = 60, 61
        else:
            sa, sw = s_act, s_w
        for t in range(nact):
            so = f"s{sa}"
            if t:
                e(f"s_add_u32 s62, s{sa}, {st_act if isinstance(st_act, str) else t*st_act}"); so = "s62"
            e(f"buffer_load_dwordx4 v[{F(r,t)}:{F(r,t)+3}], v2, s[32:35], {so} offen{sc_act}")
        for i in range(nw):
            so = f"s{sw}"
            if i:
                e(f"s_add_u32 s62, s{sw}, {st_w if isinstance(st_w, str) else i*st_w}"); so = "s62"
            e(f"buffer_load_dwordx4 v[{F(r,nact+i)}:{F(r,nact+i)+3}], v2, s[32:35], {so} offen")
        e(f"s_add_u32 s{s_act}, s{s_act}, 1024")
        e(f"s_add_u32 s{s_w}, s{s_w}, 1024")
    def step(j, first=False):
        r = j % D
        if between and j < D:
            e(f"s_waitcnt vmcnt({nact*(D-1-j) + nf*min(j, max(N-D, 0))})")
        else:
            e(f"s_waitcnt vmcnt({nf*min(D-1, N-1-j)})")
        if hook_step: hook_step(j)
        more = j + D < N
        il = ENV("K2_IL", "1") == "1" and more
        if il:
            if s_cnt is not None:
                e(f"s_cmp_gt_i32 s{s_cnt}, 0")
                e(f"s_cselect_b32 s60, s{s_act}, s59")
                e(f"s_cselect_b32 s61, s{s_w}, s59")
                e(f"s_sub_i32 s{s_cnt}, s{s_cnt}, 1")
                sa, sw = 60, 61
            else:
                sa, sw = s_act, s_w
        def ld_w(i):
            so = f"s{sw}"
            if i:
                e(f"s_add_u32 s62, s{sw}, {st_w if isinstance(st_w, str) else i*st_w}"); so = "s62"
            e(f"buffer_load_dwordx4 v[{F(r,nact+i)}:{F(r,nact+i)+3}], v2, s[32:35], {so} offen")
        def ld_a(t):
            so = f"s{sa}"
            if t:
                e(f"s_add_u32 s62, s{sa}, {st_act if isinstance(st_act, str) else t*st_act}"); so = "s62"
            e(f"buffer_load_dwordx4 v[{F(r,t)}:{F(r,t)+3}], v2, s[32:35], {so} offen{sc_act}")
        mp = ENV("K2_MP_" + tag, "0")
        if mp: e(f"s_setprio {mp}")
        for i in range(nw):
            for t in range(nact):
                d = acc + 16 * (i * nact + t)
                cc = "0" if first else f"v[{d}:{d+15}]"
                e(f"v_mfma_f32_32x32x16_bf16 v[{d}:{d+15}], v[{F(r,nact+i)}:{F(r,nact+i)+3}], v[{F(r,t)}:{F(r,t)+3}], {cc}")
                did = False
                if il:
                    if t == nact - 1: ld_w(i); did = True
                    if i == nw - 1: ld_a(t); did = True
                if pace and not did: e(pace)
        if mp: e("s_setprio 3")
        if il:
            e(f"s_add_u32 s{s_act}, s{s_act}, 1024")
            e(f"s_add_u32 s{s_w}, s{s_w}, 1024")
        elif more: issue(r)
    if s_cnt is not None: e(f"s_mov_b32 s59, {BIG}")
    if between:
        for r in range(D): issue(r, 2)
        between()
        for r in range(D): issue(r, 1)
        e(f"s_add_u32 s{s_act}, s{s_act}, {1024*D}")
        e(f"s_add_u32 s{s_w}, s{s_w}, {1024*D}")
        if s_cnt is not None: e(f"s_sub_i32 s{s_cnt}, s{s_cnt}, {D}")
        for j in range(D): step(j, first=(j == 0 and not noinit))
        j0 = D
    else:
        for r in range(D): issue(r)
        if hook: hook(nf * D)
        step(0, not noinit)
        j0 = 1
    m = (N - j0 - D) // D
    j = j0
    if m >= 2:
        e(f"s_mov_b32 s58, {m}")
        e(f"L_{a.name}_{tag}_loop:")
        for jj in range(j0, j0 + D): step(jj)
        e("s_sub_u32 s58, s58, 1")
        e("s_cmp_lg_u32 s58, 0")
        e(f"s_cbranch_scc1 L_{a.name}_{tag}_loop")
        j = j0 + m * D
    while j < N:
        step(j); j += 1


def b_waves(a, T, with_w4):
    e = a.e
    pace = ENV("K2_PACE", "") or None
    st = {"n": 0}
    def sync():
        st["n"] += 1
        e("s_waitcnt lgkmcnt(0)")
        lds_signal(a, 8, 6, 7)
        lds_wait(a, f"sy{st['n']}", 8, 4 * st["n"], 6, 7, 68, 69, setaddr=False)

    e("s_sub_u32 s45, s44, 8")
    a.srd(24, 4, 2048 * 1024)
    a.srd(28, 6, 2048 * 1024)
    e("s_lshl_b32 s46, s40, 16")
    e("s_lshl_b32 s47, s45, 10")
    e("s_add_u32 s46, s46, s47")
    e(f"s_add_u32 s46, s46, {KOFF}")
    def kv(t0, cnt):
        for i in range(cnt):
            off = (t0 + 4 * i) * 1024
            e(f"s_add_u32 m0, s47, {L_K + off}")
            e(f"s_add_u32 s48, s46, {off}")
            e("buffer_load_dwordx4 v2, s[32:35], s48 offen lds")
            e(f"s_add_u32 m0, s47, {L_V + off}")
            e(f"s_add_u32 s48, s46, {off + VOFF - KOFF}")
            e("buffer_load_dwordx4 v2, s[32:35], s48 offen lds")
    OLD = ENV("K2_ORDER", "old") == "old"
    kv(0, 2)
    if Q64:
        kv(32, 2); kv(8, 2); kv(40, 2)
        e("s_waitcnt vmcnt(8)")
        lds_signal(a, 9, 6, 7)
    elif OLD:
        kv(8, 6)
        e("s_waitcnt vmcnt(12)")
        lds_signal(a, 9, 6, 7)
    e("s_setprio %s" % ENV("K2_PRIO", "3"))
    T.n = 1
    T.stamp()
    if ENV("K2_NOB") == "1":
        kv(16, 4); kv(48, 4); e("s_waitcnt vmcnt(0)")
        for i in (10, 11, 12, 14): lds_signal(a, i, 6, 7)
        e("s_endpgm")

    e("s_and_b32 s50, s45, 1")
    e("s_lshr_b32 s51, s45, 1")
    e("s_lshl_b32 s64, s40, 1"); e("s_add_u32 s64, s64, s50")
    e("s_lshl_b32 s65, s41, 1"); e("s_add_u32 s65, s65, s51")
    for j in range(1, 4):
        e(f"s_xor_b32 s60, s45, {j}")
        e("s_mul_i32 s60, s60, 6144")
        e(f"s_add_u32 s60, s60, {L_B + (j-1)*2048}")
        e(f"v_add_u32 v{2+j}, s60, v2")
    e("s_mul_i32 s52, s45, 6144")
    e(f"s_add_u32 s52, s52, {L_B}")

    def signed_stride(sreg, bit_sreg, stride):
        e(f"s_mov_b32 s{sreg}, {stride}")
        e(f"s_cmp_eq_u32 s{bit_sreg}, 1")
        e(f"s_cselect_b32 s{sreg}, {(-stride) & 0xffffffff}, s{sreg}")

    def x_tile(dst, vt):
        e("s_lshl_b32 s60, s64, 15")
        e("s_lshl_b32 s61, s65, 6")
        e("s_add_u32 s60, s60, s61")
        e(f"v_and_b32 v{vt}, 31, v1")
        e(f"v_lshrrev_b32 v{vt+1}, 5, v1")
        e(f"v_lshlrev_b32 v{vt+2}, 10, v{vt}")
        e(f"v_lshl_add_u32 v{vt+2}, v{vt+1}, 3, v{vt+2}")
        for g in range(4):
            e(f"buffer_load_dwordx2 v[{dst+2*g}:{dst+2*g+1}], v{vt+2}, s[24:27], s60 offen offset:{16*g}")

    def reduce22(ACC, TMP):
        e("s_nop 7"); e("s_nop 3")
        e(f"v_add_u32 v{TMP+24}, s52, v2")
        for h in range(2):
            for j in range(1, 4):
                for q in range(2):
                    r = ACC + 16 * j + 8 * h + 4 * q
                    e(f"ds_write_b128 v{2+j}, v[{r}:{r+3}] offset:{q*1024}")
            sync()
            for i in range(6):
                e(f"ds_read_b128 v[{TMP+4*i}:{TMP+4*i+3}], v{TMP+24} offset:{i*1024}")
            if h == 0:
                sync()
            else:
                e("s_waitcnt lgkmcnt(0)")
            for j in range(3):
                for r in range(8):
                    e(f"v_add_f32 v{ACC+8*h+r}, v{ACC+8*h+r}, v{TMP+8*j+r}")

    def xsync(ph, during=None):
        xpub(ph)
        if during: during()
        xwait(ph)

    def xpub(ph):
        e("s_waitcnt vmcnt(0)")
        e("s_lshl_b32 s70, s40, 8")
        e(f"s_add_u32 s70, s70, {FLAGS + 128*ph}")
        e("s_lshl_b32 s61, s41, 2")
        e("s_add_u32 s61, s61, s45")
        e("s_lshl_b32 s61, s61, 2")
        e("v_mov_b32 v6, s61")
        e("v_mov_b32 v7, 1")
        e("s_mov_b64 exec, 1")
        e("buffer_store_dword v7, v6, s[32:35], s70 offen sc1")
        e("s_mov_b64 exec, -1")

    def xwait(ph):
        e("v_and_b32 v6, 31, v1")
        e("v_lshlrev_b32 v6, 2, v6")
        e(f"s_mov_b32 s68, {SPIN_MAX}")
        e(f"L_k2_xs{ph}:")
        e("buffer_load_dword v7, v6, s[32:35], s70 offen sc1")
        e("s_waitcnt vmcnt(0)")
        e("v_cmp_eq_u32 vcc, 0, v7")
        e("s_cmp_eq_u64 vcc, 0")
        e(f"s_cbranch_scc1 L_k2_xs{ph}_go")
        e("s_sleep 2")
        e("s_sub_u32 s68, s68, 1")
        e("s_cmp_lg_u32 s68, 0")
        e(f"s_cbranch_scc1 L_k2_xs{ph}")
        e(f"L_k2_xs{ph}_go:")

    ACC, FR, XR = 8, 72, 136
    x_tile(XR, 146)
    e("s_lshl_b32 s61, s64, 8")
    e(f"s_add_u32 s61, s61, {STAT}")
    e("v_lshlrev_b32 v148, 3, v146")
    e("buffer_load_dwordx2 v[144:145], v148, s[32:35], s61 offen")
    e("s_lshl_b32 s60, s45, 3")
    e("s_lshl_b32 s56, s64, 5"); e("s_add_u32 s56, s56, s60"); e("s_lshl_b32 s56, s56, 10"); e(f"s_add_u32 s56, s56, {HOFF}")
    e("s_lshl_b32 s57, s65, 5"); e("s_add_u32 s57, s57, s60"); e("s_lshl_b32 s57, s57, 10"); e(f"s_add_u32 s57, s57, {W2F}")
    signed_stride(53, 50, 32768)
    signed_stride(54, 51, 32768)
    def hook(ny):
        if OLD:
            e(f"s_waitcnt vmcnt({ny + 5})")
            lds_signal(a, 10, 6, 7); lds_signal(a, 11, 6, 7)
            return
        kv(8, 2)
        e(f"s_waitcnt vmcnt({ny + 5 + 4})")
        lds_signal(a, 9, 6, 7)
    def hook_step(j):
        if j == 4 and not OLD: lds_signal(a, 10, 6, 7)
    gemm(a, "w2", 2, 2, 8, 4, ACC, FR, 56, 57, "s53", "s54", pace=pace, hook=hook, hook_step=hook_step)
    if ENV("K2_FINE") == "1": T.stamp()
    LATE = ENV("K2_LATEKV", "1") == "1"
    def lastkv():
        if Q64:
            kv(16, 4); kv(48, 4)
        else:
            if not OLD: kv(16, 4)
            kv(32, 8)
    if not LATE: lastkv()
    e("s_mul_i32 s66, s41, 5")
    e("s_min_u32 s60, s41, 3")
    e("s_add_u32 s66, s66, s60")
    e("s_and_b32 s61, s40, 3"); e("s_lshl_b32 s61, s61, 2"); e("s_add_u32 s61, s61, s45")
    e("s_lshl_b32 s62, s66, 5"); e("s_mul_i32 s63, s61, 12"); e("s_add_u32 s62, s62, s63"); e("s_lshl_b32 s62, s62, 10"); e(f"s_add_u32 s62, s62, {W3F}")
    e("v_lshlrev_b32 v6, 7, v1")
    if ENV("K2_AT", "0") != "1":
        e("buffer_load_dword v149, v6, s[32:35], s62 offen")
        e("s_add_u32 s62, s62, 4096")
        e("buffer_load_dword v149, v6, s[32:35], s62 offen")
    reduce22(ACC, FR)
    if ENV("K2_FINE") == "1": T.stamp()
    if not OLD:
        e("s_waitcnt vmcnt(18)")
        lds_signal(a, 11, 6, 7)
    if not LATE:
        e("s_waitcnt vmcnt(2)")
        lds_signal(a, 12, 6, 7)
    U = FR
    e("v_mul_f32 v146, v144, v145")
    e("s_mov_b32 s60, 0xffff0000")
    for p in range(8):
        e(f"v_lshlrev_b32 v{U+2*p}, 16, v{XR+p}")
        e(f"v_and_b32 v{U+2*p+1}, s60, v{XR+p}")
    for r in range(16): e(f"v_sub_f32 v{ACC+r}, v{ACC+r}, v146")
    for r in range(16): e(f"v_fmac_f32 v{ACC+r}, v{U+r}, v145")
    for p in range(8): e(f"v_cvt_pk_bf16_f32 v{ACC+16+p}, v{ACC+2*p}, v{ACC+2*p+1}")
    e("s_lshl_b32 s60, s64, 5"); e("s_lshl_b32 s61, s65, 1"); e("s_add_u32 s60, s60, s61"); e("s_lshl_b32 s60, s60, 10"); e(f"s_add_u32 s60, s60, {X1OFF}")
    e(f"buffer_store_dwordx4 v[{ACC+16}:{ACC+19}], v2, s[32:35], s60 offen sc1")
    e(f"buffer_store_dwordx4 v[{ACC+20}:{ACC+23}], v2, s[32:35], s60 offen offset:1024 sc1")
    if ENV("K2_DUP", "0") == "1":
        e(f"buffer_store_dwordx4 v[{ACC+16}:{ACC+19}], v2, s[32:35], s60 offen")
        e(f"buffer_store_dwordx4 v[{ACC+20}:{ACC+23}], v2, s[32:35], s60 offen offset:1024")
    e(f"v_add_f32 v144, v{ACC}, v{ACC+1}")
    e(f"v_mul_f32 v145, v{ACC}, v{ACC}")
    e(f"v_add_f32 v146, v{ACC+2}, v{ACC+3}")
    e(f"v_mul_f32 v147, v{ACC+1}, v{ACC+1}")
    e(f"v_fmac_f32 v145, v{ACC+2}, v{ACC+2}")
    e(f"v_fmac_f32 v147, v{ACC+3}, v{ACC+3}")
    for r in range(4, 16):
        e(f"v_add_f32 v{144 + 2*(r&1)}, v{144 + 2*(r&1)}, v{ACC+r}")
        e(f"v_fmac_f32 v{145 + 2*(r&1)}, v{ACC+r}, v{ACC+r}")
    e("v_add_f32 v144, v144, v146")
    e("v_add_f32 v145, v145, v147")
    e("v_mov_b32 v146, v144")
    e("v_mov_b32 v147, v145")
    e("s_lshl_b32 s60, s64, 4"); e("s_add_u32 s60, s60, s65")
    e("v_permlane32_swap_b32 v144, v146")
    e("v_permlane32_swap_b32 v145, v147")
    e("s_lshl_b32 s60, s60, 8"); e(f"s_add_u32 s60, s60, {X1STAT}")
    e("v_add_f32 v144, v144, v146")
    e("v_add_f32 v145, v145, v147")
    e("s_mov_b32 exec_hi, 0")
    e("buffer_store_dwordx2 v[144:145], v148, s[32:35], s60 offen sc1")
    e("s_mov_b64 exec, -1")
    T.stamp()
    if ENV("K2_STOP") == "1": e("s_endpgm")

    def colsum():
        e("s_mul_i32 s60, s45, 192")
        e("s_lshl_b32 s61, s66, 7")
        e("s_add_u32 s60, s60, s61")
        e(f"s_add_u32 s60, s60, {CS3P}")
        e("v_lshrrev_b32 v40, 4, v1")
        e(f"v_mul_u32_u24 v40, {8*1408*4}, v40")
        e("v_and_b32 v41, 15, v1")
        e("v_lshl_add_u32 v40, v41, 4, v40")
        for i in range(8):
            e(f"buffer_load_dwordx4 v[{8+4*i}:{11+4*i}], v40, s[32:35], s60 offen")
            if i < 7: e("s_add_u32 s60, s60, 1408*4")
        e("s_mul_i32 s60, s45, 192")
        e(f"s_add_u32 s60, s60, {L_CS}")
        e("v_add_u32 v6, s60, v2")
        e("s_waitcnt vmcnt(0)")
        for i in range(1, 8):
            for r in range(4): e(f"v_add_f32 v{8+r}, v{8+r}, v{8+4*i+r}")
        for op in ("v_permlane32_swap_b32", "v_permlane16_swap_b32"):
            for r in range(4): e(f"v_mov_b32 v{12+r}, v{8+r}")
            e("s_nop 0")
            for r in range(4): e(f"{op} v{8+r}, v{12+r}")
            for r in range(4): e(f"v_add_f32 v{8+r}, v{8+r}, v{12+r}")
        e("s_mov_b64 exec, 0xfff")
        e("ds_write_b128 v6, v[8:11]")
        e("s_mov_b64 exec, -1")
    xpub(0)
    if LATE: lastkv()
    colsum()
    if LATE: lds_signal(a, 12, 6, 7)

    ACC, FR = 8, 104
    e("s_mul_i32 s61, s51, 3")
    e("s_add_u32 s67, s66, s61")
    e("s_lshl_b32 s60, s50, 4")
    e("s_lshl_b32 s56, s64, 5"); e("s_add_u32 s56, s56, s60"); e("s_lshl_b32 s56, s56, 10"); e(f"s_add_u32 s56, s56, {X1OFF}")
    e("s_lshl_b32 s57, s67, 5"); e("s_add_u32 s57, s57, s60"); e("s_lshl_b32 s57, s57, 10"); e(f"s_add_u32 s57, s57, {W3F}")
    def w0():
        xwait(0); T.stamp()
    BTW = ENV("K2_BTW", "0") == "1"
    if not BTW: w0()
    gemm(a, "w3", 2, 3, 16, 3, ACC, FR, 56, 57, "s53", 32768, sc_act=" sc1", pace=pace, between=w0 if BTW else None)
    if ENV("K2_FINE") == "1": T.stamp()
    if with_w4 and ENV("K2_W4T", "0") == "1":
        e("s_and_b32 s61, s40, 3"); e("s_lshl_b32 s61, s61, 2"); e("s_add_u32 s61, s61, s45")
        e("s_mul_i32 s62, s41, 172"); e("s_mul_i32 s63, s61, 11"); e("s_add_u32 s62, s62, s63"); e("s_lshl_b32 s62, s62, 10"); e(f"s_add_u32 s62, s62, {W4F}")
        e("v_lshlrev_b32 v6, 7, v1")
        e("buffer_load_dword v163, v6, s[32:35], s62 offen")
        e("s_add_u32 s62, s62, 3072")
        e("buffer_load_dword v163, v6, s[32:35], s62 offen")
    e("v_and_b32 v164, 31, v1")
    e("v_lshrrev_b32 v165, 5, v1")
    e("v_lshlrev_b32 v166, 3, v164")
    e("v_lshl_add_u32 v166, v165, 11, v166")
    e("s_lshl_b32 s60, s64, 12")
    e(f"s_add_u32 s60, s60, {X1STAT}")
    SR = FR + 40
    for j in range(8):
        e(f"buffer_load_dwordx2 v[{SR+2*j}:{SR+2*j+1}], v166, s[32:35], s60 offen offset:{256*j} sc1")
    e(f"v_add_u32 v167, s52, v2")
    e("s_nop 3")
    quads = [(i, q) for i in range(3) for q in range(4)]
    def xwrite(h):
        for s_, (i, q) in enumerate(quads[6*h:6*h+6]):
            r = ACC + 16 * (2 * i + 1) + 4 * q
            e(f"ds_write_b128 v3, v[{r}:{r+3}] offset:{s_*1024}")
    def xread(h):
        for s_ in range(6):
            e(f"ds_read_b128 v[{FR+4*s_}:{FR+4*s_+3}], v167 offset:{s_*1024}")
    def xadd(h):
        for s_, (i, q) in enumerate(quads[6*h:6*h+6]):
            for r in range(4):
                d = ACC + 32 * i + 4 * q + r
                e(f"v_add_f32 v{d}, v{d}, v{FR+4*s_+r}")
    def sig():
        st["n"] += 1
        e("s_waitcnt lgkmcnt(0)")
        lds_signal(a, 8, 6, 7)
        return st["n"]
    def wt(n_):
        lds_wait(a, f"sy{n_}", 8, 4 * n_, 6, 7, 68, 69)
    xwrite(0)
    n1 = sig()
    e("s_waitcnt vmcnt(0)")
    for j in range(1, 8):
        e(f"v_add_f32 v{SR}, v{SR}, v{SR+2*j}")
        e(f"v_add_f32 v{SR+1}, v{SR+1}, v{SR+2*j+1}")
    e(f"v_mov_b32 v{SR+2}, v{SR}")
    e(f"v_mov_b32 v{SR+3}, v{SR+1}")
    e("s_mul_i32 s60, s51, 384")
    e(f"s_add_u32 s60, s60, {L_CS}")
    e(f"v_permlane32_swap_b32 v{SR}, v{SR+2}")
    e(f"v_permlane32_swap_b32 v{SR+1}, v{SR+3}")
    e("v_lshl_add_u32 v166, v165, 4, s60")
    e(f"v_add_f32 v{SR}, v{SR}, v{SR+2}")
    e(f"v_add_f32 v{SR+1}, v{SR+1}, v{SR+3}")
    NMU, C1, C2, IA = SR + 4, SR + 5, SR + 6, SR + 7
    e(f"v_mul_f32 v{NMU}, {f32(-1/512)}, v{SR}")
    e(f"v_mul_f32 v{SR+1}, {f32(1/512)}, v{SR+1}")
    e(f"v_fma_f32 v{SR+1}, -v{NMU}, v{NMU}, v{SR+1}")
    e(f"v_max_f32 v{SR+1}, 0, v{SR+1}")
    e(f"v_add_f32 v{SR+1}, {f32(EPS)}, v{SR+1}")
    e(f"v_rsq_f32 v{SR}, v{SR+1}")
    e("s_mul_i32 s62, s64, 86")
    e(f"v_mul_f32 v{IA}, v{SR+1}, v{SR}")
    e(f"v_mul_f32 v{C1}, {f32(GELU_K1)}, v{SR}")
    e(f"v_mul_f32 v{C2}, v{SR}, v{SR}")
    e(f"v_mul_f32 v{C2}, v{C2}, v{SR}")
    e(f"v_mul_f32 v{C2}, {f32(GELU_K2)}, v{C2}")
    e("s_lshl_b32 s63, s67, 1"); e("s_add_u32 s62, s62, s63"); e("s_lshl_b32 s62, s62, 10"); e(f"s_add_u32 s62, s62, {GOFF}")
    e("s_cmp_ge_u32 s41, 3")
    e("s_cselect_b32 s63, s51, 0")
    CSR = FR + 24
    def epi(i):
        Z = ACC + 32 * i; Tm = Z + 16
        for g in range(4):
            e(f"ds_read_b128 v[{CSR+4*g}:{CSR+4*g+3}], v166 offset:{128*i + 32*g}")
        e("s_waitcnt lgkmcnt(0)")
        R = range(16)
        for r in R: e(f"v_fmac_f32 v{Z+r}, v{NMU}, v{CSR+r}")
        for r in R: e(f"v_mul_f32 v{Tm+r}, v{Z+r}, v{Z+r}")
        for r in R: e(f"v_fma_f32 v{Tm+r}, v{Tm+r}, v{C2}, v{C1}")
        for r in R: e(f"v_mul_f32 v{Tm+r}, v{Tm+r}, v{Z+r}")
        for r in R: e(f"v_exp_f32 v{Tm+r}, v{Tm+r}")
        for r in R: e(f"v_fma_f32 v{Tm+r}, v{Tm+r}, v{IA}, v{IA}")
        for r in R: e(f"v_rcp_f32 v{Tm+r}, v{Tm+r}")
        for r in R: e(f"v_mul_f32 v{Z+r}, v{Z+r}, v{Tm+r}")
        for p in range(8): e(f"v_cvt_pk_bf16_f32 v{Tm+p}, v{Z+2*p}, v{Z+2*p+1}")
        e(f"buffer_store_dwordx4 v[{Tm}:{Tm+3}], v2, s[32:35], s62 offen offset:{(2048*i) % 4096} sc1")
        e(f"buffer_store_dwordx4 v[{Tm+4}:{Tm+7}], v2, s[32:35], s62 offen offset:{(2048*i) % 4096 + 1024} sc1")
        if i == 1: e("s_add_u32 s62, s62, 4096")
    wt(n1)
    xread(0)
    n2 = sig()
    xadd(0)
    if ENV("K2_FINE") == "1": T.stamp()
    wt(n2)
    xwrite(1)
    n3 = sig()
    epi(0)
    wt(n3)
    xread(1)
    e("s_waitcnt lgkmcnt(0)")
    lds_signal(a, 14, 6, 7)
    xadd(1)
    epi(1)
    e("s_cmp_eq_u32 s63, 1")
    e("s_cbranch_scc1 L_k2_w3_done")
    epi(2)
    e("L_k2_w3_done:")
    T.stamp()
    if not with_w4: return

    xpub(1)
    if not BTW:
        xwait(1); T.stamp()
    ACC, FR, XR, X1R = 8, 72, 152, 160
    D4 = int(ENV("K2_D4", "5"))
    def xx1():
        x_tile(XR, 3)
        e("s_lshl_b32 s60, s64, 5"); e("s_lshl_b32 s61, s65, 1"); e("s_add_u32 s60, s60, s61"); e("s_lshl_b32 s60, s60, 10"); e(f"s_add_u32 s60, s60, {X1OFF}")
        e(f"buffer_load_dwordx4 v[{X1R}:{X1R+3}], v2, s[32:35], s60 offen sc1")
        e(f"buffer_load_dwordx4 v[{X1R+4}:{X1R+7}], v2, s[32:35], s60 offen offset:1024 sc1")
    xx1()
    e("s_mul_i32 s60, s45, 22")
    e("s_sub_u32 s55, 86, s60")
    e("s_min_u32 s55, s55, 22")
    e("s_mul_i32 s56, s64, 86"); e("s_add_u32 s56, s56, s60"); e("s_lshl_b32 s56, s56, 10"); e(f"s_add_u32 s56, s56, {GOFF}")
    e("s_mul_i32 s57, s65, 86"); e("s_add_u32 s57, s57, s60"); e("s_lshl_b32 s57, s57, 10"); e(f"s_add_u32 s57, s57, {W4F}")
    signed_stride(53, 50, 86 * 1024)
    signed_stride(54, 51, 86 * 1024)
    def w1():
        xwait(1); T.stamp()
    gemm(a, "w4", 2, 2, 22, D4, ACC, FR, 56, 57, "s53", "s54", s_cnt=55, sc_act=" sc1", pace=pace, between=w1 if BTW else None)
    if ENV("K2_FINE") == "1": T.stamp()
    e("s_setprio 0")
    e("s_nop 7"); e("s_nop 3")
    e("s_mov_b32 s60, 0xffff0000")
    for base in (XR, X1R):
        for p in range(8):
            e(f"v_lshlrev_b32 v{FR+2*p}, 16, v{base+p}")
            e(f"v_and_b32 v{FR+2*p+1}, s60, v{base+p}")
        for r in range(16): e(f"v_add_f32 v{ACC+r}, v{ACC+r}, v{FR+r}")
    e("s_lshl_b32 s60, s45, 3")
    e("s_lshl_b32 s56, s64, 5"); e("s_add_u32 s56, s56, s60"); e("s_lshl_b32 s56, s56, 10"); e(f"s_add_u32 s56, s56, {OOFF}")
    e("s_lshl_b32 s57, s65, 5"); e("s_add_u32 s57, s57, s60"); e("s_lshl_b32 s57, s57, 10"); e(f"s_add_u32 s57, s57, {WOF}")
    signed_stride(53, 50, 32768)
    signed_stride(54, 51, 32768)
    e("s_add_u32 s53, s53, s56")
    e("s_add_u32 s54, s54, s57")
    OR_, WR = 72, 136
    def wload(j):
        r = WR + 8 * (j % 4)
        o = 1024 * (j % 4)
        e(f"buffer_load_dwordx4 v[{r}:{r+3}], v2, s[32:35], s57 offen offset:{o}")
        e(f"buffer_load_dwordx4 v[{r+4}:{r+7}], v2, s[32:35], s54 offen offset:{o}")
    for j in range(4): wload(j)
    e("s_add_u32 s57, s57, 4096"); e("s_add_u32 s54, s54, 4096")
    e("s_lshl_b32 s70, s40, 8")
    e("s_lshl_b32 s60, s45, 5")
    e("s_add_u32 s70, s70, s60")
    e(f"s_add_u32 s70, s70, {OFLAG}")
    e("v_and_b32 v6, 7, v1")
    e("v_lshlrev_b32 v6, 2, v6")
    e("v_bfe_u32 v7, v1, 3, 1")
    e("v_lshl_add_u32 v6, v7, 7, v6")
    e(f"s_mov_b32 s68, {SPIN_MAX}")
    e("s_setprio 0")
    e("L_k2_ow:")
    e("buffer_load_dword v7, v6, s[32:35], s70 offen sc1")
    e("s_waitcnt vmcnt(0)")
    e("v_cmp_eq_u32 vcc, 0, v7")
    e("s_cmp_eq_u64 vcc, 0")
    e("s_cbranch_scc1 L_k2_ow_go")
    e("s_sleep 2")
    e("s_sub_u32 s68, s68, 1")
    e("s_cmp_lg_u32 s68, 0")
    e("s_cbranch_scc1 L_k2_ow")
    e("L_k2_ow_go:")
    e("s_setprio 3")
    if ENV("K2_FINE") == "1": T.stamp()
    for j in range(8):
        if j == 4: e("s_add_u32 s56, s56, 4096"); e("s_add_u32 s53, s53, 4096")
        r = OR_ + 8 * j
        e(f"buffer_load_dwordx4 v[{r}:{r+3}], v2, s[32:35], s56 offen offset:{1024*(j%4)} sc1")
        e(f"buffer_load_dwordx4 v[{r+4}:{r+7}], v2, s[32:35], s53 offen offset:{1024*(j%4)} sc1")
    lds_wait(a, "ad", 13, 8, 6, 7, 68, 69)
    for j in range(1, 4):
        e(f"s_xor_b32 s60, s45, {j}")
        e("s_mul_i32 s60, s60, 12288")
        e(f"s_add_u32 s60, s60, {(j-1)*4096}")
        e(f"v_add_u32 v{2+j}, s60, v2")
    for j in range(8):
        if j < 4: e(f"s_waitcnt vmcnt({2*(7-j) + 2*j})")
        else: e(f"s_waitcnt vmcnt({2*(7-j)})")
        w = WR + 8 * (j % 4); o = OR_ + 8 * j
        for i in range(2):
            for t in range(2):
                d = ACC + 16 * (2 * i + t)
                e(f"v_mfma_f32_32x32x16_bf16 v[{d}:{d+15}], v[{w+4*i}:{w+4*i+3}], v[{o+4*t}:{o+4*t+3}], v[{d}:{d+15}]")
        if j < 4: wload(j + 4)
    e("s_mul_i32 s60, s45, 12288")
    e("v_add_u32 v136, s60, v2")
    e("v_and_b32 v152, 31, v1")
    e("v_lshrrev_b32 v153, 5, v1")
    e("v_lshlrev_b32 v154, 10, v152")
    e("v_lshl_add_u32 v154, v153, 4, v154")
    e("s_nop 7")
    for j in range(1, 4):
        for q in range(4):
            r = ACC + 16 * j + 4 * q
            e(f"ds_write_b128 v{2+j}, v[{r}:{r+3}] offset:{q*1024}")
    sync()
    for i in range(12):
        e(f"ds_read_b128 v[{FR+4*i}:{FR+4*i+3}], v136 offset:{i*1024}")
    for j in range(3):
        e(f"s_waitcnt lgkmcnt({8-4*j})")
        for r in range(16): e(f"v_add_f32 v{ACC+r}, v{ACC+r}, v{FR+16*j+r}")
    for p in range(8): e(f"v_cvt_pk_bf16_f32 v{FR+p}, v{ACC+2*p}, v{ACC+2*p+1}")
    e("s_lshl_b32 s60, s64, 15")
    e("s_lshl_b32 s61, s65, 6")
    e(f"v_permlane32_swap_b32 v{FR}, v{FR+2}")
    e(f"v_permlane32_swap_b32 v{FR+1}, v{FR+3}")
    e(f"v_permlane32_swap_b32 v{FR+4}, v{FR+6}")
    e(f"v_permlane32_swap_b32 v{FR+5}, v{FR+7}")
    e("s_add_u32 s60, s60, s61")
    OST = ENV("K2_OST", "")
    e(f"buffer_store_dwordx4 v[{FR}:{FR+3}], v154, s[28:31], s60 offen{OST}")
    e(f"buffer_store_dwordx4 v[{FR+4}:{FR+7}], v154, s[28:31], s60 offen offset:32{OST}")
    T.stamp()


def gen_k2(with_w4=True):
    a = Asm("k2"); e = a.e
    T = Stamper(a, 72, 1)
    T.stamp()
    e("s_cmp_ge_u32 s2, 256")
    e("s_cbranch_scc1 L_k2_exit")
    e("s_load_dwordx2 s[4:5], s[0:1], 0")
    e("s_load_dwordx2 s[6:7], s[0:1], 64")
    e("s_load_dwordx2 s[20:21], s[0:1], 80")
    e("v_lshrrev_b32 v1, 6, v0")
    e("s_and_b32 s54, s2, 7")
    e("v_readfirstlane_b32 s44, v1")
    e("v_and_b32 v1, 63, v0")
    e("v_lshlrev_b32 v2, 4, v1")
    e("s_lshl_b32 s40, s54, 2")
    e("s_bfe_u32 s54, s2, 0x20003")
    e("s_add_u32 s40, s40, s54")
    e("s_lshr_b32 s41, s2, 5")
    e("s_mov_b32 s45, s44")
    for r in range(4, 8): e(f"v_mov_b32 v{r}, 0")
    e(f"v_add_u32 v3, {L_CS}, v2")
    e("ds_write_b128 v3, v[4:7]")
    e("s_waitcnt lgkmcnt(0)")
    e("s_barrier")
    a.srd(32, 20, WS_USED)
    e("s_cmp_ge_u32 s44, 8")
    e("s_cbranch_scc1 L_k2_b")
    if ENV("K2_NOA") == "1":
        e("s_endpgm")
    (attn_wave64 if Q64 else attn_wave)(a, T)
    T.stamp()
    T.dump(32, 44, 12, 4, 5)
    e("s_endpgm")
    e("L_k2_b:")
    b_waves(a, T, with_w4)
    T.dump(32, 44, 12, 4, 5)
    e("L_k2_exit:")
    e("s_endpgm")
    return a.kernel(vgpr=168, sgpr=96)
```

```python
from mb_gen import gen, initv
names=[]
def body(nload, mask, sc):
    L=[]
    for h in range(2):
        for i in range(nload//2):
            j = h*(nload//2)+i
            L.append(f"    buffer_load_dwordx4 v[{32+4*j}:{35+4*j}], v5, s[8:11], s30 offen{sc}")
            L.append(f"    s_add_u32 s30, s30, s31")
            L.append(f"    s_and_b32 s30, s30, {mask}")
        L.append(f"    s_waitcnt vmcnt({nload//2})")
    return "\n".join(L)
for sc in ("", " sc1", " sc0 sc1", " sc0", " nt"):
    region = 1<<20
    init = f"""    v_lshlrev_b32 v5, 4, v1
    s_mul_i32 s30, s21, 37*1024
    s_and_b32 s30, s30, {region-1}
    s_mov_b32 s31, 4096
    s_lshl_b32 s33, s20, 10
    s_add_u32 s30, s30, s33
    s_and_b32 s30, s30, {region-1}
"""
    n=f"sc_{sc.replace(' ','')}.s"; gen(n, body(16, region-1, sc), init, waves=4, iters=200, vgpr=168); names.append(n)
print(" ".join(names))
```
